```python
import torch

def _softmax(x, axis=-1):
    return torch.softmax(x, dim=axis)
def _gelu(x):
    return torch.nn.functional.gelu(x, approximate="tanh")
def _silu(x):
    return torch.nn.functional.silu(x)
def _sigmoid(x):
    return torch.sigmoid(x)
def _layernorm(x, axis=-1, eps=1e-5):
    m = x.mean(dim=axis, keepdim=True)
    v = x.var(dim=axis, keepdim=True, unbiased=False)
    return (x - m) / torch.sqrt(v + eps)
def _scatter_add(tgt, idx, src, axis=0):
    return tgt.clone().index_add_(axis, idx, src)
def _segment_sum(src, seg, n):
    out = torch.zeros((n,) + src.shape[1:], dtype=src.dtype)
    return out.index_add_(0, seg, src)
def _pad(x, pw):
    flat = tuple(v for pair in reversed(pw) for v in pair)
    return torch.nn.functional.pad(x, flat)

kernel_name = 'standalone__weight_only_int_quip__prompt'

def setup_inputs():

    _w = (lambda a: (lambda t: t.to(torch.bfloat16) if t.is_floating_point() else t)(torch.as_tensor(a)))
    B, S, D, F = 1, 2048, 640, 1728
    G = 128 if 128 > 0 else D
    D = (D // G) * G
    ng = D // G
    bits = 4 if 4 > 0 else 4
    qmax = 1 << bits
    qw = torch.randint(0, qmax, (D, F)).to(torch.int32)
    U, _ = (lambda *_a, **_k: torch.linalg.qr(*[torch.as_tensor(_x).float() for _x in _a], **_k))((lambda *s: torch.randn(*s, dtype=torch.bfloat16) * 0.05)(D, D))
    V, _ = (lambda *_a, **_k: torch.linalg.qr(*[torch.as_tensor(_x).float() for _x in _a], **_k))((lambda *s: torch.randn(*s, dtype=torch.bfloat16) * 0.05)(F, F))
    return {
        "x": _w((lambda *s: torch.randn(*s, dtype=torch.bfloat16) * 0.05)(B, S, D)),
        "qw": _w(qw),
        "scales": _w(torch.abs((lambda *s: torch.randn(*s, dtype=torch.bfloat16) * 0.05)(ng, F)) * 0.02 + 0.005),
        "zeros": _w(torch.full((ng, F), qmax / 2.0, dtype=float)),
        "U": _w(U.to(float)),
        "V": _w(V.to(float)),
    }

def reference(x, qw, scales, zeros, U, V):
    B, S, D = x.shape
    ng, F = scales.shape
    G = D // ng
    s = (lambda x, n, axis: torch.repeat_interleave(x, n, dim=axis))(scales, G, axis=0)
    z = (lambda x, n, axis: torch.repeat_interleave(x, n, dim=axis))(zeros, G, axis=0)
    wq = ((lambda x, dt: x.to(dt))(qw, x.dtype) - z) * s
    xr = torch.einsum("bsd,de->bse", x, U)
    h  = torch.einsum("bse,ef->bsf", xr, wq)
    y  = torch.einsum("bsf,fg->bsg", h, V)
    return y
```

```python
HEADER = """.amdgcn_target "amdgcn-amd-amdhsa--gfx950"
.text
"""

class K:
    def __init__(self, name):
        self.name = name
        self.lines = []
    def __call__(self, s):
        for l in s.strip("\n").split("\n"):
            self.lines.append("    " + l.strip() if not l.strip().endswith(":") else l.strip())
    def label(self, l):
        self.lines.append(l + ":")
    def text(self):
        return (f".globl {self.name}\n.p2align 8\n.type {self.name},@function\n{self.name}:\n" +
                "\n".join(self.lines) + "\n")

def desc(name, vgpr, sgpr=102, accum=None, wgy=False):
    if accum is None: accum = min(256, (vgpr + 3) // 4 * 4)
    s = f""".p2align 6
.amdhsa_kernel {name}
  .amdhsa_next_free_vgpr {vgpr}
  .amdhsa_next_free_sgpr {sgpr}
  .amdhsa_accum_offset {accum}
  .amdhsa_group_segment_fixed_size 0
  .amdhsa_kernarg_size 72
  .amdhsa_user_sgpr_count 2
  .amdhsa_user_sgpr_kernarg_segment_ptr 1
  .amdhsa_system_sgpr_workgroup_id_x 1
"""
    if wgy: s += "  .amdhsa_system_sgpr_workgroup_id_y 1\n"
    s += ".end_amdhsa_kernel\n"
    return s

def srd(k, d, base, nbytes):
    k(f"s_mov_b32 s{d}, s{base}")
    k(f"s_and_b32 s{d+1}, s{base+1}, 0xffff")
    k(f"s_mov_b32 s{d+2}, {nbytes}")
    k(f"s_mov_b32 s{d+3}, 0x00020000")
```

```python
import sys
from asmlib import *

XRF_OFF = 0
WVF_OFF = 0x300000
WS_USED = 0x600000
STAMP_OFF = 0x800000
WS_BYTES = 0x1000000

def magic(d):
    return hex((1 << 32) // d + 1)

class VM:
    def __init__(self): self.q = []
    def issue(self, tag): self.q.append(tag)
    def wait_for(self, pred):
        last = -1
        for i, t in enumerate(self.q):
            if pred(t): last = i
        return len(self.q) - 1 - last

def stamp_begin(k, P):
    if not P.get("stamp"): return
    k("s_memtime s[90:91]")
    k("s_memrealtime s[92:93]")

def stamp_mid(k, P, idx):
    if not P.get("stamp"): return
    k("s_memtime s[94:95]")
    k("s_waitcnt lgkmcnt(0)")
    k(f"s_sub_u32 s{96+idx}, s94, s90")

def stamp_end(k, P, kid, wssrd, vtmp, wavereg):
    if not P.get("stamp"): return
    k("s_waitcnt vmcnt(0)")
    k("s_memtime s[94:95]")
    k("s_memrealtime s[88:89]")
    k("s_waitcnt lgkmcnt(0)")
    k("s_sub_u32 s94, s94, s90")
    k("s_getreg_b32 s95, hwreg(HW_REG_XCC_ID)")
    k("s_add_u32 s95, s95, 1")
    for i, s in enumerate([94, 92, 88, 95, 96, 97, 98, 99]):
        k(f"v_mov_b32 v{vtmp+i}, s{s}")
    k(f"s_lshl_b32 s94, s2, 2")
    k(f"s_add_u32 s94, s94, s{wavereg}")
    k("s_lshl_b32 s94, s94, 5")
    k(f"s_add_u32 s94, s94, {STAMP_OFF + kid * 0x10000}")
    k(f"v_mov_b32 v{vtmp+8}, s94")
    k("s_mov_b64 exec, 1")
    k(f"buffer_store_dwordx4 v[{vtmp}:{vtmp+3}], v{vtmp+8}, s[{wssrd}:{wssrd+3}], 0 offen")
    k(f"buffer_store_dwordx4 v[{vtmp+4}:{vtmp+7}], v{vtmp+8}, s[{wssrd}:{wssrd+3}], 0 offen offset:16")

def gen_k2(P):
    name = "quip_s2_kernel"
    k = K(name)
    D = P.get("k2_depth", 4)
    ldf = P.get("k2_ldflags", "")
    stf = P.get("k2_stflags", "")
    k("s_cmp_ge_u32 s2, 256")
    k("s_cbranch_scc1 L_k2_end")
    k("s_load_dwordx2 s[4:5], s[0:1], 48")
    k("s_load_dwordx2 s[6:7], s[0:1], 64")
    stamp_begin(k, P)
    k("v_lshrrev_b32 v1, 6, v0")
    k("v_and_b32 v0, 63, v0")
    k("v_readfirstlane_b32 s3, v1")
    k("s_and_b32 s8, s2, 7")
    k("s_lshr_b32 s9, s2, 3")
    k("s_lshr_b32 s10, s8, 1")
    k("s_lshl_b32 s10, s10, 2")
    k("s_and_b32 s11, s9, 3")
    k("s_add_u32 s10, s10, s11")
    k("s_and_b32 s11, s8, 1")
    k("s_lshl_b32 s11, s11, 3")
    k("s_lshr_b32 s9, s9, 2")
    k("s_add_u32 s11, s11, s9")
    k("v_lshlrev_b32 v2, 4, v0")
    k("s_mul_i32 s12, s11, 143360")
    k(f"s_add_u32 s12, s12, {WVF_OFF}")
    k("v_add_u32 v3, s12, v2")
    k("s_lshl_b32 s13, s10, 2")
    k("s_add_u32 s13, s13, s3")
    k("s_mul_i32 s14, s13, 40960")
    if XRF_OFF: k(f"s_add_u32 s14, s14, {XRF_OFF}")
    k("v_add_u32 v4, s14, v2")
    k("v_add_u32 v5, 20480, v4")
    for i in range(1, 5): k(f"s_mov_b32 s{20+i}, {i*4096}")
    k("s_lshl_b32 s15, s3, 10")
    k("s_waitcnt lgkmcnt(0)")
    srd(k, 16, 6, WS_BYTES)
    srd(k, 28, 4, 2048 * 1728 * 2)
    vm = VM()
    ACC = 8
    WF = 64
    def xreg(u, kk): return (kk * 2 + u) * 4
    wi = [0]
    def issue_w_upto(n):
        out = []
        while wi[0] < min(n, 35):
            i = wi[0]
            out.append([f"s_add_u32 m0, s15, {i*4096}", "s_nop 0",
                        f"buffer_load_dwordx4 v3, s[16:19], m0 offen {ldf} lds", ("W", i)])
            wi[0] += 1
        return out
    def nW(kk): return (7 * kk + 6) // 4 + 1
    def loads_for(kk):
        out = []
        if kk >= 20: return out
        out += issue_w_upto(nW(kk))
        for u in range(2):
            so = "0" if kk < 4 else f"s{20 + kk//4}"
            r = xreg(u, kk)
            out.append([f"buffer_load_dwordx4 a[{r}:{r+3}], v{4+u}, s[16:19], {so} offen offset:{(kk%4)*1024} {ldf}", ("X", kk)])
        return out
    def emit_load(ld):
        for s in ld[:-1]: k(s)
        vm.issue(ld[-1])
    for kk in range(D):
        for ld in loads_for(kk): emit_load(ld)
    for i in range(56): k(f"v_mov_b32 v{ACC+i}, 0")
    k("v_and_b32 v6, 15, v0")
    k("s_lshl_b32 s14, s13, 5")
    k("v_add_u32 v6, s14, v6")
    k("v_mul_u32_u24 v6, 3456, v6")
    k("v_lshrrev_b32 v7, 4, v0")
    k("s_mul_i32 s14, s11, 112")
    k("v_lshlrev_b32 v124, 3, v7")
    k("v_add_u32 v124, s14, v124")
    k("v_mov_b32 v126, 0x7fffffff")
    for p in range(3):
        k(f"v_add_u32 v125, {32*p}, v124")
        k("v_cmp_gt_u32 vcc, 1728, v125")
        k(f"v_lshl_add_u32 v{120+p}, v125, 1, v6")
        k("s_nop 0")
        k(f"v_cndmask_b32 v{120+p}, v126, v{120+p}, vcc")
    k("v_lshlrev_b32 v124, 2, v7")
    k("v_add_u32 v124, s14, v124")
    k("v_add_u32 v125, 96, v124")
    k("v_cmp_gt_u32 vcc, 1728, v125")
    k("v_lshl_add_u32 v123, v125, 1, v6")
    k("s_nop 0")
    k("v_cndmask_b32 v123, v126, v123, vcc")
    k(f"s_mov_b32 s26, {16*3456}")
    k(f"v_add_u32 v6, {9*7168}, v2")
    k(f"v_add_u32 v7, {18*7168}, v2")
    def wread(kk, b):
        base, off = (2, kk) if kk < 9 else ((6, kk - 9) if kk < 18 else (7, kk - 18))
        r = WF + (kk & 1) * 28 + b * 4
        return f"ds_read_b128 v[{r}:{r+3}], v{base} offset:{off*7168 + b*1024}"
    def sync_for(kk):
        n = vm.wait_for(lambda t: (t[0] == "W" and t[1] < nW(kk)) or (t[0] == "X" and t[1] <= kk))
        k(f"s_waitcnt vmcnt({n})")
        k("s_barrier")
    sync_for(0)
    stamp_mid(k, P, 0)
    for b in range(7): k(wread(0, b))
    for kk in range(20):
        fill = []
        if kk + 1 < 20:
            sync_for(kk + 1)
            fill += [("ds", wread(kk + 1, b)) for b in range(7)]
        nds_new = len(fill)
        lds = loads_for(kk + D)
        fill += [("ld", x) for x in lds]
        issued_new = 0
        for b in range(7):
            for u in range(2):
                if u == 0:
                    k(f"s_waitcnt lgkmcnt({min(15, 6 - b + issued_new)})")
                a = ACC + (u * 7 + b) * 4
                w = WF + (kk & 1) * 28 + b * 4
                x = xreg(u, kk)
                k(f"v_mfma_f32_16x16x32_bf16 v[{a}:{a+3}], v[{w}:{w+3}], a[{x}:{x+3}], v[{a}:{a+3}]")
                if fill:
                    t, f = fill.pop(0)
                    if t == "ds": k(f); issued_new += 1
                    else: emit_load(f)
        while fill:
            t, f = fill.pop(0)
            if t == "ds": k(f)
            else: emit_load(f)
    stamp_mid(k, P, 1)
    k("s_nop 7")
    T0 = 64
    for u in range(2):
        so = "0" if u == 0 else "s26"
        for p in range(3):
            a0 = ACC + (u * 7 + 2 * p) * 4; a1 = a0 + 4
            t = T0 + (u * 4 + p) * 4
            k(f"v_cvt_pk_bf16_f32 v{t}, v{a0}, v{a0+1}")
            k(f"v_cvt_pk_bf16_f32 v{t+1}, v{a0+2}, v{a0+3}")
            k(f"v_cvt_pk_bf16_f32 v{t+2}, v{a1}, v{a1+1}")
            k(f"v_cvt_pk_bf16_f32 v{t+3}, v{a1+2}, v{a1+3}")
            k(f"buffer_store_dwordx4 v[{t}:{t+3}], v{120+p}, s[28:31], {so} offen {stf}")
        a0 = ACC + (u * 7 + 6) * 4
        t = T0 + (u * 4 + 3) * 4
        k(f"v_cvt_pk_bf16_f32 v{t}, v{a0}, v{a0+1}")
        k(f"v_cvt_pk_bf16_f32 v{t+1}, v{a0+2}, v{a0+3}")
        k(f"buffer_store_dwordx2 v[{t}:{t+1}], v123, s[28:31], {so} offen {stf}")
    stamp_mid(k, P, 2)
    stamp_end(k, P, 1, 16, 100, 3)
    k.label("L_k2_end")
    k("s_endpgm")
    return name, k.text(), desc(name, 128 + 160, 102, 128), (256, 256, 143360)

def gen_k1(P):
    name = "quip_s1_kernel"
    k = K(name)
    qf = P.get("q_flags", ""); vf = P.get("v_flags", ""); xf = P.get("x_flags", ""); uf = P.get("u_flags", "")
    stf = P.get("k1_stflags", "")
    rotmul = P.get("rot", 0)
    k("s_cmp_ge_u32 s2, 256")
    k("s_cbranch_scc1 L_k1_end")
    k("s_load_dwordx16 s[8:23], s[0:1], 0")
    k("s_load_dwordx2 s[24:25], s[0:1], 64")
    stamp_begin(k, P)
    k("v_lshrrev_b32 v1, 6, v0")
    k("v_and_b32 v0, 63, v0")
    k("v_readfirstlane_b32 s3, v1")
    k("s_and_b32 s4, s2, 7")
    k("s_lshr_b32 s5, s2, 3")
    k("s_cmp_ge_u32 s4, 6")
    k("s_cbranch_scc1 L_k1_xr")
    k("s_cmp_ge_u32 s5, 30")
    k("s_cbranch_scc1 L_k1_end")
    k(f"s_mul_hi_u32 s6, s5, {magic(5)}")
    k("s_mul_i32 s7, s6, 5")
    k("s_sub_u32 s7, s5, s7")
    k("s_add_u32 s50, s6, s7")
    k("s_cmp_ge_u32 s50, 5")
    k("s_cselect_b32 s51, 5, 0")
    k("s_sub_u32 s50, s50, s51")
    k(f"s_mul_i32 s50, s50, {rotmul}")
    k("s_lshl_b32 s50, s50, 2")
    k("s_add_u32 s50, s50, s3")
    k("s_and_b32 s51, s4, 1")
    k("s_mul_i32 s51, s51, 5")
    k("s_add_u32 s7, s7, s51")
    k("s_lshr_b32 s51, s4, 1")
    k("s_mul_i32 s51, s51, 6")
    k("s_add_u32 s6, s6, s51")
    VA = 2
    VB = 10
    VS = 16
    VAW = 17
    VAR = 19
    VBR = 23
    VBC = 24
    VO = 25
    RAW = 32
    SRAW = 96
    SC = 104
    TMP = 112
    PK = 120
    AF = 124
    BF = 140
    NV = 164
    k("v_lshrrev_b32 v28, 3, v0")
    k("v_and_b32 v29, 7, v0")
    k("s_mul_i32 s51, s7, %d" % (64 * 6912))
    k("v_mul_u32_u24 v30, 6912, v28")
    k("v_lshl_add_u32 v30, v29, 4, v30")
    k(f"v_add_u32 v{VA}, s51, v30")
    for j in range(1, 8): k(f"v_add_u32 v{VA+j}, {j*8*6912}, v{VA}")
    k("s_mul_i32 s51, s6, 192")
    k(f"s_mov_b32 s52, {magic(12)}")
    for j in range(6):
        k(f"v_add_u32 v30, {64*j}, v0")
        k("v_mul_hi_u32 v31, v30, s52")
        k("v_mul_u32_u24 v1, 12, v31")
        k("v_sub_u32 v30, v30, v1")
        k("v_mul_u32_u24 v31, 3456, v31")
        k("v_lshl_add_u32 v30, v30, 4, v31")
        k(f"v_add_u32 v{VB+j}, s51, v30")
    k("s_lshr_b32 s51, s7, 1")
    k("s_mul_i32 s51, s51, 3456")
    k("v_lshlrev_b32 v30, 3, v29")
    k(f"v_add_u32 v{VS}, s51, v30")
    k("s_lshl_b32 s53, s3, 15")
    k("s_waitcnt lgkmcnt(0)")
    srd(k, 28, 10, 640 * 1728 * 4)
    srd(k, 32, 18, 1728 * 1728 * 2)
    srd(k, 36, 12, 5 * 1728 * 2)
    srd(k, 40, 14, 5 * 1728 * 2)
    srd(k, 44, 24, WS_BYTES)
    k("s_mov_b32 s54, 0")
    k("s_mov_b32 s55, 0")
    def next_step_scalars():
        return [
            "s_lshl_b32 s56, s50, 7",
            "s_mul_i32 s57, s50, 110592",
            "s_lshl_b32 s58, s50, 6",
            "s_cmp_lt_u32 s50, 54",
            "s_cselect_b32 s60, s54, 14",
            "s_cmp_lt_u32 s60, 14",
            f"s_cselect_b32 s30, {640*1728*4}, 0",
            f"s_cselect_b32 s34, {1728*1728*2}, 0",
            f"s_cselect_b32 s38, {5*1728*2}, 0",
            f"s_cselect_b32 s42, {5*1728*2}, 0",
            "s_add_u32 s59, s53, s55",
            "s_add_u32 s55, s55, 6144",
            "s_cmp_eq_u32 s55, 24576",
            "s_cselect_b32 s55, 0, s55",
            "s_add_u32 s54, s54, 1",
            "s_add_u32 s50, s50, 4",
            "s_cmp_ge_u32 s50, 56",
            "s_cselect_b32 s60, 56, 0",
            "s_sub_u32 s50, s50, s60",
        ]
    def ldA(slot, j):
        r = RAW + slot * 32 + j * 4
        return f"buffer_load_dwordx4 v[{r}:{r+3}], v{VA+j}, s[28:31], s56 offen {qf}"
    def ldB(j):
        return [f"s_add_u32 m0, s59, {j*1024}", "s_nop 0", f"buffer_load_dwordx4 v{VB+j}, s[32:35], s57 offen {vf} lds"]
    def ldS(slot):
        r = SRAW + slot * 4
        return [f"buffer_load_dwordx2 v[{r}:{r+1}], v{VS}, s[36:39], s58 offen",
                f"buffer_load_dwordx2 v[{r+2}:{r+3}], v{VS}, s[40:43], s58 offen"]
    for slot in range(2):
        for s in next_step_scalars(): k(s)
        for j in range(8): k(ldA(slot, j))
        for j in range(6):
            for s in ldB(j): k(s)
        for s in ldS(slot): k(s)
    k("v_lshrrev_b32 v30, 1, v29")
    k("v_lshrrev_b32 v31, 2, v28")
    k("v_xor_b32 v30, v30, v31")
    k("v_lshlrev_b32 v30, 4, v30")
    k("v_lshl_add_u32 v30, v28, 6, v30")
    k("v_and_b32 v31, 1, v29")
    k("v_lshl_add_u32 v30, v31, 3, v30")
    k("s_add_u32 s51, s53, 24576")
    k(f"v_add_u32 v{VAW}, s51, v30")
    k(f"v_xor_b32 v{VAW+1}, 32, v{VAW}")
    k("v_and_b32 v30, 31, v0")
    k("s_lshl_b32 s52, s3, 4")
    k("v_xor_b32 v30, s52, v30")
    k("v_lshrrev_b32 v31, 5, v0")
    k("v_bfe_u32 v1, v0, 2, 2")
    k("v_xor_b32 v31, v31, v1")
    k("v_lshlrev_b32 v31, 4, v31")
    k("v_lshl_add_u32 v30, v30, 6, v31")
    k(f"v_add_u32 v{VAR}, s51, v30")
    k(f"v_xor_b32 v{VAR+1}, 32, v{VAR}")
    k(f"v_xor_b32 v{VAR+2}, 0x800, v{VAR}")
    k(f"v_xor_b32 v{VAR+3}, 32, v{VAR+2}")
    k("v_lshrrev_b32 v30, 5, v0")
    k("v_lshl_add_u32 v30, v30, 3, v1")
    k("v_mul_u32_u24 v30, 192, v30")
    k("v_bfe_u32 v31, v0, 4, 1")
    k("v_lshl_add_u32 v30, v31, 5, v30")
    k("v_and_b32 v31, 3, v0")
    k("v_lshl_add_u32 v30, v31, 3, v30")
    k(f"v_add_u32 v{VBR}, s53, v30")
    k("s_mov_b32 s61, 0")
    k("s_mul_i32 s51, s6, 96")
    k(f"s_mov_b32 s52, {magic(112)}")
    k("s_lshl_b32 s62, s7, 1")
    k("s_lshr_b32 s63, s3, 1")
    k("s_add_u32 s62, s62, s63")
    k("s_mul_i32 s62, s62, 7168")
    k("s_and_b32 s63, s3, 1")
    k("s_lshl_b32 s63, s63, 9")
    k("s_add_u32 s62, s62, s63")
    k(f"s_add_u32 s62, s62, {WVF_OFF}")
    k("s_mov_b32 s63, 143360")
    for nb in range(3):
        T = TMP
        k(f"v_and_b32 v{T}, 31, v0")
        k(f"v_add_u32 v{T}, s51, v{T}")
        if nb: k(f"v_add_u32 v{T}, {32*nb}, v{T}")
        k(f"v_mul_hi_u32 v{T+1}, v{T}, s52")
        k(f"v_mul_u32_u24 v{T+2}, 112, v{T+1}")
        k(f"v_sub_u32 v{T}, v{T}, v{T+2}")
        k(f"v_mul_lo_u32 v{T+1}, v{T+1}, s63")
        k(f"v_lshrrev_b32 v{T+2}, 5, v{T}")
        k(f"v_bfe_u32 v{T+3}, v{T}, 2, 1")
        k(f"v_lshl_add_u32 v{T+2}, v{T+2}, 1, v{T+3}")
        k(f"v_lshlrev_b32 v{T+2}, 10, v{T+2}")
        k(f"v_bfe_u32 v{T+3}, v{T}, 3, 2")
        k(f"v_lshl_add_u32 v{T+2}, v{T+3}, 6, v{T+2}")
        k(f"v_and_b32 v{T+3}, 3, v{T}")
        k(f"v_lshl_add_u32 v{T+2}, v{T+3}, 4, v{T+2}")
        k(f"v_lshlrev_b32 v{T+3}, 4, v{T}")
        k(f"v_add_u32 v{T+3}, {6*1024 - 96*16}, v{T+3}")
        k(f"v_cmp_gt_u32 vcc, 96, v{T}")
        k(f"v_lshrrev_b32 v{T}, 5, v0")
        k(f"v_lshl_add_u32 v{T+1}, v{T}, 8, v{T+1}")
        k(f"v_cndmask_b32 v{T+2}, v{T+3}, v{T+2}, vcc")
        k(f"v_add3_u32 v{VO+nb}, v{T+1}, v{T+2}, s62")
    for i in range(96): k(f"v_accvgpr_write_b32 a{i}, 0")
    for i in range(40): k(f"v_mov_b32 v{AF+i}, 0")
    def mfma(idx):
        ks, rb, nb = idx // 6, (idx // 3) % 2, idx % 3
        a = (rb * 3 + nb) * 16
        af = AF + (rb * 2 + ks) * 4; bf = BF + (ks * 3 + nb) * 4
        return f"v_mfma_f32_32x32x16_bf16 a[{a}:{a+15}], v[{af}:{af+3}], v[{bf}:{bf+3}], a[{a}:{a+15}]"
    k("s_mov_b32 s64, 0")
    k.label("L_wv_loop")
    for slot in range(2):
        k("s_waitcnt vmcnt(16)")
        sr = SRAW + slot * 4
        k(f"v_lshlrev_b32 v{SC}, 16, v{sr}")
        k(f"v_and_b32 v{SC+1}, 0xffff0000, v{sr}")
        k(f"v_lshlrev_b32 v{SC+2}, 16, v{sr+1}")
        k(f"v_and_b32 v{SC+3}, 0xffff0000, v{sr+1}")
        k(f"v_lshlrev_b32 v{SC+4}, 16, v{sr+2}")
        k(f"v_and_b32 v{SC+5}, 0xffff0000, v{sr+2}")
        k(f"v_lshlrev_b32 v{SC+6}, 16, v{sr+3}")
        k(f"v_and_b32 v{SC+7}, 0xffff0000, v{sr+3}")
        for s in next_step_scalars(): k(s)
        for i in range(4): k(f"v_mul_f32 v{SC+4+i}, -v{SC+4+i}, v{SC+i}")
        k("s_waitcnt lgkmcnt(0)")
        mi = 0
        for j in range(8):
            r = RAW + slot * 32 + j * 4
            t = TMP + (j & 1) * 4; p = PK + (j & 1) * 2
            for i in range(4): k(f"v_cvt_f32_i32 v{t+i}, v{r+i}")
            k(ldA(slot, j))
            k(mfma(mi)); mi += 1
            for i in range(4): k(f"v_fma_f32 v{t+i}, v{t+i}, v{SC+i}, v{SC+4+i}")
            if j & 1: k(mfma(mi)); mi += 1
            k(f"v_cvt_pk_bf16_f32 v{p}, v{t}, v{t+1}")
            k(f"v_cvt_pk_bf16_f32 v{p+1}, v{t+2}, v{t+3}")
            k(f"ds_write_b64 v{VAW + (j&1)}, v[{p}:{p+1}] offset:{j*512}")
        assert mi == 12
        k(f"v_add_u32 v{VBC}, s61, v{VBR}")
        k("s_add_u32 s61, s61, 6144")
        k("s_cmp_eq_u32 s61, 24576")
        k("s_cselect_b32 s61, 0, s61")
        for rb in range(2):
            for ks in range(2):
                af = AF + (rb * 2 + ks) * 4
                k(f"ds_read_b128 v[{af}:{af+3}], v{VAR + rb*2 + ks}")
        for ks in range(2):
            for nb in range(3):
                for sec in range(2):
                    bf = BF + (ks * 3 + nb) * 4 + sec * 2
                    k(f"ds_read_b64_tr_b16 v[{bf}:{bf+1}], v{VBC} offset:{(16*ks + 4*sec)*192 + 64*nb}")
        for j in range(6):
            for s in ldB(j): k(s)
        for s in ldS(slot): k(s)
    k("s_add_u32 s64, s64, 1")
    k("s_cmp_lt_u32 s64, 7")
    k("s_cbranch_scc1 L_wv_loop")
    k("s_waitcnt lgkmcnt(0)")
    for i in range(12): k(mfma(i))
    stamp_mid(k, P, 0)
    k("v_lshlrev_b32 v30, 4, v0")
    k("v_add_u32 v31, s53, v30")
    k("s_waitcnt vmcnt(0)")
    k("s_nop 7")
    for g in range(1, 4):
        for nb in range(3):
            for hh in range(2):
                a = ((g >> 1) * 3 + nb) * 16 + (g & 1) * 8 + hh * 4
                k(f"ds_write_b128 v31, a[{a}:{a+3}] offset:{((g-1)*3 + nb)*2048 + hh*1024}")
    R0 = 32
    for nb in range(3):
        for i in range(8): k(f"v_accvgpr_read_b32 v{R0 + nb*8 + i}, a{nb*16 + i}")
    for g in range(1, 4):
        k(f"v_xor_b32 v{27+g}, {g << 15}, v31")
    k("s_waitcnt lgkmcnt(0)")
    k("s_barrier")
    R1 = 56
    for g in range(1, 4):
        for nb in range(3):
            for hh in range(2):
                r = R1 + (g - 1) * 24 + nb * 8 + hh * 4
                k(f"ds_read_b128 v[{r}:{r+3}], v{27+g} offset:{((g-1)*3 + nb)*2048 + hh*1024}")
    for g in range(1, 4):
        k(f"s_waitcnt lgkmcnt({(3-g)*6})")
        for i in range(24): k(f"v_add_f32 v{R0+i}, v{R0+i}, v{R1 + (g-1)*24 + i}")
    for nb in range(3):
        t = 128 + nb * 4
        for i in range(4): k(f"v_cvt_pk_bf16_f32 v{t+i}, v{R0 + nb*8 + 2*i}, v{R0 + nb*8 + 2*i + 1}")
        k(f"buffer_store_dwordx4 v[{t}:{t+3}], v{VO+nb}, s[44:47], 0 offen {stf}")
    stamp_mid(k, P, 1)
    stamp_end(k, P, 0, 44, 140, 3)
    k("s_endpgm")
    k.label("L_k1_xr")
    k("s_sub_u32 s6, s4, 6")
    k("s_lshl_b32 s6, s6, 3")
    k("s_lshr_b32 s7, s5, 2")
    k("s_add_u32 s6, s6, s7")
    k("s_and_b32 s7, s5, 3")
    VX = 2
    VU = 6
    VXR = 11
    VUR = 15
    VXC = 16; VUC = 20
    VO2 = 21
    FR = 32
    STG = 36864
    k("v_lshrrev_b32 v28, 3, v0")
    k("v_and_b32 v29, 7, v0")
    k("v_lshrrev_b32 v30, 4, v0")
    k("v_xor_b32 v29, v29, v30")
    k("v_mul_u32_u24 v28, 1280, v28")
    k("v_lshl_add_u32 v28, v29, 4, v28")
    k("s_lshl_b32 s51, s6, 2")
    k("s_add_u32 s51, s51, s3")
    k(f"s_mul_i32 s52, s51, {32*1280}")
    k(f"v_add_u32 v{VX}, s52, v28")
    k(f"v_xor_b32 v{VX+1}, 64, v{VX}")
    k(f"v_add_u32 v{VX+1}, {8*1280}, v{VX+1}")
    k(f"v_add_u32 v{VX+2}, {16*1280}, v{VX}")
    k(f"v_add_u32 v{VX+3}, {16*1280}, v{VX+1}")
    k("s_mul_i32 s52, s3, 320")
    k(f"s_mov_b32 s53, {magic(20)}")
    k("s_mul_i32 s54, s7, 320")
    for j in range(5):
        k(f"v_add_u32 v28, s52, v0")
        if j: k(f"v_add_u32 v28, {64*j}, v28")
        k("v_mul_hi_u32 v29, v28, s53")
        k("v_mul_u32_u24 v30, 20, v29")
        k("v_sub_u32 v28, v28, v30")
        k("v_mul_u32_u24 v29, 1280, v29")
        k("v_lshl_add_u32 v28, v28, 4, v29")
        k(f"v_add_u32 v{VU+j}, s54, v28")
    k("s_mul_i32 s55, s3, 5120")
    k("s_lshl_b32 s56, s3, 12")
    k("s_add_u32 s56, s56, 20480")
    k("s_waitcnt lgkmcnt(0)")
    srd(k, 28, 8, 2048 * 640 * 2)
    srd(k, 32, 16, 640 * 640 * 2)
    srd(k, 44, 24, WS_BYTES)
    def xr_loads(t):
        out = []
        st = (t % 4) * STG
        out.append(f"s_mov_b32 s57, {t*128}")
        out.append(f"s_mov_b32 s58, {t*64*1280}")
        for j in range(5):
            out.append([f"s_add_u32 m0, s55, {st + j*1024}", "s_nop 0", f"buffer_load_dwordx4 v{VU+j}, s[32:35], s58 offen {uf} lds"])
        for j in range(4):
            out.append([f"s_add_u32 m0, s56, {st + j*1024}", "s_nop 0", f"buffer_load_dwordx4 v{VX+j}, s[28:31], s57 offen {xf} lds"])
        return out
    def emit(x):
        if isinstance(x, list):
            for s in x: k(s)
        else: k(x)
    for t in range(3):
        for x in xr_loads(t): emit(x)
    k("v_and_b32 v28, 31, v0")
    k("v_bfe_u32 v29, v0, 1, 3")
    k("v_lshrrev_b32 v30, 5, v0")
    k("v_xor_b32 v29, v29, v30")
    k("v_lshlrev_b32 v29, 4, v29")
    k("v_lshl_add_u32 v28, v28, 7, v29")
    k(f"v_add_u32 v{VXR}, s56, v28")
    for ks in range(1, 4): k(f"v_xor_b32 v{VXR+ks}, {ks*32}, v{VXR}")
    k("v_bfe_u32 v29, v0, 2, 2")
    k("v_lshl_add_u32 v28, v30, 3, v29")
    k("v_mul_u32_u24 v28, 320, v28")
    k("v_bfe_u32 v29, v0, 4, 1")
    k("v_lshl_add_u32 v28, v29, 5, v28")
    k("v_and_b32 v29, 3, v0")
    k(f"v_lshl_add_u32 v{VUR}, v29, 3, v28")
    k("v_bfe_u32 v28, v0, 4, 1")
    k("v_mul_u32_u24 v28, 20480, v28")
    k("v_lshl_add_u32 v28, v30, 8, v28")
    k("v_and_b32 v29, 15, v0")
    k("v_lshl_add_u32 v28, v29, 4, v28")
    k("s_mul_i32 s52, s51, 40960")
    k("s_mul_i32 s53, s7, 5120")
    k("s_add_u32 s52, s52, s53")
    if XRF_OFF: k(f"s_add_u32 s52, s52, {XRF_OFF}")
    k(f"v_add_u32 v{VO2}, s52, v28")
    k(f"v_add_u32 v{VO2+1}, 4096, v{VO2}")
    for i in range(80): k(f"v_accvgpr_write_b32 a{i}, 0")
    def xr_reads(ks, buf):
        out = []
        f = FR + buf * 24
        out.append(f"ds_read_b128 v[{f}:{f+3}], v{VXC+ks}")
        for eb in range(5):
            for sec in range(2):
                r = f + 4 + eb * 4 + sec * 2
                out.append(f"ds_read_b64_tr_b16 v[{r}:{r+1}], v{VUC} offset:{(16*ks + 4*sec)*320 + 64*eb}")
        return out
    for t in range(10):
        rem = min(2, 9 - t)
        k(f"s_waitcnt vmcnt({rem*9})")
        k("s_barrier")
        st = (t % 4) * STG
        for ks in range(4): k(f"v_add_u32 v{VXC+ks}, {st}, v{VXR+ks}")
        k(f"v_add_u32 v{VUC}, {st}, v{VUR}")
        for s in xr_reads(0, 0): k(s)
        fill = xr_loads(t + 3) if t + 3 < 10 else []
        for ks in range(4):
            buf = ks & 1
            if ks < 3:
                for s in xr_reads(ks + 1, buf ^ 1): k(s)
                k("s_waitcnt lgkmcnt(11)")
            else:
                k("s_waitcnt lgkmcnt(0)")
            f = FR + buf * 24
            for eb in range(5):
                k(f"v_mfma_f32_32x32x16_bf16 a[{eb*16}:{eb*16+15}], v[{f+4+eb*4}:{f+4+eb*4+3}], v[{f}:{f+3}], a[{eb*16}:{eb*16+15}]")
                if fill: emit(fill.pop(0))
        while fill: emit(fill.pop(0))
    stamp_mid(k, P, 0)
    k("s_nop 7"); k("s_nop 7")
    for eb in range(5):
        for hf in range(2):
            t = 80 + (eb * 2 + hf) % 4 * 12
            for i in range(8): k(f"v_accvgpr_read_b32 v{t+4+i}, a{eb*16 + hf*8 + i}")
            for i in range(4): k(f"v_cvt_pk_bf16_f32 v{t+i}, v{t+4+2*i}, v{t+5+2*i}")
            vo, off = (VO2, eb * 1024 + hf * 512) if eb < 4 else (VO2 + 1, hf * 512)
            k(f"buffer_store_dwordx4 v[{t}:{t+3}], v{vo}, s[44:47], 0 offen offset:{off} {stf}")
    stamp_mid(k, P, 1)
    stamp_end(k, P, 0, 44, 140, 3)
    k.label("L_k1_end")
    k("s_endpgm")
    return name, k.text(), desc(name, 164 + 96, 102, 164), (256, 256, 147456)

def gen(P):
    ks = [gen_k1(P), gen_k2(P)]
    src = "; QuIP weight-only int4 layer: y = (x@U) @ (dequant(qw)@V)   (generated by dev/gen.py)\n"
    for name, _, _, (g, b, l) in ks:
        src += f"; @launch kernel={name} grid=({g},1,1) block=({b},1,1) lds={l}\n"
    src += HEADER
    for _, t, _, _ in ks: src += t
    src += '.section .rodata,"a"\n'
    for _, _, d, _ in ks: src += d
    return src

if __name__ == "__main__":
    import json
    P = json.loads(sys.argv[2]) if len(sys.argv) > 2 else {}
    open(sys.argv[1], "w").write(gen(P))

def is_wv(b, P):
    return (b & 7) < 6
```

```python
import sys
from asmlib import *

XRF_OFF = 0
WVF_OFF = 0x300000
WS_USED = 0x600000
STAMP_OFF = 0x800000
WS_BYTES = 0x1000000

def magic(d):
    return hex((1 << 32) // d + 1)

class VM:
    def __init__(self): self.q = []
    def issue(self, tag): self.q.append(tag)
    def wait_for(self, pred):
        last = -1
        for i, t in enumerate(self.q):
            if pred(t): last = i
        return len(self.q) - 1 - last

def stamp_begin(k, P):
    if not P.get("stamp"): return
    k("s_memtime s[90:91]")
    k("s_memrealtime s[92:93]")

def stamp_mid(k, P, idx):
    if not P.get("stamp"): return
    k("s_memtime s[94:95]")
    k("s_waitcnt lgkmcnt(0)")
    k(f"s_sub_u32 s{96+idx}, s94, s90")

def stamp_end(k, P, kid, wssrd, vtmp, wavereg):
    if not P.get("stamp"): return
    k("s_waitcnt vmcnt(0)")
    k("s_memtime s[94:95]")
    k("s_memrealtime s[88:89]")
    k("s_waitcnt lgkmcnt(0)")
    k("s_sub_u32 s94, s94, s90")
    k("s_getreg_b32 s95, hwreg(HW_REG_XCC_ID)")
    k("s_add_u32 s95, s95, 1")
    for i, s in enumerate([94, 92, 88, 95, 96, 97, 98, 99]):
        k(f"v_mov_b32 v{vtmp+i}, s{s}")
    k(f"s_lshl_b32 s94, s2, 2")
    k(f"s_add_u32 s94, s94, s{wavereg}")
    k("s_lshl_b32 s94, s94, 5")
    k(f"s_add_u32 s94, s94, {STAMP_OFF + kid * 0x10000}")
    k(f"v_mov_b32 v{vtmp+8}, s94")
    k("s_mov_b64 exec, 1")
    k(f"buffer_store_dwordx4 v[{vtmp}:{vtmp+3}], v{vtmp+8}, s[{wssrd}:{wssrd+3}], 0 offen")
    k(f"buffer_store_dwordx4 v[{vtmp+4}:{vtmp+7}], v{vtmp+8}, s[{wssrd}:{wssrd+3}], 0 offen offset:16")

def gen_k2(P):
    name = "quip_s2_kernel"
    k = K(name)
    D = P.get("k2_depth", 4)
    ldf = P.get("k2_ldflags", "")
    stf = P.get("k2_stflags", "")
    k("s_cmp_ge_u32 s2, 256")
    k("s_cbranch_scc1 L_k2_end")
    k("s_load_dwordx2 s[4:5], s[0:1], 48")
    k("s_load_dwordx2 s[6:7], s[0:1], 64")
    stamp_begin(k, P)
    k("v_lshrrev_b32 v1, 6, v0")
    k("v_and_b32 v0, 63, v0")
    k("v_readfirstlane_b32 s3, v1")
    k("s_and_b32 s8, s2, 7")
    k("s_lshr_b32 s9, s2, 3")
    k("s_lshr_b32 s10, s8, 1")
    k("s_lshl_b32 s10, s10, 2")
    k("s_and_b32 s11, s9, 3")
    k("s_add_u32 s10, s10, s11")
    k("s_and_b32 s11, s8, 1")
    k("s_lshl_b32 s11, s11, 3")
    k("s_lshr_b32 s9, s9, 2")
    k("s_add_u32 s11, s11, s9")
    k("v_lshlrev_b32 v2, 4, v0")
    k("s_mul_i32 s12, s11, 143360")
    k(f"s_add_u32 s12, s12, {WVF_OFF}")
    k("v_add_u32 v3, s12, v2")
    k("s_lshl_b32 s13, s10, 2")
    k("s_add_u32 s13, s13, s3")
    k("s_mul_i32 s14, s13, 40960")
    if XRF_OFF: k(f"s_add_u32 s14, s14, {XRF_OFF}")
    k("v_add_u32 v4, s14, v2")
    k("v_add_u32 v5, 20480, v4")
    for i in range(1, 5): k(f"s_mov_b32 s{20+i}, {i*4096}")
    k("s_lshl_b32 s15, s3, 10")
    k("s_waitcnt lgkmcnt(0)")
    srd(k, 16, 6, WS_BYTES)
    srd(k, 28, 4, 2048 * 1728 * 2)
    vm = VM()
    ACC = 8
    WF = 64
    def xreg(u, kk): return (kk * 2 + u) * 4
    wi = [0]
    def issue_w_upto(n):
        out = []
        while wi[0] < min(n, 35):
            i = wi[0]
            out.append([f"s_add_u32 m0, s15, {i*4096}", "s_nop 0",
                        f"buffer_load_dwordx4 v3, s[16:19], m0 offen {ldf} lds", ("W", i)])
            wi[0] += 1
        return out
    def nW(kk): return (7 * kk + 6) // 4 + 1
    def loads_for(kk):
        out = []
        if kk >= 20: return out
        out += issue_w_upto(nW(kk))
        for u in range(2):
            so = "0" if kk < 4 else f"s{20 + kk//4}"
            r = xreg(u, kk)
            out.append([f"buffer_load_dwordx4 a[{r}:{r+3}], v{4+u}, s[16:19], {so} offen offset:{(kk%4)*1024} {ldf}", ("X", kk)])
        return out
    def emit_load(ld):
        for s in ld[:-1]: k(s)
        vm.issue(ld[-1])
    for kk in range(D):
        for ld in loads_for(kk): emit_load(ld)
    for i in range(56): k(f"v_mov_b32 v{ACC+i}, 0")
    k("v_and_b32 v6, 15, v0")
    k("s_lshl_b32 s14, s13, 5")
    k("v_add_u32 v6, s14, v6")
    k("v_mul_u32_u24 v6, 3456, v6")
    k("v_lshrrev_b32 v7, 4, v0")
    k("s_mul_i32 s14, s11, 112")
    k("v_lshlrev_b32 v124, 3, v7")
    k("v_add_u32 v124, s14, v124")
    k("v_mov_b32 v126, 0x7fffffff")
    for p in range(3):
        k(f"v_add_u32 v125, {32*p}, v124")
        k("v_cmp_gt_u32 vcc, 1728, v125")
        k(f"v_lshl_add_u32 v{120+p}, v125, 1, v6")
        k("s_nop 0")
        k(f"v_cndmask_b32 v{120+p}, v126, v{120+p}, vcc")
    k("v_lshlrev_b32 v124, 2, v7")
    k("v_add_u32 v124, s14, v124")
    k("v_add_u32 v125, 96, v124")
    k("v_cmp_gt_u32 vcc, 1728, v125")
    k("v_lshl_add_u32 v123, v125, 1, v6")
    k("s_nop 0")
    k("v_cndmask_b32 v123, v126, v123, vcc")
    k(f"s_mov_b32 s26, {16*3456}")
    k(f"v_add_u32 v6, {9*7168}, v2")
    k(f"v_add_u32 v7, {18*7168}, v2")
    def wread(kk, b):
        base, off = (2, kk) if kk < 9 else ((6, kk - 9) if kk < 18 else (7, kk - 18))
        r = WF + (kk & 1) * 28 + b * 4
        return f"ds_read_b128 v[{r}:{r+3}], v{base} offset:{off*7168 + b*1024}"
    def sync_for(kk):
        n = vm.wait_for(lambda t: (t[0] == "W" and t[1] < nW(kk)) or (t[0] == "X" and t[1] <= kk))
        k(f"s_waitcnt vmcnt({n})")
        k("s_barrier")
    sync_for(0)
    stamp_mid(k, P, 0)
    for b in range(7): k(wread(0, b))
    for kk in range(20):
        fill = []
        if kk + 1 < 20:
            sync_for(kk + 1)
            fill += [("ds", wread(kk + 1, b)) for b in range(7)]
        nds_new = len(fill)
        lds = loads_for(kk + D)
        fill += [("ld", x) for x in lds]
        issued_new = 0
        for b in range(7):
            for u in range(2):
                if u == 0:
                    k(f"s_waitcnt lgkmcnt({min(15, 6 - b + issued_new)})")
                a = ACC + (u * 7 + b) * 4
                w = WF + (kk & 1) * 28 + b * 4
                x = xreg(u, kk)
                k(f"v_mfma_f32_16x16x32_bf16 v[{a}:{a+3}], v[{w}:{w+3}], a[{x}:{x+3}], v[{a}:{a+3}]")
                if fill:
                    t, f = fill.pop(0)
                    if t == "ds": k(f); issued_new += 1
                    else: emit_load(f)
        while fill:
            t, f = fill.pop(0)
            if t == "ds": k(f)
            else: emit_load(f)
    stamp_mid(k, P, 1)
    k("s_nop 7")
    T0 = 64
    for u in range(2):
        so = "0" if u == 0 else "s26"
        for p in range(3):
            a0 = ACC + (u * 7 + 2 * p) * 4; a1 = a0 + 4
            t = T0 + (u * 4 + p) * 4
            k(f"v_cvt_pk_bf16_f32 v{t}, v{a0}, v{a0+1}")
            k(f"v_cvt_pk_bf16_f32 v{t+1}, v{a0+2}, v{a0+3}")
            k(f"v_cvt_pk_bf16_f32 v{t+2}, v{a1}, v{a1+1}")
            k(f"v_cvt_pk_bf16_f32 v{t+3}, v{a1+2}, v{a1+3}")
            k(f"buffer_store_dwordx4 v[{t}:{t+3}], v{120+p}, s[28:31], {so} offen {stf}")
        a0 = ACC + (u * 7 + 6) * 4
        t = T0 + (u * 4 + 3) * 4
        k(f"v_cvt_pk_bf16_f32 v{t}, v{a0}, v{a0+1}")
        k(f"v_cvt_pk_bf16_f32 v{t+1}, v{a0+2}, v{a0+3}")
        k(f"buffer_store_dwordx2 v[{t}:{t+1}], v123, s[28:31], {so} offen {stf}")
    stamp_mid(k, P, 2)
    stamp_end(k, P, 1, 16, 100, 3)
    k.label("L_k2_end")
    k("s_endpgm")
    return name, k.text(), desc(name, 128 + 160, 102, 128), (256, 256, 143360)

def gen_k1(P):
    name = "quip_s1_kernel"
    k = K(name)
    qf = P.get("q_flags", ""); vf = P.get("v_flags", ""); xf = P.get("x_flags", ""); uf = P.get("u_flags", "")
    stf = P.get("k1_stflags", "")
    rotmul = P.get("rot", 0)
    k("s_cmp_ge_u32 s2, 256")
    k("s_cbranch_scc1 L_k1_end")
    k("s_load_dwordx16 s[8:23], s[0:1], 0")
    k("s_load_dwordx2 s[24:25], s[0:1], 64")
    stamp_begin(k, P)
    k("v_lshrrev_b32 v1, 6, v0")
    k("v_and_b32 v0, 63, v0")
    k("v_readfirstlane_b32 s3, v1")
    k("s_and_b32 s4, s2, 7")
    k("s_lshr_b32 s5, s2, 3")
    k("s_cmp_ge_u32 s4, 6")
    k("s_cbranch_scc1 L_k1_xr")
    k("s_cmp_ge_u32 s5, 30")
    k("s_cbranch_scc1 " + ("L_k1_idle" if P.get("stamp") else "L_k1_end"))
    k(f"s_mul_hi_u32 s6, s5, {magic(5)}")
    k("s_mul_i32 s7, s6, 5")
    k("s_sub_u32 s7, s5, s7")
    k("s_add_u32 s50, s6, s7")
    k("s_cmp_ge_u32 s50, 5")
    k("s_cselect_b32 s51, 5, 0")
    k("s_sub_u32 s50, s50, s51")
    k(f"s_mul_i32 s50, s50, {rotmul}")
    k("s_lshl_b32 s50, s50, 2")
    k("s_add_u32 s50, s50, s3")
    k("s_and_b32 s51, s4, 1")
    k("s_mul_i32 s51, s51, 5")
    k("s_add_u32 s7, s7, s51")
    k("s_lshr_b32 s51, s4, 1")
    k("s_mul_i32 s51, s51, 6")
    k("s_add_u32 s6, s6, s51")
    VA = 2
    VB = 10
    VS = 16
    VAW = 17
    VAR = 19
    VBR = 23
    VBC = 24
    VO = 25
    RAW = 32
    SRAW = 96
    SC = 104
    TMP = 112
    PK = 120
    AF = 124
    BF = 140
    NV = 164
    k("v_lshrrev_b32 v28, 3, v0")
    k("v_and_b32 v29, 7, v0")
    k("s_mul_i32 s51, s7, %d" % (64 * 6912))
    k("v_mul_u32_u24 v30, 6912, v28")
    k("v_lshl_add_u32 v30, v29, 4, v30")
    k(f"v_add_u32 v{VA}, s51, v30")
    for j in range(1, 8): k(f"v_add_u32 v{VA+j}, {j*8*6912}, v{VA}")
    k("s_mul_i32 s51, s6, 192")
    k(f"s_mov_b32 s52, {magic(12)}")
    for j in range(6):
        k(f"v_add_u32 v30, {64*j}, v0")
        k("v_mul_hi_u32 v31, v30, s52")
        k("v_mul_u32_u24 v1, 12, v31")
        k("v_sub_u32 v30, v30, v1")
        k("v_mul_u32_u24 v31, 3456, v31")
        k("v_lshl_add_u32 v30, v30, 4, v31")
        k(f"v_add_u32 v{VB+j}, s51, v30")
    k("s_lshr_b32 s51, s7, 1")
    k("s_mul_i32 s51, s51, 3456")
    k("v_lshlrev_b32 v30, 3, v29")
    k(f"v_add_u32 v{VS}, s51, v30")
    k("s_lshl_b32 s53, s3, 15")
    k("s_waitcnt lgkmcnt(0)")
    srd(k, 28, 10, 640 * 1728 * 4)
    srd(k, 32, 18, 1728 * 1728 * 2)
    srd(k, 36, 12, 5 * 1728 * 2)
    srd(k, 40, 14, 5 * 1728 * 2)
    srd(k, 44, 24, WS_BYTES)
    k("s_mov_b32 s54, 0")
    k("s_mov_b32 s55, 0")
    def next_step_scalars():
        return [
            "s_lshl_b32 s56, s50, 7",
            "s_mul_i32 s57, s50, 110592",
            "s_lshl_b32 s58, s50, 6",
            "s_cmp_lt_u32 s50, 54",
            "s_cselect_b32 s60, s54, 14",
            "s_cmp_lt_u32 s60, 14",
            f"s_cselect_b32 s30, {640*1728*4}, 0",
            f"s_cselect_b32 s34, {1728*1728*2}, 0",
            f"s_cselect_b32 s38, {5*1728*2}, 0",
            f"s_cselect_b32 s42, {5*1728*2}, 0",
            "s_add_u32 s59, s53, s55",
            "s_add_u32 s55, s55, 6144",
            "s_cmp_eq_u32 s55, 24576",
            "s_cselect_b32 s55, 0, s55",
            "s_add_u32 s54, s54, 1",
            "s_add_u32 s50, s50, 4",
            "s_cmp_ge_u32 s50, 56",
            "s_cselect_b32 s60, 56, 0",
            "s_sub_u32 s50, s50, s60",
        ]
    def ldA(slot, j):
        r = RAW + slot * 32 + j * 4
        return f"buffer_load_dwordx4 v[{r}:{r+3}], v{VA+j}, s[28:31], s56 offen {qf}"
    def ldB(j):
        return [f"s_add_u32 m0, s59, {j*1024}", "s_nop 0", f"buffer_load_dwordx4 v{VB+j}, s[32:35], s57 offen {vf} lds"]
    def ldS(slot):
        r = SRAW + slot * 4
        return [f"buffer_load_dwordx2 v[{r}:{r+1}], v{VS}, s[36:39], s58 offen",
                f"buffer_load_dwordx2 v[{r+2}:{r+3}], v{VS}, s[40:43], s58 offen"]
    for slot in range(2):
        for s in next_step_scalars(): k(s)
        for j in range(8): k(ldA(slot, j))
        for j in range(6):
            for s in ldB(j): k(s)
        for s in ldS(slot): k(s)
    k("v_lshrrev_b32 v30, 1, v29")
    k("v_lshrrev_b32 v31, 2, v28")
    k("v_xor_b32 v30, v30, v31")
    k("v_lshlrev_b32 v30, 4, v30")
    k("v_lshl_add_u32 v30, v28, 6, v30")
    k("v_and_b32 v31, 1, v29")
    k("v_lshl_add_u32 v30, v31, 3, v30")
    k("s_add_u32 s51, s53, 24576")
    k(f"v_add_u32 v{VAW}, s51, v30")
    k(f"v_xor_b32 v{VAW+1}, 32, v{VAW}")
    k("v_and_b32 v30, 31, v0")
    k("s_lshl_b32 s52, s3, 4")
    k("v_xor_b32 v30, s52, v30")
    k("v_lshrrev_b32 v31, 5, v0")
    k("v_bfe_u32 v1, v0, 2, 2")
    k("v_xor_b32 v31, v31, v1")
    k("v_lshlrev_b32 v31, 4, v31")
    k("v_lshl_add_u32 v30, v30, 6, v31")
    k(f"v_add_u32 v{VAR}, s51, v30")
    k(f"v_xor_b32 v{VAR+1}, 32, v{VAR}")
    k(f"v_xor_b32 v{VAR+2}, 0x800, v{VAR}")
    k(f"v_xor_b32 v{VAR+3}, 32, v{VAR+2}")
    k("v_lshrrev_b32 v30, 5, v0")
    k("v_lshl_add_u32 v30, v30, 3, v1")
    k("v_mul_u32_u24 v30, 192, v30")
    k("v_bfe_u32 v31, v0, 4, 1")
    k("v_lshl_add_u32 v30, v31, 5, v30")
    k("v_and_b32 v31, 3, v0")
    k("v_lshl_add_u32 v30, v31, 3, v30")
    k(f"v_add_u32 v{VBR}, s53, v30")
    k("s_mov_b32 s61, 0")
    k("s_mul_i32 s51, s6, 96")
    k(f"s_mov_b32 s52, {magic(112)}")
    k("s_lshl_b32 s62, s7, 1")
    k("s_lshr_b32 s63, s3, 1")
    k("s_add_u32 s62, s62, s63")
    k("s_mul_i32 s62, s62, 7168")
    k("s_and_b32 s63, s3, 1")
    k("s_lshl_b32 s63, s63, 9")
    k("s_add_u32 s62, s62, s63")
    k(f"s_add_u32 s62, s62, {WVF_OFF}")
    k("s_mov_b32 s63, 143360")
    for nb in range(3):
        T = TMP
        k(f"v_and_b32 v{T}, 31, v0")
        k(f"v_add_u32 v{T}, s51, v{T}")
        if nb: k(f"v_add_u32 v{T}, {32*nb}, v{T}")
        k(f"v_mul_hi_u32 v{T+1}, v{T}, s52")
        k(f"v_mul_u32_u24 v{T+2}, 112, v{T+1}")
        k(f"v_sub_u32 v{T}, v{T}, v{T+2}")
        k(f"v_mul_lo_u32 v{T+1}, v{T+1}, s63")
        k(f"v_lshrrev_b32 v{T+2}, 5, v{T}")
        k(f"v_bfe_u32 v{T+3}, v{T}, 2, 1")
        k(f"v_lshl_add_u32 v{T+2}, v{T+2}, 1, v{T+3}")
        k(f"v_lshlrev_b32 v{T+2}, 10, v{T+2}")
        k(f"v_bfe_u32 v{T+3}, v{T}, 3, 2")
        k(f"v_lshl_add_u32 v{T+2}, v{T+3}, 6, v{T+2}")
        k(f"v_and_b32 v{T+3}, 3, v{T}")
        k(f"v_lshl_add_u32 v{T+2}, v{T+3}, 4, v{T+2}")
        k(f"v_lshlrev_b32 v{T+3}, 4, v{T}")
        k(f"v_add_u32 v{T+3}, {6*1024 - 96*16}, v{T+3}")
        k(f"v_cmp_gt_u32 vcc, 96, v{T}")
        k(f"v_lshrrev_b32 v{T}, 5, v0")
        k(f"v_lshl_add_u32 v{T+1}, v{T}, 8, v{T+1}")
        k(f"v_cndmask_b32 v{T+2}, v{T+3}, v{T+2}, vcc")
        k(f"v_add3_u32 v{VO+nb}, v{T+1}, v{T+2}, s62")
    for i in range(96): k(f"v_accvgpr_write_b32 a{i}, 0")
    for i in range(40): k(f"v_mov_b32 v{AF+i}, 0")
    def mfma(idx):
        ks, rb, nb = idx // 6, (idx // 3) % 2, idx % 3
        a = (rb * 3 + nb) * 16
        af = AF + (rb * 2 + ks) * 4; bf = BF + (ks * 3 + nb) * 4
        return f"v_mfma_f32_32x32x16_bf16 a[{a}:{a+15}], v[{af}:{af+3}], v[{bf}:{bf+3}], a[{a}:{a+15}]"
    k("s_mov_b32 s64, 0")
    k.label("L_wv_loop")
    for slot in range(2):
        k("s_waitcnt vmcnt(16)")
        sr = SRAW + slot * 4
        k(f"v_lshlrev_b32 v{SC}, 16, v{sr}")
        k(f"v_and_b32 v{SC+1}, 0xffff0000, v{sr}")
        k(f"v_lshlrev_b32 v{SC+2}, 16, v{sr+1}")
        k(f"v_and_b32 v{SC+3}, 0xffff0000, v{sr+1}")
        k(f"v_lshlrev_b32 v{SC+4}, 16, v{sr+2}")
        k(f"v_and_b32 v{SC+5}, 0xffff0000, v{sr+2}")
        k(f"v_lshlrev_b32 v{SC+6}, 16, v{sr+3}")
        k(f"v_and_b32 v{SC+7}, 0xffff0000, v{sr+3}")
        for s in next_step_scalars(): k(s)
        for i in range(4): k(f"v_mul_f32 v{SC+4+i}, -v{SC+4+i}, v{SC+i}")
        k("s_waitcnt lgkmcnt(0)")
        mi = 0
        for j in range(8):
            r = RAW + slot * 32 + j * 4
            t = TMP + (j & 1) * 4; p = PK + (j & 1) * 2
            for i in range(4): k(f"v_cvt_f32_i32 v{t+i}, v{r+i}")
            k(ldA(slot, j))
            k(mfma(mi)); mi += 1
            for i in range(4): k(f"v_fma_f32 v{t+i}, v{t+i}, v{SC+i}, v{SC+4+i}")
            if j & 1: k(mfma(mi)); mi += 1
            k(f"v_cvt_pk_bf16_f32 v{p}, v{t}, v{t+1}")
            k(f"v_cvt_pk_bf16_f32 v{p+1}, v{t+2}, v{t+3}")
            k(f"ds_write_b64 v{VAW + (j&1)}, v[{p}:{p+1}] offset:{j*512}")
        assert mi == 12
        k(f"v_add_u32 v{VBC}, s61, v{VBR}")
        k("s_add_u32 s61, s61, 6144")
        k("s_cmp_eq_u32 s61, 24576")
        k("s_cselect_b32 s61, 0, s61")
        for rb in range(2):
            for ks in range(2):
                af = AF + (rb * 2 + ks) * 4
                k(f"ds_read_b128 v[{af}:{af+3}], v{VAR + rb*2 + ks}")
        for ks in range(2):
            for nb in range(3):
                for sec in range(2):
                    bf = BF + (ks * 3 + nb) * 4 + sec * 2
                    k(f"ds_read_b64_tr_b16 v[{bf}:{bf+1}], v{VBC} offset:{(16*ks + 4*sec)*192 + 64*nb}")
        for j in range(6):
            for s in ldB(j): k(s)
        for s in ldS(slot): k(s)
    k("s_add_u32 s64, s64, 1")
    k("s_cmp_lt_u32 s64, 7")
    k("s_cbranch_scc1 L_wv_loop")
    k("s_waitcnt lgkmcnt(0)")
    for i in range(12): k(mfma(i))
    stamp_mid(k, P, 0)
    k("v_lshlrev_b32 v30, 4, v0")
    k("v_add_u32 v31, s53, v30")
    k("s_waitcnt vmcnt(0)")
    k("s_nop 7")
    for g in range(1, 4):
        for nb in range(3):
            for hh in range(2):
                a = ((g >> 1) * 3 + nb) * 16 + (g & 1) * 8 + hh * 4
                k(f"ds_write_b128 v31, a[{a}:{a+3}] offset:{((g-1)*3 + nb)*2048 + hh*1024}")
    R0 = 32
    for nb in range(3):
        for i in range(8): k(f"v_accvgpr_read_b32 v{R0 + nb*8 + i}, a{nb*16 + i}")
    for g in range(1, 4):
        k(f"v_xor_b32 v{27+g}, {g << 15}, v31")
    k("s_waitcnt lgkmcnt(0)")
    k("s_barrier")
    R1 = 56
    for g in range(1, 4):
        for nb in range(3):
            for hh in range(2):
                r = R1 + (g - 1) * 24 + nb * 8 + hh * 4
                k(f"ds_read_b128 v[{r}:{r+3}], v{27+g} offset:{((g-1)*3 + nb)*2048 + hh*1024}")
    for g in range(1, 4):
        k(f"s_waitcnt lgkmcnt({(3-g)*6})")
        for i in range(24): k(f"v_add_f32 v{R0+i}, v{R0+i}, v{R1 + (g-1)*24 + i}")
    for nb in range(3):
        t = 128 + nb * 4
        for i in range(4): k(f"v_cvt_pk_bf16_f32 v{t+i}, v{R0 + nb*8 + 2*i}, v{R0 + nb*8 + 2*i + 1}")
        k(f"buffer_store_dwordx4 v[{t}:{t+3}], v{VO+nb}, s[44:47], 0 offen {stf}")
    stamp_mid(k, P, 1)
    stamp_end(k, P, 0, 44, 140, 3)
    k("s_endpgm")
    k.label("L_k1_xr")
    k("s_sub_u32 s6, s4, 6")
    k("s_lshl_b32 s6, s6, 3")
    k("s_lshr_b32 s7, s5, 2")
    k("s_add_u32 s6, s6, s7")
    k("s_and_b32 s7, s5, 3")
    VX = 2
    VU = 6
    VXR = 11
    VUR = 15
    VXC = 16; VUC = 20
    VO2 = 21
    FR = 32
    STG = 36864
    k("v_lshrrev_b32 v28, 3, v0")
    k("v_and_b32 v29, 7, v0")
    k("v_lshrrev_b32 v30, 4, v0")
    k("v_xor_b32 v29, v29, v30")
    k("v_mul_u32_u24 v28, 1280, v28")
    k("v_lshl_add_u32 v28, v29, 4, v28")
    k("s_lshl_b32 s51, s6, 2")
    k("s_add_u32 s51, s51, s3")
    k(f"s_mul_i32 s52, s51, {32*1280}")
    k(f"v_add_u32 v{VX}, s52, v28")
    k(f"v_xor_b32 v{VX+1}, 64, v{VX}")
    k(f"v_add_u32 v{VX+1}, {8*1280}, v{VX+1}")
    k(f"v_add_u32 v{VX+2}, {16*1280}, v{VX}")
    k(f"v_add_u32 v{VX+3}, {16*1280}, v{VX+1}")
    k("s_mul_i32 s52, s3, 320")
    k(f"s_mov_b32 s53, {magic(20)}")
    k("s_mul_i32 s54, s7, 320")
    for j in range(5):
        k(f"v_add_u32 v28, s52, v0")
        if j: k(f"v_add_u32 v28, {64*j}, v28")
        k("v_mul_hi_u32 v29, v28, s53")
        k("v_mul_u32_u24 v30, 20, v29")
        k("v_sub_u32 v28, v28, v30")
        k("v_mul_u32_u24 v29, 1280, v29")
        k("v_lshl_add_u32 v28, v28, 4, v29")
        k(f"v_add_u32 v{VU+j}, s54, v28")
    k("s_mul_i32 s55, s3, 5120")
    k("s_lshl_b32 s56, s3, 12")
    k("s_add_u32 s56, s56, 20480")
    k("s_waitcnt lgkmcnt(0)")
    srd(k, 28, 8, 2048 * 640 * 2)
    srd(k, 32, 16, 640 * 640 * 2)
    srd(k, 44, 24, WS_BYTES)
    def xr_loads(t):
        out = []
        st = (t % 4) * STG
        out.append(f"s_mov_b32 s57, {t*128}")
        out.append(f"s_mov_b32 s58, {t*64*1280}")
        for j in range(5):
            out.append([f"s_add_u32 m0, s55, {st + j*1024}", "s_nop 0", f"buffer_load_dwordx4 v{VU+j}, s[32:35], s58 offen {uf} lds"])
        for j in range(4):
            out.append([f"s_add_u32 m0, s56, {st + j*1024}", "s_nop 0", f"buffer_load_dwordx4 v{VX+j}, s[28:31], s57 offen {xf} lds"])
        return out
    def emit(x):
        if isinstance(x, list):
            for s in x: k(s)
        else: k(x)
    for t in range(3):
        for x in xr_loads(t): emit(x)
    k("v_and_b32 v28, 31, v0")
    k("v_bfe_u32 v29, v0, 1, 3")
    k("v_lshrrev_b32 v30, 5, v0")
    k("v_xor_b32 v29, v29, v30")
    k("v_lshlrev_b32 v29, 4, v29")
    k("v_lshl_add_u32 v28, v28, 7, v29")
    k(f"v_add_u32 v{VXR}, s56, v28")
    for ks in range(1, 4): k(f"v_xor_b32 v{VXR+ks}, {ks*32}, v{VXR}")
    k("v_bfe_u32 v29, v0, 2, 2")
    k("v_lshl_add_u32 v28, v30, 3, v29")
    k("v_mul_u32_u24 v28, 320, v28")
    k("v_bfe_u32 v29, v0, 4, 1")
    k("v_lshl_add_u32 v28, v29, 5, v28")
    k("v_and_b32 v29, 3, v0")
    k(f"v_lshl_add_u32 v{VUR}, v29, 3, v28")
    k("v_bfe_u32 v28, v0, 4, 1")
    k("v_mul_u32_u24 v28, 20480, v28")
    k("v_lshl_add_u32 v28, v30, 8, v28")
    k("v_and_b32 v29, 15, v0")
    k("v_lshl_add_u32 v28, v29, 4, v28")
    k("s_mul_i32 s52, s51, 40960")
    k("s_mul_i32 s53, s7, 5120")
    k("s_add_u32 s52, s52, s53")
    if XRF_OFF: k(f"s_add_u32 s52, s52, {XRF_OFF}")
    k(f"v_add_u32 v{VO2}, s52, v28")
    k(f"v_add_u32 v{VO2+1}, 4096, v{VO2}")
    for i in range(80): k(f"v_accvgpr_write_b32 a{i}, 0")
    def xr_reads(ks, buf):
        out = []
        f = FR + buf * 24
        out.append(f"ds_read_b128 v[{f}:{f+3}], v{VXC+ks}")
        for eb in range(5):
            for sec in range(2):
                r = f + 4 + eb * 4 + sec * 2
                out.append(f"ds_read_b64_tr_b16 v[{r}:{r+1}], v{VUC} offset:{(16*ks + 4*sec)*320 + 64*eb}")
        return out
    for t in range(10):
        rem = min(2, 9 - t)
        k(f"s_waitcnt vmcnt({rem*9})")
        k("s_barrier")
        st = (t % 4) * STG
        for ks in range(4): k(f"v_add_u32 v{VXC+ks}, {st}, v{VXR+ks}")
        k(f"v_add_u32 v{VUC}, {st}, v{VUR}")
        for s in xr_reads(0, 0): k(s)
        fill = xr_loads(t + 3) if t + 3 < 10 else []
        for ks in range(4):
            buf = ks & 1
            if ks < 3:
                for s in xr_reads(ks + 1, buf ^ 1): k(s)
                k("s_waitcnt lgkmcnt(11)")
            else:
                k("s_waitcnt lgkmcnt(0)")
            f = FR + buf * 24
            for eb in range(5):
                k(f"v_mfma_f32_32x32x16_bf16 a[{eb*16}:{eb*16+15}], v[{f+4+eb*4}:{f+4+eb*4+3}], v[{f}:{f+3}], a[{eb*16}:{eb*16+15}]")
                if fill: emit(fill.pop(0))
        while fill: emit(fill.pop(0))
    stamp_mid(k, P, 0)
    k("s_nop 7"); k("s_nop 7")
    for eb in range(5):
        for hf in range(2):
            t = 80 + (eb * 2 + hf) % 4 * 12
            for i in range(8): k(f"v_accvgpr_read_b32 v{t+4+i}, a{eb*16 + hf*8 + i}")
            for i in range(4): k(f"v_cvt_pk_bf16_f32 v{t+i}, v{t+4+2*i}, v{t+5+2*i}")
            vo, off = (VO2, eb * 1024 + hf * 512) if eb < 4 else (VO2 + 1, hf * 512)
            k(f"buffer_store_dwordx4 v[{t}:{t+3}], v{vo}, s[44:47], 0 offen offset:{off} {stf}")
    stamp_mid(k, P, 1)
    stamp_end(k, P, 0, 44, 140, 3)
    k.label("L_k1_end")
    k("s_endpgm")
    if P.get("stamp"):
        k.label("L_k1_idle")
        k("s_waitcnt lgkmcnt(0)")
        srd(k, 44, 24, WS_BYTES)
        for i in range(4): k(f"s_mov_b32 s{96+i}, 0")
        stamp_end(k, P, 0, 44, 140, 3)
        k("s_endpgm")
    return name, k.text(), desc(name, 164 + 96, 102, 164), (256, 256, 147456)

def kernels(P):
    return [gen_k1(P), gen_k2(P)]

def gen(P):
    return assemble(kernels(P))

def assemble(ks):
    src = "; QuIP weight-only int4 layer: y = (x@U) @ (dequant(qw)@V)   (generated by dev/gen.py)\n"
    for name, _, _, (g, b, l) in ks:
        src += f"; @launch kernel={name} grid=({g},1,1) block=({b},1,1) lds={l}\n"
    src += HEADER
    for _, t, _, _ in ks: src += t
    src += '.section .rodata,"a"\n'
    for _, _, d, _ in ks: src += d
    return src

if __name__ == "__main__":
    import json
    P = json.loads(sys.argv[2]) if len(sys.argv) > 2 else {}
    open(sys.argv[1], "w").write(gen(P))

def is_wv(b, P):
    return ((b & 7) < 6) & ((b >> 3) < 30)
def is_xr(b, P):
    return (b & 7) >= 6
```

```python
import sys, json
from asmlib import *
import gen as G

def gen_probe(P, what, mult, nk=2):
    name = "probe_kernel"
    k = K(name)
    k("s_cmp_ge_u32 s2, 1")
    k("s_cbranch_scc1 L_pr_end")
    k("s_load_dwordx2 s[6:7], s[0:1], 64")
    k("s_memrealtime s[40:41]")
    k("s_waitcnt lgkmcnt(0)")
    srd(k, 16, 6, G.WS_BYTES)
    k("v_lshlrev_b32 v1, 5, v0")
    fk, ff = 0, 0
    if what.startswith("max:") or what.startswith("min:"):
        _, fk, ff = what.split(":"); fk = int(fk); ff = int(ff)
    ismin = what.startswith("min:")
    for kid in range(nk):
        k("v_mov_b32 v20, -1"); k("v_mov_b32 v21, 0"); k(f"v_mov_b32 v22, {-1 if ismin else 0}")
        for i in range(16):
            k(f"s_mov_b32 s30, {G.STAMP_OFF + kid*0x10000 + i*2048}")
            k(f"buffer_load_dwordx4 v[4:7], v1, s[16:19], s30 offen")
            k(f"buffer_load_dwordx4 v[8:11], v1, s[16:19], s30 offen offset:16")
            k("s_waitcnt vmcnt(0)")
            k("v_min_u32 v20, v20, v5")
            k("v_max_u32 v21, v21, v6")
            k(f"v_{'min' if ismin else 'max'}_u32 v22, v22, v{4+ff}")
        k(f"s_mov_b32 s{20+2*kid}, -1"); k(f"s_mov_b32 s{21+2*kid}, 0")
        if kid == fk: k(f"s_mov_b32 s24, {-1 if ismin else 0}")
        for l in range(64):
            k(f"v_readlane_b32 s31, v20, {l}")
            k(f"v_readlane_b32 s32, v21, {l}")
            k(f"v_readlane_b32 s33, v22, {l}")
            k("s_nop 1")
            k(f"s_min_u32 s{20+2*kid}, s{20+2*kid}, s31")
            k(f"s_max_u32 s{21+2*kid}, s{21+2*kid}, s32")
            if kid == fk: k(f"s_{'min' if ismin else 'max'}_u32 s24, s24, s33")
    clock = "s_memrealtime"
    if what == "k1span": k("s_sub_u32 s25, s21, s20")
    elif what == "gap": k("s_sub_u32 s25, s22, s21")
    elif what == "k2span": k("s_sub_u32 s25, s23, s22")
    elif what == "tail": k("s_sub_u32 s25, s40, s23")
    elif what == "none": k("s_mov_b32 s25, 0")
    else:
        k(f"s_mul_hi_u32 s25, s24, {G.magic(24)}")
    k(f"s_mul_i32 s25, s25, {mult}")
    k("s_min_u32 s25, s25, 100000")
    k("s_memrealtime s[42:43]")
    k("s_waitcnt lgkmcnt(0)")
    k.label("L_pr_spin")
    k("s_memrealtime s[44:45]")
    k("s_waitcnt lgkmcnt(0)")
    k("s_sub_u32 s46, s44, s42")
    k("s_cmp_lt_u32 s46, s25")
    k("s_cbranch_scc1 L_pr_spin")
    k.label("L_pr_end")
    k("s_endpgm")
    return name, k.text(), desc(name, 32, 64), (1, 64, 0)

def gen(P, what, mult=4):
    P = dict(P); P["stamp"] = 1
    ks = G.kernels(P) + [gen_probe(P, what, mult)]
    return G.assemble(ks)

if __name__ == "__main__":
    P = json.loads(sys.argv[1])
    for i, w in enumerate(sys.argv[2:]):
        open(f"p_{i}.s", "w").write(gen(P, w))
```

```python
import sys
from asmlib import *

XRF_OFF = 0
WVF_OFF = 0x300000
WS_USED = 0x600000
STAMP_OFF = 0x800000
WS_BYTES = 0x1000000

def magic(d):
    return hex((1 << 32) // d + 1)

class VM:
    def __init__(self): self.q = []
    def issue(self, tag): self.q.append(tag)
    def wait_for(self, pred):
        last = -1
        for i, t in enumerate(self.q):
            if pred(t): last = i
        return len(self.q) - 1 - last

def stamp_begin(k, P):
    if not P.get("stamp"): return
    k("s_memtime s[90:91]")
    k("s_memrealtime s[92:93]")
    for i in range(4): k(f"s_mov_b32 s{96+i}, 0")

def stamp_mid(k, P, idx):
    if not P.get("stamp"): return
    k("s_memtime s[94:95]")
    k("s_waitcnt lgkmcnt(0)")
    k(f"s_sub_u32 s{96+idx}, s94, s90")

def stamp_end(k, P, kid, wssrd, vtmp, wavereg):
    if not P.get("stamp"): return
    k("s_waitcnt vmcnt(0)")
    k("s_memtime s[94:95]")
    k("s_memrealtime s[88:89]")
    k("s_waitcnt lgkmcnt(0)")
    k("s_sub_u32 s94, s94, s90")
    k("s_getreg_b32 s95, hwreg(HW_REG_XCC_ID)")
    k("s_add_u32 s95, s95, 1")
    for i, s in enumerate([94, 92, 88, 95, 96, 97, 98, 99]):
        k(f"v_mov_b32 v{vtmp+i}, s{s}")
    k(f"s_lshl_b32 s94, s2, 2")
    k(f"s_add_u32 s94, s94, s{wavereg}")
    k("s_lshl_b32 s94, s94, 5")
    k(f"s_add_u32 s94, s94, {STAMP_OFF + kid * 0x10000}")
    k(f"v_mov_b32 v{vtmp+8}, s94")
    k("s_mov_b64 exec, 1")
    k(f"buffer_store_dwordx4 v[{vtmp}:{vtmp+3}], v{vtmp+8}, s[{wssrd}:{wssrd+3}], 0 offen")
    k(f"buffer_store_dwordx4 v[{vtmp+4}:{vtmp+7}], v{vtmp+8}, s[{wssrd}:{wssrd+3}], 0 offen offset:16")

def gen_k2(P):
    name = "quip_s2_kernel"
    k = K(name)
    D = P.get("k2_depth", 4)
    ldf = P.get("k2_ldflags", "")
    stf = P.get("k2_stflags", "")
    k("s_cmp_ge_u32 s2, 256")
    k("s_cbranch_scc1 L_k2_end")
    k("s_load_dwordx2 s[4:5], s[0:1], 48")
    k("s_load_dwordx2 s[6:7], s[0:1], 64")
    stamp_begin(k, P)
    k("v_lshrrev_b32 v1, 6, v0")
    k("v_and_b32 v0, 63, v0")
    k("v_readfirstlane_b32 s3, v1")
    k("s_and_b32 s8, s2, 7")
    k("s_lshr_b32 s9, s2, 3")
    k("s_lshr_b32 s10, s8, 1")
    k("s_lshl_b32 s10, s10, 2")
    k("s_and_b32 s11, s9, 3")
    k("s_add_u32 s10, s10, s11")
    k("s_and_b32 s11, s8, 1")
    k("s_lshl_b32 s11, s11, 3")
    k("s_lshr_b32 s9, s9, 2")
    k("s_add_u32 s11, s11, s9")
    k("v_lshlrev_b32 v2, 4, v0")
    k("s_mul_i32 s12, s11, 143360")
    k(f"s_add_u32 s12, s12, {WVF_OFF}")
    k("v_add_u32 v3, s12, v2")
    k("s_lshl_b32 s13, s10, 2")
    k("s_add_u32 s13, s13, s3")
    k("s_mul_i32 s14, s13, 40960")
    if XRF_OFF: k(f"s_add_u32 s14, s14, {XRF_OFF}")
    k("v_add_u32 v4, s14, v2")
    k("v_add_u32 v5, 20480, v4")
    for i in range(1, 5): k(f"s_mov_b32 s{20+i}, {i*4096}")
    k("s_lshl_b32 s15, s3, 10")
    k("s_waitcnt lgkmcnt(0)")
    srd(k, 16, 6, WS_BYTES)
    srd(k, 28, 4, 2048 * 1728 * 2)
    vm = VM()
    ACC = 8
    WF = 64
    def xreg(u, kk): return (kk * 2 + u) * 4
    wi = [0]
    def issue_w_upto(n):
        out = []
        while wi[0] < min(n, 35):
            i = wi[0]
            out.append([f"s_add_u32 m0, s15, {i*4096}", "s_nop 0",
                        f"buffer_load_dwordx4 v3, s[16:19], m0 offen {ldf} lds", ("W", i)])
            wi[0] += 1
        return out
    def nW(kk): return (7 * kk + 6) // 4 + 1
    def loads_for(kk):
        out = []
        if kk >= 20: return out
        out += issue_w_upto(nW(kk))
        for u in range(2):
            so = "0" if kk < 4 else f"s{20 + kk//4}"
            r = xreg(u, kk)
            out.append([f"buffer_load_dwordx4 a[{r}:{r+3}], v{4+u}, s[16:19], {so} offen offset:{(kk%4)*1024} {ldf}", ("X", kk)])
        return out
    def emit_load(ld):
        for s in ld[:-1]: k(s)
        vm.issue(ld[-1])
    for kk in range(D):
        for ld in loads_for(kk): emit_load(ld)
    for i in range(56): k(f"v_mov_b32 v{ACC+i}, 0")
    k("v_and_b32 v6, 15, v0")
    k("s_lshl_b32 s14, s13, 5")
    k("v_add_u32 v6, s14, v6")
    k("v_mul_u32_u24 v6, 3456, v6")
    k("v_lshrrev_b32 v7, 4, v0")
    k("s_mul_i32 s14, s11, 112")
    k("v_lshlrev_b32 v124, 3, v7")
    k("v_add_u32 v124, s14, v124")
    k("v_mov_b32 v126, 0x7fffffff")
    for p in range(3):
        k(f"v_add_u32 v125, {32*p}, v124")
        k("v_cmp_gt_u32 vcc, 1728, v125")
        k(f"v_lshl_add_u32 v{120+p}, v125, 1, v6")
        k("s_nop 0")
        k(f"v_cndmask_b32 v{120+p}, v126, v{120+p}, vcc")
    k("v_lshlrev_b32 v124, 2, v7")
    k("v_add_u32 v124, s14, v124")
    k("v_add_u32 v125, 96, v124")
    k("v_cmp_gt_u32 vcc, 1728, v125")
    k("v_lshl_add_u32 v123, v125, 1, v6")
    k("s_nop 0")
    k("v_cndmask_b32 v123, v126, v123, vcc")
    k(f"s_mov_b32 s26, {16*3456}")
    k(f"v_add_u32 v6, {9*7168}, v2")
    k(f"v_add_u32 v7, {18*7168}, v2")
    def wread(kk, b):
        base, off = (2, kk) if kk < 9 else ((6, kk - 9) if kk < 18 else (7, kk - 18))
        r = WF + (kk & 1) * 28 + b * 4
        return f"ds_read_b128 v[{r}:{r+3}], v{base} offset:{off*7168 + b*1024}"
    def sync_for(kk):
        n = vm.wait_for(lambda t: (t[0] == "W" and t[1] < nW(kk)) or (t[0] == "X" and t[1] <= kk))
        k(f"s_waitcnt vmcnt({n})")
        k("s_barrier")
    sync_for(0)
    stamp_mid(k, P, 0)
    for b in range(7): k(wread(0, b))
    for kk in range(20):
        fill = []
        if kk + 1 < 20:
            sync_for(kk + 1)
            fill += [("ds", wread(kk + 1, b)) for b in range(7)]
        nds_new = len(fill)
        lds = loads_for(kk + D)
        fill += [("ld", x) for x in lds]
        issued_new = 0
        for b in range(7):
            for u in range(2):
                if u == 0:
                    k(f"s_waitcnt lgkmcnt({min(15, 6 - b + issued_new)})")
                a = ACC + (u * 7 + b) * 4
                w = WF + (kk & 1) * 28 + b * 4
                x = xreg(u, kk)
                k(f"v_mfma_f32_16x16x32_bf16 v[{a}:{a+3}], v[{w}:{w+3}], a[{x}:{x+3}], v[{a}:{a+3}]")
                if fill:
                    t, f = fill.pop(0)
                    if t == "ds": k(f); issued_new += 1
                    else: emit_load(f)
        while fill:
            t, f = fill.pop(0)
            if t == "ds": k(f)
            else: emit_load(f)
    stamp_mid(k, P, 1)
    k("s_nop 7")
    T0 = 64
    for u in range(2):
        so = "0" if u == 0 else "s26"
        for p in range(3):
            a0 = ACC + (u * 7 + 2 * p) * 4; a1 = a0 + 4
            t = T0 + (u * 4 + p) * 4
            k(f"v_cvt_pk_bf16_f32 v{t}, v{a0}, v{a0+1}")
            k(f"v_cvt_pk_bf16_f32 v{t+1}, v{a0+2}, v{a0+3}")
            k(f"v_cvt_pk_bf16_f32 v{t+2}, v{a1}, v{a1+1}")
            k(f"v_cvt_pk_bf16_f32 v{t+3}, v{a1+2}, v{a1+3}")
            k(f"buffer_store_dwordx4 v[{t}:{t+3}], v{120+p}, s[28:31], {so} offen {stf}")
        a0 = ACC + (u * 7 + 6) * 4
        t = T0 + (u * 4 + 3) * 4
        k(f"v_cvt_pk_bf16_f32 v{t}, v{a0}, v{a0+1}")
        k(f"v_cvt_pk_bf16_f32 v{t+1}, v{a0+2}, v{a0+3}")
        k(f"buffer_store_dwordx2 v[{t}:{t+1}], v123, s[28:31], {so} offen {stf}")
    stamp_mid(k, P, 2)
    stamp_end(k, P, 1, 16, 100, 3)
    k.label("L_k2_end")
    k("s_endpgm")
    return name, k.text(), desc(name, 128 + 160, 102, 128), (256, 256, 143360)

def wv_orders(P):
    mode = P.get("order", "lock")
    out = []
    for c in range(5):
        if mode == "lock": o = list(range(14))
        elif mode == "rot": o = [(P.get("rot", 3) * c + i) % 14 for i in range(14)]
        elif mode == "seg":
            o = []
            for s0, n in ((0, 5), (5, 5), (10, 4)):
                o += [s0 + (c + j) % n for j in range(n)]
        elif mode == "stag":
            o0 = [(c + j) % 5 for j in range(1, 5)]
            o0.insert(c, 5 + c)
            o1 = [5 + j for j in range(5) if j != c]
            if c < 4: o1.insert(min(c + P.get("sh", 0), 4), 10 + c)
            o2 = [10 + j for j in range(4) if j != c]
            o = [c] + o0 + o1 + o2
        elif mode == "stag2":
            o0 = [(c + j) % 5 for j in range(1, 5)]
            o0.insert(min(c // 2, 4), 5 + c)
            o1 = [5 + j for j in range(5) if j != c]
            if c < 4: o1.insert(c // 2, 10 + c)
            o2 = [10 + j for j in range(4) if j != c]
            o = [c] + o0 + o1 + o2
        assert sorted(o) == list(range(14)), o
        out.append(o)
    return out

def wv_tables(P):
    tabs = []
    for o in wv_orders(P):
        v = 0
        for i, x in enumerate(o + [15, 15]): v |= x << (4 * i)
        tabs.append(v)
    return tabs

def gen_k1(P):
    name = "quip_s1_kernel"
    k = K(name)
    qf = P.get("q_flags", ""); vf = P.get("v_flags", ""); xf = P.get("x_flags", ""); uf = P.get("u_flags", "")
    stf = P.get("k1_stflags", "")
    rotmul = P.get("rot", 0)
    k("s_cmp_ge_u32 s2, 256")
    k("s_cbranch_scc1 L_k1_end")
    k("s_load_dwordx16 s[8:23], s[0:1], 0")
    k("s_load_dwordx2 s[24:25], s[0:1], 64")
    stamp_begin(k, P)
    k("v_lshrrev_b32 v1, 6, v0")
    k("v_and_b32 v0, 63, v0")
    k("v_readfirstlane_b32 s3, v1")
    k("s_and_b32 s4, s2, 7")
    k("s_lshr_b32 s5, s2, 3")
    k("s_cmp_ge_u32 s4, 6")
    k("s_cbranch_scc1 L_k1_xr")
    k("s_cmp_ge_u32 s5, 30")
    k("s_cbranch_scc1 " + ("L_k1_idle" if P.get("stamp") else "L_k1_end"))
    k(f"s_mul_hi_u32 s6, s5, {magic(5)}")
    k("s_mul_i32 s7, s6, 5")
    k("s_sub_u32 s7, s5, s7")
    k("s_add_u32 s50, s6, s7")
    k("s_cmp_ge_u32 s50, 5")
    k("s_cselect_b32 s51, 5, 0")
    k("s_sub_u32 s50, s50, s51")
    tabs = wv_tables(P)
    k(f"s_mov_b32 s66, {hex(tabs[0] & 0xffffffff)}")
    k(f"s_mov_b32 s67, {hex(tabs[0] >> 32)}")
    for c in range(1, 5):
        k(f"s_cmp_eq_u32 s50, {c}")
        k(f"s_cselect_b32 s66, {hex(tabs[c] & 0xffffffff)}, s66")
        k(f"s_cselect_b32 s67, {hex(tabs[c] >> 32)}, s67")
    k("s_and_b32 s51, s4, 1")
    k("s_mul_i32 s51, s51, 5")
    k("s_add_u32 s7, s7, s51")
    k("s_lshr_b32 s51, s4, 1")
    k("s_mul_i32 s51, s51, 6")
    k("s_add_u32 s6, s6, s51")
    VA = 2
    VB = 10
    VS = 16
    VAW = 17
    VAR = 19
    VBR = 23
    VBC = 24
    VO = 25
    RAW = 32
    SRAW = 96
    SC = 104
    TMP = 112
    PK = 120
    AF = 124
    BF = 140
    NV = 164
    k("v_lshrrev_b32 v28, 3, v0")
    k("v_and_b32 v29, 7, v0")
    k("s_mul_i32 s51, s7, %d" % (64 * 6912))
    k("v_mul_u32_u24 v30, 6912, v28")
    k("v_lshl_add_u32 v30, v29, 4, v30")
    k(f"v_add_u32 v{VA}, s51, v30")
    for j in range(1, 8): k(f"v_add_u32 v{VA+j}, {j*8*6912}, v{VA}")
    k("s_mul_i32 s51, s6, 192")
    k(f"s_mov_b32 s52, {magic(12)}")
    for j in range(6):
        k(f"v_add_u32 v30, {64*j}, v0")
        k("v_mul_hi_u32 v31, v30, s52")
        k("v_mul_u32_u24 v1, 12, v31")
        k("v_sub_u32 v30, v30, v1")
        k("v_mul_u32_u24 v31, 3456, v31")
        k("v_lshl_add_u32 v30, v30, 4, v31")
        k(f"v_add_u32 v{VB+j}, s51, v30")
    k("s_lshr_b32 s51, s7, 1")
    k("s_mul_i32 s51, s51, 3456")
    k("v_lshlrev_b32 v30, 3, v29")
    k(f"v_add_u32 v{VS}, s51, v30")
    k("s_lshl_b32 s53, s3, 15")
    k("s_waitcnt lgkmcnt(0)")
    srd(k, 28, 10, 640 * 1728 * 4)
    srd(k, 32, 18, 1728 * 1728 * 2)
    srd(k, 36, 12, 5 * 1728 * 2)
    srd(k, 40, 14, 5 * 1728 * 2)
    srd(k, 44, 24, WS_BYTES)
    k("s_mov_b32 s54, 0")
    k("s_mov_b32 s55, 0")
    def next_step_scalars():
        return [
            "s_and_b32 s50, s66, 15",
            "s_lshr_b64 s[66:67], s[66:67], 4",
            "s_lshl_b32 s50, s50, 2",
            "s_add_u32 s50, s50, s3",
            "s_lshl_b32 s56, s50, 7",
            "s_mul_i32 s57, s50, 110592",
            "s_lshl_b32 s58, s50, 6",
            "s_cmp_lt_u32 s50, %d" % (0 if P.get("wv_noload") else 54),
            f"s_cselect_b32 s30, {640*1728*4}, 0",
            f"s_cselect_b32 s34, {1728*1728*2}, 0",
            f"s_cselect_b32 s38, {5*1728*2}, 0",
            f"s_cselect_b32 s42, {5*1728*2}, 0",
            "s_add_u32 s59, s53, s55",
            "s_add_u32 s55, s55, 6144",
            "s_cmp_eq_u32 s55, 24576",
            "s_cselect_b32 s55, 0, s55",
        ]
    def ldA(slot, j):
        r = RAW + slot * 32 + j * 4
        if P.get("wv_skipA"): return "s_nop 0"
        return f"buffer_load_dwordx4 v[{r}:{r+3}], v{VA+j}, s[28:31], s56 offen {qf}"
    def ldB(j):
        if P.get("wv_skipB"): return []
        return [f"s_add_u32 m0, s59, {j*1024}", "s_nop 0", f"buffer_load_dwordx4 v{VB+j}, s[32:35], s57 offen {vf} lds"]
    def ldS(slot):
        if P.get("wv_skipS"): return []
        r = SRAW + slot * 4
        return [f"buffer_load_dwordx2 v[{r}:{r+1}], v{VS}, s[36:39], s58 offen",
                f"buffer_load_dwordx2 v[{r+2}:{r+3}], v{VS}, s[40:43], s58 offen"]
    for slot in range(2):
        for s in next_step_scalars(): k(s)
        for j in range(8): k(ldA(slot, j))
        for j in range(6):
            for s in ldB(j): k(s)
        for s in ldS(slot): k(s)
    k("v_lshrrev_b32 v30, 1, v29")
    k("v_lshrrev_b32 v31, 2, v28")
    k("v_xor_b32 v30, v30, v31")
    k("v_lshlrev_b32 v30, 4, v30")
    k("v_lshl_add_u32 v30, v28, 6, v30")
    k("v_and_b32 v31, 1, v29")
    k("v_lshl_add_u32 v30, v31, 3, v30")
    k("s_add_u32 s51, s53, 24576")
    k(f"v_add_u32 v{VAW}, s51, v30")
    k(f"v_xor_b32 v{VAW+1}, 32, v{VAW}")
    k("v_and_b32 v30, 31, v0")
    k("s_lshl_b32 s52, s3, 4")
    k("v_xor_b32 v30, s52, v30")
    k("v_lshrrev_b32 v31, 5, v0")
    k("v_bfe_u32 v1, v0, 2, 2")
    k("v_xor_b32 v31, v31, v1")
    k("v_lshlrev_b32 v31, 4, v31")
    k("v_lshl_add_u32 v30, v30, 6, v31")
    k(f"v_add_u32 v{VAR}, s51, v30")
    k(f"v_xor_b32 v{VAR+1}, 32, v{VAR}")
    k(f"v_xor_b32 v{VAR+2}, 0x800, v{VAR}")
    k(f"v_xor_b32 v{VAR+3}, 32, v{VAR+2}")
    k("v_lshrrev_b32 v30, 5, v0")
    k("v_lshl_add_u32 v30, v30, 3, v1")
    k("v_mul_u32_u24 v30, 192, v30")
    k("v_bfe_u32 v31, v0, 4, 1")
    k("v_lshl_add_u32 v30, v31, 5, v30")
    k("v_and_b32 v31, 3, v0")
    k("v_lshl_add_u32 v30, v31, 3, v30")
    k(f"v_add_u32 v{VBR}, s53, v30")
    k("s_mov_b32 s61, 0")
    k("s_mul_i32 s51, s6, 96")
    k(f"s_mov_b32 s52, {magic(112)}")
    k("s_lshl_b32 s62, s7, 1")
    k("s_lshr_b32 s63, s3, 1")
    k("s_add_u32 s62, s62, s63")
    k("s_mul_i32 s62, s62, 7168")
    k("s_and_b32 s63, s3, 1")
    k("s_lshl_b32 s63, s63, 9")
    k("s_add_u32 s62, s62, s63")
    k(f"s_add_u32 s62, s62, {WVF_OFF}")
    k("s_mov_b32 s63, 143360")
    for nb in range(3):
        T = TMP
        k(f"v_and_b32 v{T}, 31, v0")
        k(f"v_add_u32 v{T}, s51, v{T}")
        if nb: k(f"v_add_u32 v{T}, {32*nb}, v{T}")
        k(f"v_mul_hi_u32 v{T+1}, v{T}, s52")
        k(f"v_mul_u32_u24 v{T+2}, 112, v{T+1}")
        k(f"v_sub_u32 v{T}, v{T}, v{T+2}")
        k(f"v_mul_lo_u32 v{T+1}, v{T+1}, s63")
        k(f"v_lshrrev_b32 v{T+2}, 5, v{T}")
        k(f"v_bfe_u32 v{T+3}, v{T}, 2, 1")
        k(f"v_lshl_add_u32 v{T+2}, v{T+2}, 1, v{T+3}")
        k(f"v_lshlrev_b32 v{T+2}, 10, v{T+2}")
        k(f"v_bfe_u32 v{T+3}, v{T}, 3, 2")
        k(f"v_lshl_add_u32 v{T+2}, v{T+3}, 6, v{T+2}")
        k(f"v_and_b32 v{T+3}, 3, v{T}")
        k(f"v_lshl_add_u32 v{T+2}, v{T+3}, 4, v{T+2}")
        k(f"v_lshlrev_b32 v{T+3}, 4, v{T}")
        k(f"v_add_u32 v{T+3}, {6*1024 - 96*16}, v{T+3}")
        k(f"v_cmp_gt_u32 vcc, 96, v{T}")
        k(f"v_lshrrev_b32 v{T}, 5, v0")
        k(f"v_lshl_add_u32 v{T+1}, v{T}, 8, v{T+1}")
        k(f"v_cndmask_b32 v{T+2}, v{T+3}, v{T+2}, vcc")
        k(f"v_add3_u32 v{VO+nb}, v{T+1}, v{T+2}, s62")
    for i in range(96): k(f"v_accvgpr_write_b32 a{i}, 0")
    for i in range(40): k(f"v_mov_b32 v{AF+i}, 0")
    def mfma(idx):
        ks, rb, nb = idx // 6, (idx // 3) % 2, idx % 3
        a = (rb * 3 + nb) * 16
        af = AF + (rb * 2 + ks) * 4; bf = BF + (ks * 3 + nb) * 4
        return f"v_mfma_f32_32x32x16_bf16 a[{a}:{a+15}], v[{af}:{af+3}], v[{bf}:{bf+3}], a[{a}:{a+15}]"
    k("s_mov_b32 s64, 0")
    if P.get("stamp"):
        k("s_waitcnt vmcnt(16)")
        stamp_mid(k, P, 1)
    k.label("L_wv_loop")
    for slot in range(2):
        k("s_waitcnt vmcnt(%d)" % (16 - 8*P.get("wv_skipA",0) - 6*P.get("wv_skipB",0) - 2*P.get("wv_skipS",0)))
        sr = SRAW + slot * 4
        k(f"v_lshlrev_b32 v{SC}, 16, v{sr}")
        k(f"v_and_b32 v{SC+1}, 0xffff0000, v{sr}")
        k(f"v_lshlrev_b32 v{SC+2}, 16, v{sr+1}")
        k(f"v_and_b32 v{SC+3}, 0xffff0000, v{sr+1}")
        k(f"v_lshlrev_b32 v{SC+4}, 16, v{sr+2}")
        k(f"v_and_b32 v{SC+5}, 0xffff0000, v{sr+2}")
        k(f"v_lshlrev_b32 v{SC+6}, 16, v{sr+3}")
        k(f"v_and_b32 v{SC+7}, 0xffff0000, v{sr+3}")
        for s in next_step_scalars(): k(s)
        for i in range(4): k(f"v_mul_f32 v{SC+4+i}, -v{SC+4+i}, v{SC+i}")
        k("s_waitcnt lgkmcnt(0)")
        mi = 0
        for j in range(8):
            r = RAW + slot * 32 + j * 4
            t = TMP + (j & 1) * 4; p = PK + (j & 1) * 2
            if P.get("wv_nocompute"):
                k(ldA(slot, j)); mi += 1 + (j & 1); continue
            for i in range(4): k(f"v_cvt_f32_i32 v{t+i}, v{r+i}")
            k(ldA(slot, j))
            k(mfma(mi)); mi += 1
            for i in range(4): k(f"v_fma_f32 v{t+i}, v{t+i}, v{SC+i}, v{SC+4+i}")
            if j & 1: k(mfma(mi)); mi += 1
            k(f"v_cvt_pk_bf16_f32 v{p}, v{t}, v{t+1}")
            k(f"v_cvt_pk_bf16_f32 v{p+1}, v{t+2}, v{t+3}")
            k(f"ds_write_b64 v{VAW + (j&1)}, v[{p}:{p+1}] offset:{j*512}")
        assert mi == 12
        k(f"v_add_u32 v{VBC}, s61, v{VBR}")
        k("s_add_u32 s61, s61, 6144")
        k("s_cmp_eq_u32 s61, 24576")
        k("s_cselect_b32 s61, 0, s61")
        for rb in range(0 if P.get("wv_nocompute") else 2):
            for ks in range(2):
                af = AF + (rb * 2 + ks) * 4
                k(f"ds_read_b128 v[{af}:{af+3}], v{VAR + rb*2 + ks}")
        for ks in range(0 if P.get("wv_nocompute") else 2):
            for nb in range(3):
                for sec in range(2):
                    bf = BF + (ks * 3 + nb) * 4 + sec * 2
                    k(f"ds_read_b64_tr_b16 v[{bf}:{bf+1}], v{VBC} offset:{(16*ks + 4*sec)*192 + 64*nb}")
        for j in range(6):
            for s in ldB(j): k(s)
        for s in ldS(slot): k(s)
    k("s_add_u32 s64, s64, 1")
    k("s_cmp_lt_u32 s64, 7")
    k("s_cbranch_scc1 L_wv_loop")
    k("s_waitcnt lgkmcnt(0)")
    for i in range(12): k(mfma(i))
    stamp_mid(k, P, 0)
    k("v_lshlrev_b32 v30, 4, v0")
    k("v_add_u32 v31, s53, v30")
    k("s_waitcnt vmcnt(0)")
    k("s_nop 7")
    for g in range(1, 4):
        for nb in range(3):
            for hh in range(2):
                a = ((g >> 1) * 3 + nb) * 16 + (g & 1) * 8 + hh * 4
                k(f"ds_write_b128 v31, a[{a}:{a+3}] offset:{((g-1)*3 + nb)*2048 + hh*1024}")
    R0 = 32
    for nb in range(3):
        for i in range(8): k(f"v_accvgpr_read_b32 v{R0 + nb*8 + i}, a{nb*16 + i}")
    for g in range(1, 4):
        k(f"v_xor_b32 v{27+g}, {g << 15}, v31")
    k("s_waitcnt lgkmcnt(0)")
    k("s_barrier")
    R1 = 56
    for g in range(1, 4):
        for nb in range(3):
            for hh in range(2):
                r = R1 + (g - 1) * 24 + nb * 8 + hh * 4
                k(f"ds_read_b128 v[{r}:{r+3}], v{27+g} offset:{((g-1)*3 + nb)*2048 + hh*1024}")
    for g in range(1, 4):
        k(f"s_waitcnt lgkmcnt({(3-g)*6})")
        for i in range(24): k(f"v_add_f32 v{R0+i}, v{R0+i}, v{R1 + (g-1)*24 + i}")
    for nb in range(3):
        t = 128 + nb * 4
        for i in range(4): k(f"v_cvt_pk_bf16_f32 v{t+i}, v{R0 + nb*8 + 2*i}, v{R0 + nb*8 + 2*i + 1}")
        k(f"buffer_store_dwordx4 v[{t}:{t+3}], v{VO+nb}, s[44:47], 0 offen {stf}")
    stamp_end(k, P, 0, 44, 140, 3)
    k("s_endpgm")
    k.label("L_k1_xr")
    k("s_sub_u32 s6, s4, 6")
    k("s_lshl_b32 s6, s6, 3")
    k("s_lshr_b32 s7, s5, 2")
    k("s_add_u32 s6, s6, s7")
    k("s_and_b32 s7, s5, 3")
    VX = 2
    VU = 6
    VXR = 11
    VUR = 15
    VXC = 16; VUC = 20
    VO2 = 21
    FR = 32
    STG = 36864
    k("v_lshrrev_b32 v28, 3, v0")
    k("v_and_b32 v29, 7, v0")
    k("v_lshrrev_b32 v30, 4, v0")
    k("v_xor_b32 v29, v29, v30")
    k("v_mul_u32_u24 v28, 1280, v28")
    k("v_lshl_add_u32 v28, v29, 4, v28")
    k("s_lshl_b32 s51, s6, 2")
    k("s_add_u32 s51, s51, s3")
    k(f"s_mul_i32 s52, s51, {32*1280}")
    k(f"v_add_u32 v{VX}, s52, v28")
    k(f"v_xor_b32 v{VX+1}, 64, v{VX}")
    k(f"v_add_u32 v{VX+1}, {8*1280}, v{VX+1}")
    k(f"v_add_u32 v{VX+2}, {16*1280}, v{VX}")
    k(f"v_add_u32 v{VX+3}, {16*1280}, v{VX+1}")
    k("s_mul_i32 s52, s3, 320")
    k(f"s_mov_b32 s53, {magic(20)}")
    k("s_mul_i32 s54, s7, 320")
    for j in range(5):
        k(f"v_add_u32 v28, s52, v0")
        if j: k(f"v_add_u32 v28, {64*j}, v28")
        k("v_mul_hi_u32 v29, v28, s53")
        k("v_mul_u32_u24 v30, 20, v29")
        k("v_sub_u32 v28, v28, v30")
        k("v_mul_u32_u24 v29, 1280, v29")
        k("v_lshl_add_u32 v28, v28, 4, v29")
        k(f"v_add_u32 v{VU+j}, s54, v28")
    k("s_mul_i32 s55, s3, 5120")
    k("s_lshl_b32 s56, s3, 12")
    k("s_add_u32 s56, s56, 20480")
    k("s_waitcnt lgkmcnt(0)")
    srd(k, 28, 8, 2048 * 640 * 2)
    srd(k, 32, 16, 640 * 640 * 2)
    srd(k, 44, 24, WS_BYTES)
    def xr_loads(t):
        out = []
        st = (t % 4) * STG
        out.append(f"s_mov_b32 s57, {t*128}")
        out.append(f"s_mov_b32 s58, {t*64*1280}")
        for j in range(5):
            out.append([f"s_add_u32 m0, s55, {st + j*1024}", "s_nop 0", f"buffer_load_dwordx4 v{VU+j}, s[32:35], s58 offen {uf} lds"])
        for j in range(4):
            out.append([f"s_add_u32 m0, s56, {st + j*1024}", "s_nop 0", f"buffer_load_dwordx4 v{VX+j}, s[28:31], s57 offen {xf} lds"])
        return out
    def emit(x):
        if isinstance(x, list):
            for s in x: k(s)
        else: k(x)
    for t in range(3):
        for x in xr_loads(t): emit(x)
    k("v_and_b32 v28, 31, v0")
    k("v_bfe_u32 v29, v0, 1, 3")
    k("v_lshrrev_b32 v30, 5, v0")
    k("v_xor_b32 v29, v29, v30")
    k("v_lshlrev_b32 v29, 4, v29")
    k("v_lshl_add_u32 v28, v28, 7, v29")
    k(f"v_add_u32 v{VXR}, s56, v28")
    for ks in range(1, 4): k(f"v_xor_b32 v{VXR+ks}, {ks*32}, v{VXR}")
    k("v_bfe_u32 v29, v0, 2, 2")
    k("v_lshl_add_u32 v28, v30, 3, v29")
    k("v_mul_u32_u24 v28, 320, v28")
    k("v_bfe_u32 v29, v0, 4, 1")
    k("v_lshl_add_u32 v28, v29, 5, v28")
    k("v_and_b32 v29, 3, v0")
    k(f"v_lshl_add_u32 v{VUR}, v29, 3, v28")
    k("v_bfe_u32 v28, v0, 4, 1")
    k("v_mul_u32_u24 v28, 20480, v28")
    k("v_lshl_add_u32 v28, v30, 8, v28")
    k("v_and_b32 v29, 15, v0")
    k("v_lshl_add_u32 v28, v29, 4, v28")
    k("s_mul_i32 s52, s51, 40960")
    k("s_mul_i32 s53, s7, 5120")
    k("s_add_u32 s52, s52, s53")
    if XRF_OFF: k(f"s_add_u32 s52, s52, {XRF_OFF}")
    k(f"v_add_u32 v{VO2}, s52, v28")
    k(f"v_add_u32 v{VO2+1}, 4096, v{VO2}")
    for i in range(80): k(f"v_accvgpr_write_b32 a{i}, 0")
    def xr_reads(ks, buf):
        out = []
        f = FR + buf * 24
        out.append(f"ds_read_b128 v[{f}:{f+3}], v{VXC+ks}")
        for eb in range(5):
            for sec in range(2):
                r = f + 4 + eb * 4 + sec * 2
                out.append(f"ds_read_b64_tr_b16 v[{r}:{r+1}], v{VUC} offset:{(16*ks + 4*sec)*320 + 64*eb}")
        return out
    for t in range(10):
        rem = min(2, 9 - t)
        k(f"s_waitcnt vmcnt({rem*9})")
        k("s_barrier")
        if t == 0: stamp_mid(k, P, 3)
        st = (t % 4) * STG
        for ks in range(4): k(f"v_add_u32 v{VXC+ks}, {st}, v{VXR+ks}")
        k(f"v_add_u32 v{VUC}, {st}, v{VUR}")
        for s in xr_reads(0, 0): k(s)
        fill = xr_loads(t + 3) if t + 3 < 10 else []
        for ks in range(4):
            buf = ks & 1
            if ks < 3:
                for s in xr_reads(ks + 1, buf ^ 1): k(s)
                k("s_waitcnt lgkmcnt(11)")
            else:
                k("s_waitcnt lgkmcnt(0)")
            f = FR + buf * 24
            for eb in range(5):
                k(f"v_mfma_f32_32x32x16_bf16 a[{eb*16}:{eb*16+15}], v[{f+4+eb*4}:{f+4+eb*4+3}], v[{f}:{f+3}], a[{eb*16}:{eb*16+15}]")
                if fill: emit(fill.pop(0))
        while fill: emit(fill.pop(0))
    stamp_mid(k, P, 2)
    k("s_nop 7"); k("s_nop 7")
    for eb in range(5):
        for hf in range(2):
            t = 80 + (eb * 2 + hf) % 4 * 12
            for i in range(8): k(f"v_accvgpr_read_b32 v{t+4+i}, a{eb*16 + hf*8 + i}")
            for i in range(4): k(f"v_cvt_pk_bf16_f32 v{t+i}, v{t+4+2*i}, v{t+5+2*i}")
            vo, off = (VO2, eb * 1024 + hf * 512) if eb < 4 else (VO2 + 1, hf * 512)
            k(f"buffer_store_dwordx4 v[{t}:{t+3}], v{vo}, s[44:47], 0 offen offset:{off} {stf}")
    stamp_end(k, P, 0, 44, 140, 3)
    k.label("L_k1_end")
    k("s_endpgm")
    if P.get("stamp"):
        k.label("L_k1_idle")
        k("s_waitcnt lgkmcnt(0)")
        srd(k, 44, 24, WS_BYTES)
        for i in range(4): k(f"s_mov_b32 s{96+i}, 0")
        stamp_end(k, P, 0, 44, 140, 3)
        k("s_endpgm")
    return name, k.text(), desc(name, 164 + 96, 102, 164), (256, 256, 147456)

def kernels(P):
    return [gen_k1(P), gen_k2(P)]

def gen(P):
    return assemble(kernels(P))

def assemble(ks):
    src = "; QuIP weight-only int4 layer: y = (x@U) @ (dequant(qw)@V)   (generated by dev/gen.py)\n"
    for name, _, _, (g, b, l) in ks:
        src += f"; @launch kernel={name} grid=({g},1,1) block=({b},1,1) lds={l}\n"
    src += HEADER
    for _, t, _, _ in ks: src += t
    src += '.section .rodata,"a"\n'
    for _, _, d, _ in ks: src += d
    return src

if __name__ == "__main__":
    import json
    P = json.loads(sys.argv[2]) if len(sys.argv) > 2 else {}
    open(sys.argv[1], "w").write(gen(P))

def is_wv(b, P):
    return ((b & 7) < 6) & ((b >> 3) < 30)
def is_xr(b, P):
    return (b & 7) >= 6
```

```python
import sys, json
from asmlib import *
import gen as G, probe as PR
def gen_k0(flags, which):
    name = "strm_kernel"
    k = K(name)
    P = {"stamp": 1}
    k("s_cmp_ge_u32 s2, 256")
    k("s_cbranch_scc1 L_k0_end")
    k("s_load_dwordx16 s[8:23], s[0:1], 0")
    k("s_load_dwordx2 s[24:25], s[0:1], 64")
    G.stamp_begin(k, P)
    k("v_lshrrev_b32 v1, 6, v0")
    k("s_nop 0")
    k("v_readfirstlane_b32 s3, v1")
    k("s_lshl_b32 s4, s2, 12")
    k("v_lshlrev_b32 v2, 4, v0")
    k("v_add_u32 v2, s4, v2")
    k("s_waitcnt lgkmcnt(0)")
    G.stamp_mid(k, P, 0)
    srd(k, 44, 24, G.WS_BYTES)
    bufs = {"x": (8, 2048*640*2), "q": (10, 640*1728*4), "U": (16, 640*640*2), "V": (18, 1728*1728*2)}
    r = 8
    d = 28
    for b in which:
        base, n = bufs[b]
        srd(k, d, base, n)
        for i in range((n + (1 << 20) - 1) >> 20):
            k(f"s_mov_b32 s5, {i << 20}")
            k(f"buffer_load_dwordx4 v[{r}:{r+3}], v2, s[{d}:{d+3}], s5 offen {flags}")
            r += 4
        d += 4
    G.stamp_mid(k, P, 1)
    G.stamp_end(k, P, 0, 44, 100, 3)
    k.label("L_k0_end")
    k("s_endpgm")
    return name, k.text(), desc(name, 128, 102), (256, 256, 140000)
def gen(flags, which, what):
    k1 = G.gen_k1({"order": "stag"}); k2 = G.gen_k2({"stamp": 1})
    return G.assemble([gen_k0(flags, which), k1, k2, PR.gen_probe({}, what, 4)])
cfg = [("", "xqUV", "none"), ("", "xqUV", "k1span"), ("nt", "xqUV", "none"), ("nt", "xqUV", "k1span"), ("", "xqUV", "max:0:4"), ("", "U", "k1span")]
for i, c in enumerate(cfg): open(f"p_{i}.s", "w").write(gen(*c))
```

```python
import sys
from asmlib import *
from gen import magic, VM, stamp_begin, stamp_mid, XRF_OFF, WVF_OFF, STAMP_OFF, WS_BYTES, assemble
import gen as G1

def stamp_end(k, P, kid, wssrd, vtmp, wavereg):
    G1.stamp_end(k, P, kid, wssrd, vtmp, wavereg)

def wv_orders(P):
    mode = P.get("order", "stag")
    out = []
    segs = [[0, 1, 2, 3], [4, 5, 6, 7], [8, 9, 10, 11], [12]]
    for c in range(4):
        if mode == "lock": o = list(range(13))
        elif mode == "seg":
            o = []
            for sg in segs: o += [sg[(c + j) % len(sg)] for j in range(len(sg))]
        else:
            div = {"stag": 1, "stag2": 2, "stag0": 100}[mode]
            o = [c]
            for si in range(4):
                if si == 0: oth = [(c + j) % 4 for j in range(1, 4)]
                else: oth = [x for x in segs[si] if (x & 3) != c]
                if si + 1 < 4 and c < len(segs[si + 1]):
                    oth.insert(min(c // div, len(oth)), segs[si + 1][c])
                o += oth
        assert sorted(o) == list(range(13)), o
        out.append(o)
    return out

def wv_tables(P):
    tabs = []
    for o in wv_orders(P):
        v = 0
        for i, x in enumerate(o): v |= x << (4 * i)
        tabs.append(v)
    return tabs

ABUF = 0
BRING = 40960
STAB = 106496
TS = 13824
XSTG = 49152
LDS_K1 = 3 * XSTG

def wv_role(k, P):
    qf = P.get("q_flags", ""); vf = P.get("v_flags", ""); stf = P.get("k1_stflags", "")
    LA = P.get("la", 2)
    k("s_and_b32 s50, s6, 3")
    k("s_lshr_b32 s51, s6, 2")
    k("s_lshl_b32 s70, s4, 1")
    k("s_add_u32 s70, s70, s5")
    k("s_and_b32 s70, s70, 3")
    k(f"s_mul_i32 s70, s70, {P.get('xcdrot', 3)}")
    k("s_lshl_b32 s4, s4, 2")
    k("s_add_u32 s4, s4, s50")
    k("s_mul_i32 s5, s5, 7")
    k("s_add_u32 s5, s5, s51")
    k("s_add_u32 s50, s50, s51")
    k("s_lshr_b32 s53, s4, 1")
    k("s_lshl_b32 s51, s53, 3")
    k("s_add_u32 s71, s51, 6")
    k("s_lshl_b32 s52, s53, 1")
    k("s_add_u32 s52, s52, 32")
    k("s_bitcmp1_b32 s4, 0")
    k("s_cselect_b32 s71, s52, s71")
    k("s_cselect_b32 s52, 3, 0")
    k("s_add_u32 s51, s51, s52")
    k("s_and_b32 s62, s3, 3")
    k("s_cmp_ge_u32 s3, 4")
    k("s_cbranch_scc1 L_wv_cons")
    k("s_and_b32 s50, s50, 3")
    tabs = wv_tables(P)
    k(f"s_mov_b32 s66, {hex(tabs[0] & 0xffffffff)}")
    k(f"s_mov_b32 s67, {hex(tabs[0] >> 32)}")
    for c in range(1, 4):
        k(f"s_cmp_eq_u32 s50, {c}")
        k(f"s_cselect_b32 s66, {hex(tabs[c] & 0xffffffff)}, s66")
        k(f"s_cselect_b32 s67, {hex(tabs[c] >> 32)}, s67")
    VA = 4
    VB = 14
    VSB = 18; VSC = 19
    VAW = 20
    T0 = 24
    RAW = 32
    SS = 112
    TMP = 144; PK = 152
    k(f"v_lshrrev_b32 v{T0}, 3, v0")
    k(f"v_and_b32 v{T0+1}, 7, v0")
    k(f"v_mul_u32_u24 v{T0+2}, 6912, v{T0}")
    k(f"v_lshl_add_u32 v{T0+2}, v{T0+1}, 4, v{T0+2}")
    k("s_lshl_b32 s54, s62, 7")
    k(f"s_mul_i32 s52, s51, {16*6912}")
    k("s_add_u32 s52, s52, s54")
    k(f"v_add_u32 v{VA}, s52, v{T0+2}")
    k(f"s_mul_i32 s52, s71, {16*6912}")
    k("s_add_u32 s52, s52, s54")
    k(f"v_add_u32 v{VA+6}, s52, v{T0+2}")
    for n in range(1, 6): k(f"v_add_u32 v{VA+n}, {n*8*6912}, v{VA}")
    for n in range(7, 10): k(f"v_add_u32 v{VA+n}, {(n-6)*8*6912}, v{VA+6}")
    k(f"v_mul_u32_u24 v{T0+2}, 3456, v{T0}")
    k(f"v_bfe_u32 v{T0+4}, v0, 4, 1")
    k(f"v_lshlrev_b32 v{T0+4}, 1, v{T0+4}")
    k(f"v_xor_b32 v{T0+3}, v{T0+1}, v{T0+4}")
    k(f"v_lshl_add_u32 v{T0+2}, v{T0+3}, 4, v{T0+2}")
    k(f"s_mul_i32 s52, s62, {32*3456}")
    k("s_lshl_b32 s54, s5, 7")
    k("s_add_u32 s52, s52, s54")
    k(f"v_add_u32 v{VB}, s52, v{T0+2}")
    k(f"v_xor_b32 v{VB+1}, 64, v{VB}")
    k(f"v_add_u32 v{VB+1}, {8*3456}, v{VB+1}")
    k(f"v_add_u32 v{VB+2}, {16*3456}, v{VB}")
    k(f"v_add_u32 v{VB+3}, {16*3456}, v{VB+1}")
    k("s_lshl_b32 s55, s62, 12")
    k(f"s_add_u32 s55, s55, {BRING}")
    k("s_waitcnt lgkmcnt(0)")
    srd(k, 28, 10, 640 * 1728 * 4)
    srd(k, 32, 18, 1728 * 1728 * 2)
    def next_window(slot):
        k("s_and_b32 s57, s66, 15")
        k("s_lshr_b64 s[66:67], s[66:67], 4")
        k("s_add_u32 s57, s57, s70")
        k("s_sub_u32 s60, s57, 13")
        k("s_cselect_b32 s57, s57, s60")
        k(f"s_lshl_b32 s{58+slot}, s57, 9")
        k(f"s_mul_i32 s60, s57, {128*3456}")
        k("s_add_u32 s61, s55, s56")
        k("s_add_u32 s56, s56, 16384")
        k("s_and_b32 s56, s56, 0xffff")
    def ldA(slot, n):
        r = RAW + slot * 40 + n * 4
        if P.get("ab_noload"): return
        k(f"buffer_load_dwordx4 v[{r}:{r+3}], v{VA+n}, s[28:31], s{58+slot} offen {qf}")
    def ldB(n):
        if P.get("ab_noload"): return
        k(f"buffer_load_dwordx4 v{VB+n}, s[32:35], s60 offen {vf} lds")
    BPOS = {1: 0, 3: 1, 5: 2, 7: 3}
    def all_loads(slot):
        for n in range(10):
            if n in BPOS: k(f"s_add_u32 m0, s61, {BPOS[n]*1024}")
            ldA(slot, n)
            if n in BPOS: ldB(BPOS[n])
    k(f"s_mov_b32 s58, {13*512}")
    k(f"s_mov_b32 s60, {13*128*3456}")
    k("s_mov_b32 s61, s55")
    k("s_mov_b32 s56, 16384")
    k("s_cmp_lt_u32 s62, 2")
    k("s_cbranch_scc0 L_wv_p0")
    all_loads(0)
    k.label("L_wv_p0")
    next_window(1)
    all_loads(1)
    k(f"v_lshrrev_b32 v{T0+2}, 1, v{T0+1}")
    k(f"v_and_b32 v{T0+3}, 6, v{T0+1}")
    k(f"v_xor_b32 v{T0+3}, v{T0+3}, v{T0}")
    k(f"v_lshlrev_b32 v{T0+3}, 4, v{T0+3}")
    k(f"v_lshl_add_u32 v{T0+2}, v{T0+2}, 8, v{T0+3}")
    k(f"v_and_b32 v{T0+3}, 1, v{T0+1}")
    k(f"v_lshl_add_u32 v{T0+2}, v{T0+3}, 3, v{T0+2}")
    k("s_mul_i32 s52, s62, 5120")
    k(f"v_add_u32 v{VAW}, s52, v{T0+2}")
    k("s_lshl_b32 s52, s62, 7")
    k(f"s_add_u32 s52, s52, {STAB}")
    k(f"v_lshl_add_u32 v{VSB}, v{T0+1}, 4, s52")
    def scale_reads(slot):
        r = SS + slot * 16
        k(f"v_add_u32 v{VSC}, s{58+slot}, v{VSB}")
        k(f"ds_read_b128 v[{r}:{r+3}], v{VSC}")
        k(f"ds_read_b128 v[{r+4}:{r+7}], v{VSC} offset:6912")
        k(f"ds_read_b128 v[{r+8}:{r+11}], v{VSC} offset:{TS}")
        k(f"ds_read_b128 v[{r+12}:{r+15}], v{VSC} offset:{TS+6912}")
    k("s_mov_b32 s65, 0")
    k("s_cmp_lt_u32 s62, 2")
    k("s_cbranch_scc1 L_wv_p1")
    next_window(0)
    all_loads(0)
    k("s_barrier")
    scale_reads(1)
    k("s_branch L_wv_pskip")
    k.label("L_wv_p1")
    k("s_barrier")
    scale_reads(0)
    k("s_waitcnt lgkmcnt(0)")
    def produce(buf, mode):
        if mode < 2: scale_reads(buf ^ 1)
        if mode == 0: next_window(buf)
        pend = 27 if mode < 2 else 13
        for n in range(10):
            r = RAW + buf * 40 + n * 4; t = TMP + (n & 1) * 4; p = PK + (n & 1) * 2
            sc = SS + buf * 16 + (8 if n >= 6 else 0)
            k(f"s_waitcnt vmcnt({pend})")
            for i in range(0 if P.get("ab_novalu") else 4): k(f"v_cvt_f32_i32 v{t+i}, v{r+i}")
            if mode == 0: ldA(buf, n)
            else: pend -= 1
            if n in BPOS and mode == 0: k(f"s_add_u32 m0, s61, {BPOS[n]*1024}")
            if P.get("nopk"):
                for i in range(4): k(f"v_fma_f32 v{t+i}, v{t+i}, v{sc+i}, v{sc+4+i}")
            elif not P.get("ab_novalu"):
                for i in range(2): k(f"v_pk_fma_f32 v[{t+2*i}:{t+2*i+1}], v[{t+2*i}:{t+2*i+1}], v[{sc+2*i}:{sc+2*i+1}], v[{sc+4+2*i}:{sc+5+2*i}]")
            k(f"v_cvt_pk_bf16_f32 v{p}, v{t}, v{t+1}")
            k(f"v_cvt_pk_bf16_f32 v{p+1}, v{t+2}, v{t+3}")
            if n in BPOS:
                if mode == 0: ldB(BPOS[n])
                else: pend -= 1
            if not P.get("ab_nowrite"): k(f"ds_write_b64 v{VAW}, v[{p}:{p+1}] offset:{ABUF + buf*20480 + (n>>1)*1024 + (n&1)*128}")
    def endwin():
        k("s_waitcnt lgkmcnt(0)")
        k("s_barrier")
    k.label("L_wv_ploop")
    produce(0, 0)
    k.label("L_wv_pskip")
    endwin()
    produce(1, 0)
    k("s_add_u32 s65, s65, 1")
    k("s_cmp_lt_u32 s65, 6")
    k("s_waitcnt lgkmcnt(0)")
    k("s_barrier")
    k("s_cbranch_scc1 L_wv_ploop")
    produce(0, 1); endwin()
    produce(1, 2); endwin()
    k("s_endpgm")
    k.label("L_wv_cons")
    VAR = 4; VBR = 5; VBC = 6; VO = 7
    T0 = 8
    SR = 16
    AF = 64
    ACC = 112
    k("s_mul_i32 s54, s53, 3456")
    k("s_lshr_b32 s55, s71, 3")
    k("s_mul_i32 s55, s55, 3456")
    k("v_and_b32 v2, 255, v2")
    k("v_lshlrev_b32 v3, 4, v2")
    k("s_waitcnt lgkmcnt(0)")
    srd(k, 36, 12, 5 * 1728 * 2)
    srd(k, 40, 14, 5 * 1728 * 2)
    k("v_cmp_gt_u32 vcc, 216, v2")
    k("s_and_saveexec_b64 s[68:69], vcc")
    k(f"buffer_load_dwordx4 v[{SR}:{SR+3}], v3, s[36:39], s54 offen")
    k(f"buffer_load_dwordx4 v[{SR+4}:{SR+7}], v3, s[40:43], s54 offen")
    k(f"buffer_load_dwordx4 v[{SR+8}:{SR+11}], v3, s[36:39], s55 offen")
    k(f"buffer_load_dwordx4 v[{SR+12}:{SR+15}], v3, s[40:43], s55 offen")
    k("s_mov_b64 exec, -1")
    srd(k, 44, 24, WS_BYTES)
    k(f"v_lshrrev_b32 v{T0+2}, 4, v0")
    k(f"v_lshlrev_b32 v{T0+3}, 1, v{T0+2}")
    k(f"v_xor_b32 v{T0+3}, v{T0+3}, v0")
    k(f"v_lshlrev_b32 v{VAR}, 4, v{T0+3}")
    k(f"v_bfe_u32 v{T0+3}, v0, 2, 2")
    k(f"v_lshl_add_u32 v{T0+3}, v{T0+2}, 3, v{T0+3}")
    k(f"v_lshlrev_b32 v{T0+3}, 7, v{T0+3}")
    k(f"v_bfe_u32 v{T0+4}, v0, 3, 2")
    k(f"v_xor_b32 v{T0+4}, s62, v{T0+4}")
    k(f"v_lshl_add_u32 v{T0+3}, v{T0+4}, 5, v{T0+3}")
    k(f"v_and_b32 v{T0+4}, 3, v0")
    k(f"v_lshl_add_u32 v{T0+3}, v{T0+4}, 3, v{T0+3}")
    k(f"v_add_u32 v{VBR}, {BRING}, v{T0+3}")
    k("s_mov_b32 s63, 0")
    T = T0 + 4
    k("s_lshl_b32 s52, s5, 2")
    k("s_add_u32 s52, s52, s62")
    k(f"s_mul_hi_u32 s54, s52, {magic(7)}")
    k("s_mul_i32 s64, s54, 7")
    k("s_sub_u32 s52, s52, s64")
    k("s_mul_i32 s54, s54, 143360")
    k(f"s_add_u32 s54, s54, {WVF_OFF}")
    k(f"v_bfe_u32 v{T}, v0, 2, 1")
    k(f"v_lshlrev_b32 v{T}, 10, v{T}")
    k(f"v_bfe_u32 v{T+1}, v0, 3, 1")
    k(f"v_lshl_add_u32 v{T}, v{T+1}, 6, v{T}")
    k(f"v_and_b32 v{T+1}, 3, v0")
    k(f"v_lshl_add_u32 v{T}, v{T+1}, 4, v{T}")
    k(f"v_and_b32 v{T+1}, 15, v0")
    k(f"v_lshlrev_b32 v{T+1}, 4, v{T+1}")
    k("s_cmp_eq_u32 s52, 6")
    k("s_cselect_b64 vcc, -1, 0")
    k("s_and_b32 s64, s52, 6")
    k("s_lshl_b32 s64, s64, 10")
    k("s_and_b32 s52, s52, 1")
    k("s_lshl_b32 s52, s52, 7")
    k("s_add_u32 s54, s54, s64")
    k("s_add_u32 s54, s54, s52")
    k(f"v_cndmask_b32 v{T}, v{T}, v{T+1}, vcc")
    k(f"v_lshl_add_u32 v{T}, v{T0+2}, 8, v{T}")
    k(f"v_add_u32 v{VO}, s54, v{T}")
    for j in range(5):
        k(f"s_add_u32 s52, s51, {j}" if j < 3 else f"s_add_u32 s52, s71, {j-3}")
        k(f"s_lshr_b32 s{72+j}, s52, 1")
        k(f"s_mul_i32 s{72+j}, s{72+j}, 7168")
        k("s_and_b32 s52, s52, 1")
        k("s_lshl_b32 s52, s52, 3")
        k(f"s_add_u32 s{72+j}, s{72+j}, s52")
    for i in range(20): k(f"v_mov_b32 v{ACC+i}, 0")
    k("v_lshlrev_b32 v3, 5, v2")
    k(f"v_add_u32 v3, {STAB}, v3")
    k("v_cmp_gt_u32 vcc, 216, v2")
    k("s_and_saveexec_b64 s[68:69], vcc")
    for g in range(2):
        s = SR + 8 * g; d = 32 + 16 * g
        k(f"s_waitcnt vmcnt({2 - 2*g})")
        for i in range(4):
            k(f"v_lshlrev_b32 v{d+2*i}, 16, v{s+i}"); k(f"v_and_b32 v{d+2*i+1}, 0xffff0000, v{s+i}")
            k(f"v_lshlrev_b32 v{d+8+2*i}, 16, v{s+4+i}"); k(f"v_and_b32 v{d+8+2*i+1}, 0xffff0000, v{s+4+i}")
        for i in range(8): k(f"v_mul_f32 v{d+8+i}, -v{d+8+i}, v{d+i}")
        k(f"ds_write_b128 v3, v[{d}:{d+3}] offset:{g*TS}")
        k(f"ds_write_b128 v3, v[{d+4}:{d+7}] offset:{g*TS+16}")
        k(f"ds_write_b128 v3, v[{d+8}:{d+11}] offset:{g*TS+6912}")
        k(f"ds_write_b128 v3, v[{d+12}:{d+15}] offset:{g*TS+6912+16}")
    k("s_mov_b64 exec, -1")
    k("s_waitcnt lgkmcnt(0)")
    k("s_barrier")
    def reads(buf, s, fb):
        f = AF + fb * 24
        out = []
        for sec in range(2):
            out.append(f"ds_read_b64_tr_b16 v[{f+20+sec*2}:{f+21+sec*2}], v{VBC} offset:{s*4096 + sec*512}")
        for j in range(5):
            out.append(f"ds_read_b128 v[{f+j*4}:{f+j*4+3}], v{VAR} offset:{ABUF + buf*20480 + s*5120 + j*1024}")
        return out
    def consume(buf, nsteps):
        if P.get("ab_nocons"): return
        k(f"v_add_u32 v{VBC}, s63, v{VBR}")
        k("s_add_u32 s63, s63, 16384")
        k("s_and_b32 s63, s63, 0xffff")
        for x in reads(buf, 0, 0): k(x)
        for s in range(nsteps):
            nxt = reads(buf, s + 1, (s + 1) & 1) if s + 1 < nsteps else []
            f = AF + (s & 1) * 24
            issued = 0
            for j in range(5):
                for _ in range(2):
                    if nxt: k(nxt.pop(0)); issued += 1
                k(f"s_waitcnt lgkmcnt({4 - j + issued})")
                a = ACC + j * 4
                if not P.get("ab_nomfma"): k(f"v_mfma_f32_16x16x32_bf16 v[{a}:{a+3}], v[{f+j*4}:{f+j*4+3}], v[{f+20}:{f+23}], v[{a}:{a+3}]")
    k("s_barrier")
    stamp_mid(k, P, 1)
    consume(0, 2)
    k("s_mov_b32 s65, 0")
    k.label("L_wv_cloop")
    k("s_barrier")
    consume(1, 4)
    k("s_cmp_eq_u32 s65, 6")
    k("s_cbranch_scc1 L_wv_cdone")
    k("s_barrier")
    consume(0, 4)
    k("s_add_u32 s65, s65, 1")
    k("s_branch L_wv_cloop")
    k.label("L_wv_cdone")
    stamp_mid(k, P, 0)
    k("s_nop 7")
    for j in range(5):
        k(f"v_cvt_pk_bf16_f32 v{AF+j*2}, v{ACC+j*4}, v{ACC+j*4+1}")
        k(f"v_cvt_pk_bf16_f32 v{AF+j*2+1}, v{ACC+j*4+2}, v{ACC+j*4+3}")
        k(f"buffer_store_dwordx2 v[{AF+j*2}:{AF+j*2+1}], v{VO}, s[44:47], s{72+j} offen {stf}")
    stamp_end(k, P, 0, 44, 32, 62)
    k("s_endpgm")

def xr_role(k, P):
    xf = P.get("x_flags", ""); uf = P.get("u_flags", ""); stf = P.get("k1_stflags", "")
    k("s_sub_u32 s6, s6, s7")
    k("s_lshl_b32 s5, s5, 2")
    k("s_add_u32 s6, s6, s5")
    k("s_mul_i32 s4, s4, 20")
    k("s_add_u32 s6, s6, s4")
    k(f"s_mul_hi_u32 s4, s6, {magic(5)}")
    k("s_mul_i32 s5, s4, 5")
    k("s_sub_u32 s5, s6, s5")
    k("s_and_b32 s62, s3, 3")
    k("s_cmp_ge_u32 s3, 4")
    k("s_cbranch_scc1 L_xr_cons")
    VX = 4; VU = 12
    k("v_lshrrev_b32 v28, 3, v0")
    k("v_and_b32 v29, 7, v0")
    k("v_lshrrev_b32 v30, 4, v0")
    k("v_xor_b32 v29, v29, v30")
    k("v_mul_u32_u24 v28, 1280, v28")
    k("v_lshl_add_u32 v28, v29, 4, v28")
    k("s_lshl_b32 s51, s4, 2")
    k("s_add_u32 s51, s51, s62")
    k(f"s_mul_i32 s52, s51, {64*1280}")
    k(f"v_add_u32 v{VX}, s52, v28")
    k(f"v_xor_b32 v{VX+1}, 64, v{VX}")
    k(f"v_add_u32 v{VX+1}, {8*1280}, v{VX+1}")
    for i in range(2, 8): k(f"v_add_u32 v{VX+i}, {16*1280}, v{VX+i-2}")
    k("v_and_b32 v29, 15, v0")
    k("v_lshlrev_b32 v31, 2, v30")
    k("v_xor_b32 v29, v29, v31")
    k("v_mul_u32_u24 v28, 1280, v30")
    k("v_lshl_add_u32 v28, v29, 4, v28")
    k(f"s_mul_i32 s52, s62, {16*1280}")
    k("s_lshl_b32 s53, s5, 8")
    k("s_add_u32 s52, s52, s53")
    k(f"v_add_u32 v{VU}, s52, v28")
    for i in range(1, 4): k(f"v_add_u32 v{VU+i}, {4*1280*i}, v{VU}")
    k("s_lshl_b32 s55, s62, 13")
    k("s_lshl_b32 s56, s62, 12")
    k("s_add_u32 s56, s56, 32768")
    k(f"s_mul_i32 s57, s5, {P.get('xrot', 0)}")
    k("s_mov_b32 s60, 0")
    k("s_mov_b32 s65, 0")
    k("s_waitcnt lgkmcnt(0)")
    srd(k, 28, 8, 2048 * 640 * 2)
    srd(k, 32, 16, 640 * 640 * 2)
    k.label("L_xr_lloop")
    k("s_lshl_b32 s58, s57, 7")
    k(f"s_mul_i32 s59, s57, {64*1280}")
    k("s_add_u32 m0, s56, s60")
    k("s_add_u32 s57, s57, 1")
    for i in range(4):
        k(f"buffer_load_dwordx4 v{VU+i}, s[32:35], s59 offen {uf} lds")
        k("s_add_u32 m0, m0, 1024" if i < 3 else "s_add_u32 m0, s55, s60")
        k("s_nop 0")
    for i in range(8):
        k(f"buffer_load_dwordx4 v{VX+i}, s[28:31], s58 offen {xf} lds")
        if i < 7:
            k("s_add_u32 m0, m0, 1024"); k("s_nop 0")
    k("s_cmp_eq_u32 s57, 10")
    k("s_cselect_b32 s57, 0, s57")
    k(f"s_add_u32 s60, s60, {XSTG}")
    k(f"s_cmp_eq_u32 s60, {3*XSTG}")
    k("s_cselect_b32 s60, 0, s60")
    k("s_add_u32 s65, s65, 1")
    k("s_cmp_eq_u32 s65, 1")
    k("s_cbranch_scc1 L_xr_lloop")
    k("s_waitcnt vmcnt(12)")
    k("s_barrier")
    k("s_cmp_lt_u32 s65, 10")
    k("s_cbranch_scc1 L_xr_lloop")
    k("s_waitcnt vmcnt(0)")
    k("s_barrier")
    k("s_endpgm")
    k.label("L_xr_cons")
    VXR = 4; VUR = 8; VXC = 10; VUC = 14; VO2 = 16
    FR = 32
    XACC = 80
    k("s_and_b32 s61, s62, 1")
    k("s_lshr_b32 s63, s62, 1")
    k("v_and_b32 v28, 31, v0")
    k("v_bfe_u32 v29, v0, 1, 3")
    k("v_lshrrev_b32 v31, 5, v0")
    k("v_xor_b32 v29, v29, v31")
    k("v_lshlrev_b32 v29, 4, v29")
    k("v_lshl_add_u32 v28, v28, 7, v29")
    k("s_lshl_b32 s52, s61, 14")
    k(f"v_add_u32 v{VXR}, s52, v28")
    for ks in range(1, 4): k(f"v_xor_b32 v{VXR+ks}, {ks*32}, v{VXR}")
    k("v_bfe_u32 v29, v0, 2, 2")
    k("v_lshl_add_u32 v28, v31, 3, v29")
    k("v_lshlrev_b32 v28, 8, v28")
    k("s_lshl_b32 s52, s63, 1")
    k("v_xor_b32 v29, s52, v29")
    k("v_lshl_add_u32 v28, v29, 6, v28")
    k("v_bfe_u32 v29, v0, 4, 1")
    k("v_lshl_add_u32 v28, v29, 5, v28")
    k("v_and_b32 v29, 3, v0")
    k("v_lshl_add_u32 v28, v29, 3, v28")
    k(f"v_add_u32 v{VUR}, 32768, v28")
    k(f"v_xor_b32 v{VUR+1}, 64, v{VUR}")
    k("v_bfe_u32 v28, v0, 4, 1")
    k("v_mul_u32_u24 v28, 20480, v28")
    k("v_lshl_add_u32 v28, v31, 8, v28")
    k("v_and_b32 v29, 15, v0")
    k("v_lshl_add_u32 v28, v29, 4, v28")
    k("s_lshl_b32 s52, s4, 1")
    k("s_add_u32 s52, s52, s61")
    k("s_mul_i32 s52, s52, 163840")
    k("s_lshl_b32 s53, s5, 1")
    k("s_add_u32 s53, s53, s63")
    k("s_lshl_b32 s53, s53, 11")
    k("s_add_u32 s52, s52, s53")
    if XRF_OFF: k(f"s_add_u32 s52, s52, {XRF_OFF}")
    k(f"v_add_u32 v{VO2}, s52, v28")
    for mb in range(1, 4): k(f"v_add_u32 v{VO2+mb}, {40960*mb}, v{VO2}")
    for i in range(128): k(f"v_mov_b32 v{XACC+i}, 0")
    k("s_waitcnt lgkmcnt(0)")
    srd(k, 44, 24, WS_BYTES)
    def xr_reads(ks, buf):
        out = []
        f = FR + buf * 24
        for eb in range(2):
            for sec in range(2):
                r = f + 16 + eb * 4 + sec * 2
                out.append(f"ds_read_b64_tr_b16 v[{r}:{r+1}], v{VUC+eb} offset:{(16*ks + 4*sec)*256}")
        for mb in range(4):
            out.append(f"ds_read_b128 v[{f+mb*4}:{f+mb*4+3}], v{VXC+ks} offset:{mb*4096}")
        return out
    def newstage():
        for ks in range(4): k(f"v_add_u32 v{VXC+ks}, s64, v{VXR+ks}")
        for eb in range(2): k(f"v_add_u32 v{VUC+eb}, s64, v{VUR+eb}")
        k(f"s_add_u32 s64, s64, {XSTG}")
        k(f"s_cmp_eq_u32 s64, {3*XSTG}")
        k("s_cselect_b32 s64, 0, s64")
    def mfmas(buf, fill, waits):
        f = FR + buf * 24
        issued = 0
        for mb in range(4):
            for eb in range(2):
                if waits and eb == 0: k(f"s_waitcnt lgkmcnt({3 - mb + issued})")
                a = XACC + (eb * 4 + mb) * 16
                k(f"v_mfma_f32_32x32x16_bf16 v[{a}:{a+15}], v[{f+16+eb*4}:{f+16+eb*4+3}], v[{f+mb*4}:{f+mb*4+3}], v[{a}:{a+15}]")
                if fill: k(fill.pop(0)); issued += 1
    k("s_mov_b32 s64, 0")
    k("s_mov_b32 s65, 0")
    newstage()
    k("s_barrier")
    stamp_mid(k, P, 3)
    for x in xr_reads(0, 0): k(x)
    k.label("L_xr_cloop")
    for ks in range(3): mfmas(ks & 1, xr_reads(ks + 1, (ks + 1) & 1), True)
    k("s_cmp_eq_u32 s65, 9")
    k("s_cbranch_scc1 L_xr_cdone")
    newstage()
    k("s_add_u32 s65, s65, 1")
    k("s_waitcnt lgkmcnt(0)")
    k("s_barrier")
    mfmas(1, xr_reads(0, 0), False)
    k("s_branch L_xr_cloop")
    k.label("L_xr_cdone")
    mfmas(1, [], True)
    stamp_mid(k, P, 2)
    k("s_nop 7"); k("s_nop 7")
    n = 0
    for mb in range(4):
        for eb in range(2):
            a = XACC + (eb * 4 + mb) * 16
            for g in range(2):
                t = 32 + (n % 8) * 4; n += 1
                k(f"v_cvt_pk_bf16_f32 v{t}, v{a+4*g}, v{a+4*g+1}")
                k(f"v_cvt_pk_bf16_f32 v{t+1}, v{a+4*g+2}, v{a+4*g+3}")
                k(f"v_cvt_pk_bf16_f32 v{t+2}, v{a+8+4*g}, v{a+8+4*g+1}")
                k(f"v_cvt_pk_bf16_f32 v{t+3}, v{a+8+4*g+2}, v{a+8+4*g+3}")
                k(f"buffer_store_dwordx4 v[{t}:{t+3}], v{VO2+mb}, s[44:47], 0 offen offset:{eb*1024 + g*512} {stf}")
    stamp_end(k, P, 0, 44, 64, 62)

def gen_k1(P):
    name = "quip_s1_kernel"
    k = K(name)
    k("s_cmp_ge_u32 s2, 256")
    k("s_cbranch_scc1 L_k1_end")
    k("s_load_dwordx16 s[8:23], s[0:1], 0")
    k("s_load_dwordx2 s[24:25], s[0:1], 64")
    stamp_begin(k, P)
    k("v_lshrrev_b32 v1, 6, v0")
    k("v_mov_b32 v2, v0")
    k("v_readfirstlane_b32 s3, v1")
    k("v_and_b32 v0, 63, v0")
    k("s_and_b32 s4, s2, 1")
    k("s_bfe_u32 s5, s2, 0x20001")
    k("s_lshr_b32 s6, s2, 3")
    k("s_cmp_eq_u32 s5, 3")
    k("s_cselect_b32 s7, 24, 28")
    k("s_cmp_ge_u32 s6, s7")
    k("s_cbranch_scc1 L_k1_xr")
    wv_role(k, P)
    k.label("L_k1_xr")
    xr_role(k, P)
    k.label("L_k1_end")
    k("s_endpgm")
    return name, k.text(), desc(name, 208, 102, 208), (256, 512, LDS_K1)

def kernels(P):
    return [gen_k1(P), G1.gen_k2(P)]
def gen(P):
    return assemble(kernels(P))
def is_wv(b, P):
    j = (b >> 1) & 3
    return (b >> 3) < 28 - 4 * (j == 3)
def is_xr(b, P):
    return ~is_wv(b, P)

if __name__ == "__main__":
    import json
    P = json.loads(sys.argv[2]) if len(sys.argv) > 2 else {}
    open(sys.argv[1], "w").write(gen(P))
```

```python
import sys
from asmlib import *
from gen import magic, VM, stamp_begin, stamp_mid, stamp_end, XRF_OFF, WVF_OFF, STAMP_OFF, WS_BYTES, assemble
import gen as G1

AQ_OFF = 0x600000
AQ_OFF = 0x900000
SYNC_OFF = 0xC00000
XSTG = 49152
SPIN_MAX = 1 << 20

def poll_loop(k, name, load, cmp_lines, cnt="s80", sleep=0, wait="vmcnt(0)"):
    k(f"s_mov_b32 {cnt}, 0")
    k.label(f"{name}")
    if sleep: k(f"s_sleep {sleep}")
    k(load)
    k(f"s_add_u32 {cnt}, {cnt}, 1")
    k(f"s_cmp_ge_u32 {cnt}, {SPIN_MAX}")
    k(f"s_cbranch_scc1 {name}_done")
    k(f"s_waitcnt {wait}")
    for l in cmp_lines: k(l)
    k(f"s_cbranch_scc0 {name}")
    k.label(f"{name}_done")

def wv_role(k, P):
    vf = P.get("v_flags", ""); stf = P.get("k1_stflags", "")
    NA = P.get("NA", 6); NB = P.get("NB", 12)
    ARING = 0; BRING = NA * 10240
    assert BRING + NB * 8192 <= 163840 and NB * 4 <= 60
    B0 = P.get("B0", 2)
    HOLD = P.get("hold")
    k("s_lshr_b32 s53, s4, 1")
    k("s_lshl_b32 s70, s53, 3")
    k("s_add_u32 s71, s70, 6")
    k("s_lshl_b32 s52, s53, 1")
    k("s_add_u32 s52, s52, 32")
    k("s_bitcmp1_b32 s4, 0")
    k("s_cselect_b32 s71, s52, s71")
    k("s_cselect_b32 s52, 3, 0")
    k("s_add_u32 s70, s70, s52")
    k("s_and_b32 s62, s3, 3")
    k("s_cmp_ge_u32 s3, 4")
    k("s_cbranch_scc1 L_wv_cons")
    H = P.get("H", 13)
    k(f"s_mul_i32 s68, s51, {P.get('rb', 2)}")
    k("s_lshr_b32 s52, s50, 1")
    k(f"s_mul_i32 s52, s52, {P.get('ra', 6)}")
    k("s_add_u32 s68, s68, s52")
    k(f"s_mul_hi_u32 s52, s68, {magic(H)}")
    k(f"s_mul_i32 s52, s52, {H}")
    k("s_sub_u32 s68, s68, s52")
    k("s_mov_b32 s64, s68")
    k(f"s_and_b32 s52, s50, {P.get('hm', 1)}")
    k("s_cmp_lg_u32 s52, 0")
    k(f"s_cselect_b32 s66, {H}, 0")
    k(f"s_cselect_b32 s67, {27-H}, {H}")
    k("s_mov_b32 s69, s67")
    def next_chunk():
        k("s_add_u32 s57, s66, s68")
        k("s_add_u32 s68, s68, 1")
        k("s_cmp_eq_u32 s68, s67")
        k("s_cselect_b32 s68, 0, s68")
        k("s_sub_u32 s69, s69, 1")
        k("s_cmp_eq_u32 s69, 0")
        k(f"s_cselect_b32 s52, {H}, 0")
        k("s_cselect_b32 s68, s64, s68")
        k(f"s_cselect_b32 s54, {H ^ (27-H)}, 0")
        k("s_xor_b32 s66, s66, s52")
        k("s_xor_b32 s67, s67, s54")
    k("s_cmp_ge_u32 s62, 2")
    k("s_cbranch_scc1 L_wv_bl")

    def dequant_part(ninstr, rowbase_s, rows_per_wave, widx_s, j0, grp_s, first_reg=32):
        R = first_reg
        k("v_lshrrev_b32 v24, 4, v0")
        k("v_and_b32 v25, 15, v0")
        k("v_mul_u32_u24 v26, 6912, v24")
        k("v_lshl_add_u32 v26, v25, 4, v26")
        k(f"s_lshl_b32 s52, {rowbase_s}, 4")
        k(f"s_mul_i32 s55, {widx_s}, {rows_per_wave}")
        k("s_add_u32 s52, s52, s55")
        k("s_mul_i32 s52, s52, 6912")
        k("s_lshl_b32 s54, s5, 8")
        k("s_add_u32 s52, s52, s54")
        k("v_add_u32 v4, s52, v26")
        for m in range(1, ninstr): k(f"v_add_u32 v{4+m}, {m*4*6912}, v4")
        k(f"s_mul_i32 s52, {grp_s}, 3456")
        k("s_lshl_b32 s54, s5, 7")
        k("s_add_u32 s52, s52, s54")
        k("v_lshl_add_u32 v8, v25, 3, s52")
        k("s_waitcnt lgkmcnt(0)")
        srd(k, 28, 10, 640 * 1728 * 4)
        srd(k, 36, 12, 5 * 1728 * 2)
        srd(k, 40, 14, 5 * 1728 * 2)
        for m in range(ninstr): k(f"buffer_load_dwordx4 v[{R+4*m}:{R+4*m+3}], v{4+m}, s[28:31], 0 offen")
        k("buffer_load_dwordx2 v[10:11], v8, s[36:39], 0 offen")
        k("buffer_load_dwordx2 v[12:13], v8, s[40:43], 0 offen")
        srd(k, 44, 24, WS_BYTES)
        k("v_lshrrev_b32 v26, 3, v25")
        k("v_mul_u32_u24 v26, 5120, v26")
        k("v_bfe_u32 v27, v25, 1, 2")
        k("v_lshl_add_u32 v26, v27, 8, v26")
        k("v_and_b32 v27, 1, v25")
        k("v_lshl_add_u32 v26, v27, 3, v26")
        k("v_lshrrev_b32 v27, 1, v25")
        for m in range(ninstr):
            k(f"s_add_u32 s52, s55, {4*m}")
            k(f"v_add_u32 v28, s52, v24")
            k("v_xor_b32 v28, v28, v27")
            k("v_and_b32 v29, 15, v28")
            k("v_lshrrev_b32 v28, 4, v28")
            k("v_lshlrev_b32 v28, 10, v28")
            k("v_lshl_add_u32 v28, v29, 4, v28")
            k(f"v_add_u32 v{4+m}, v28, v26")
    def dequant_finish(ninstr, j0, first_reg=32):
        R = first_reg
        k("s_waitcnt vmcnt(0)")
        for i in range(2):
            k(f"v_lshlrev_b32 v{14+2*i}, 16, v{10+i}"); k(f"v_and_b32 v{15+2*i}, 0xffff0000, v{10+i}")
            k(f"v_lshlrev_b32 v{18+2*i}, 16, v{12+i}"); k(f"v_and_b32 v{19+2*i}, 0xffff0000, v{12+i}")
        for m in range(ninstr):
            for i in range(4): k(f"v_cvt_f32_i32 v{R+4*m+i}, v{R+4*m+i}")
        for i in range(4): k(f"v_mul_f32 v{18+i}, -v{18+i}, v{14+i}")
        for m in range(ninstr):
            r = R + 4 * m
            for i in range(4): k(f"v_fma_f32 v{r+i}, v{r+i}, v{14+i}, v{18+i}")
            k(f"v_cvt_pk_bf16_f32 v{r}, v{r}, v{r+1}")
            k(f"v_cvt_pk_bf16_f32 v{r+1}, v{r+2}, v{r+3}")
            k(f"ds_write_b64 v{4+m}, v[{r}:{r+1}] offset:{ARING + j0*1024}")
        k("s_waitcnt lgkmcnt(0)")
        k("s_barrier")

    k("s_lshr_b32 s56, s71, 3")
    dequant_part(4, "s71", 16, "s62", 3, "s56")
    k(f"s_mul_i32 s52, s4, {27*10240}")
    k("s_mul_i32 s55, s62, 5120")
    k("s_add_u32 s52, s52, s55")
    k(f"s_add_u32 s52, s52, {AQ_OFF}")
    k("v_lshlrev_b32 v9, 4, v0")
    k("v_add_u32 v9, s52, v9")
    k("v_add_u32 v30, 4096, v9")
    if ARING: k(f"s_add_u32 s55, s55, {ARING}")
    k("s_mov_b32 s56, 0")
    dequant_finish(4, 3)
    def issueA():
        next_chunk()
        k("s_mul_i32 s58, s57, 10240")
        k("s_add_u32 m0, s55, s56")
        k("s_add_u32 s56, s56, 10240")
        for j in range(4): k(f"buffer_load_dwordx4 v9, s[44:47], s58 offen offset:{j*1024} sc1 lds")
        k("s_add_u32 m0, m0, 4096")
        k(f"s_cmp_eq_u32 s56, {NA*10240}")
        k(f"buffer_load_dwordx4 v30, s[44:47], s58 offen sc1 lds")
        k("s_cselect_b32 s56, 0, s56")
    if HOLD is not None: k("s_barrier")
    k("s_barrier")
    k("s_mov_b32 s65, 0")
    k.label("L_wv_a0")
    issueA()
    k("s_add_u32 s65, s65, 1")
    k(f"s_cmp_lt_u32 s65, {NA}")
    k("s_cbranch_scc1 L_wv_a0")
    k(f"s_waitcnt vmcnt({5*(NA-1)})")
    k("s_barrier")
    k.label("L_wv_a1")
    k(f"s_waitcnt vmcnt({5*(NA-2)})")
    k("s_barrier")
    issueA()
    k("s_add_u32 s65, s65, 1")
    k("s_cmp_lt_u32 s65, 27")
    k("s_cbranch_scc1 L_wv_a1")
    for r in range(NA - 2, -1, -1):
        k(f"s_waitcnt vmcnt({5*r})")
        k("s_barrier")
    k("s_endpgm")
    k.label("L_wv_bl")
    VB = 4
    k("s_and_b32 s62, s62, 1")
    k("v_lshrrev_b32 v24, 3, v0")
    k("v_and_b32 v25, 7, v0")
    k("v_mul_u32_u24 v26, 3456, v24")
    k("v_bfe_u32 v27, v0, 4, 1")
    k("v_lshlrev_b32 v27, 1, v27")
    k("v_xor_b32 v27, v25, v27")
    k("v_lshl_add_u32 v26, v27, 4, v26")
    k(f"s_mul_i32 s52, s62, {32*3456}")
    k("s_lshl_b32 s54, s5, 7")
    k("s_add_u32 s52, s52, s54")
    k(f"v_add_u32 v{VB}, s52, v26")
    k(f"v_xor_b32 v{VB+1}, 64, v{VB}")
    k(f"v_add_u32 v{VB+1}, {8*3456}, v{VB+1}")
    k(f"v_add_u32 v{VB+2}, {16*3456}, v{VB}")
    k(f"v_add_u32 v{VB+3}, {16*3456}, v{VB+1}")
    k("s_lshl_b32 s55, s62, 12")
    k(f"s_add_u32 s55, s55, {BRING}")
    k("s_mov_b32 s56, 0")
    k("s_mov_b32 s65, 0")
    k("s_waitcnt lgkmcnt(0)")
    srd(k, 32, 18, 1728 * 1728 * 2)
    def issueB():
        next_chunk()
        k(f"s_mul_i32 s58, s57, {64*3456}")
        k("s_add_u32 m0, s55, s56")
        k("s_add_u32 s56, s56, 8192")
        for n in range(4):
            k(f"buffer_load_dwordx4 v{VB+n}, s[32:35], s58 offen {vf} lds")
            if n < 3:
                k("s_add_u32 m0, m0, 1024")
                k("s_nop 0" if n < 2 else f"s_cmp_eq_u32 s56, {NB*8192}")
        k("s_cselect_b32 s56, 0, s56")
    k.label("L_wv_b0")
    issueB()
    k("s_add_u32 s65, s65, 1")
    k(f"s_cmp_lg_u32 s65, {B0}")
    k("s_cbranch_scc1 L_wv_b0n")
    k("s_barrier")
    k.label("L_wv_b0n")
    if HOLD is not None:
        k(f"s_cmp_lg_u32 s65, {HOLD}")
        k("s_cbranch_scc1 L_wv_b1n")
        k("s_barrier")
        k.label("L_wv_b1n")
    k(f"s_cmp_lt_u32 s65, {NB}")
    k("s_cbranch_scc1 L_wv_b0")
    k("s_barrier")
    k(f"s_waitcnt vmcnt({4*(NB-1)})")
    k("s_barrier")
    k.label("L_wv_b1")
    k(f"s_waitcnt vmcnt({4*(NB-2)})")
    k("s_barrier")
    issueB()
    k("s_add_u32 s65, s65, 1")
    k("s_cmp_lt_u32 s65, 27")
    k("s_cbranch_scc1 L_wv_b1")
    for r in range(NB - 2, -1, -1):
        k(f"s_waitcnt vmcnt({4*r})")
        k("s_barrier")
    k("s_endpgm")
    k.label("L_wv_cons")
    dequant_part(3, "s70", 12, "s62", 0, "s53")
    srd(k, 48, 22, 256)
    k("s_cmp_lg_u32 s2, 0")
    k("s_cbranch_scc1 L_wv_nz")
    k("s_cmp_lg_u32 s62, 1")
    k("s_cbranch_scc1 L_wv_nz")
    k("v_lshlrev_b32 v28, 8, v0")
    k(f"v_add_u32 v28, {SYNC_OFF}, v28")
    k("v_mov_b32 v29, 0")
    k("buffer_store_dword v29, v28, s[44:47], 0 offen sc1")
    k("v_mov_b32 v28, 1")
    k("s_waitcnt vmcnt(0)")
    k("s_mov_b64 exec, 1")
    k("buffer_store_dword v28, v29, s[48:51], 0 offen sc1")
    k("s_mov_b64 exec, -1")
    k.label("L_wv_nz")
    VAR = 48; VBR = 49; VAC = 51; VBC = 52; VO = 54; VRED = 55
    FR = 64
    ACC = 120
    k("s_and_b32 s60, s62, 1")
    k("s_lshr_b32 s61, s62, 1")
    k("s_mul_i32 s52, s61, 5120")
    if ARING: k(f"s_add_u32 s52, s52, {ARING}")
    k(f"v_lshl_add_u32 v{VAR}, v0, 4, s52")
    k("s_lshl_b32 s63, s60, 1")
    k("s_add_u32 s63, s63, s61")
    k("v_bfe_u32 v28, v0, 2, 2")
    k("v_lshl_add_u32 v28, v24, 3, v28")
    k("v_lshlrev_b32 v28, 7, v28")
    k("v_bfe_u32 v29, v0, 3, 2")
    k("v_xor_b32 v29, s63, v29")
    k("v_lshl_add_u32 v28, v29, 5, v28")
    k("v_and_b32 v29, 3, v0")
    k("v_lshl_add_u32 v28, v29, 3, v28")
    k("s_lshl_b32 s52, s61, 12")
    k(f"s_add_u32 s52, s52, {BRING}")
    k(f"v_add_u32 v{VBR}, s52, v28")
    k(f"v_xor_b32 v{VBR+1}, 32, v{VBR}")
    k("s_lshl_b32 s52, s5, 2")
    k("s_add_u32 s52, s52, s63")
    k(f"s_mul_hi_u32 s54, s52, {magic(7)}")
    k("s_mul_i32 s64, s54, 7")
    k("s_sub_u32 s52, s52, s64")
    k("s_mul_i32 s54, s54, 143360")
    k(f"s_add_u32 s54, s54, {WVF_OFF}")
    k("v_bfe_u32 v28, v0, 2, 1")
    k("v_lshlrev_b32 v28, 10, v28")
    k("v_bfe_u32 v29, v0, 3, 1")
    k("v_lshl_add_u32 v28, v29, 6, v28")
    k("v_and_b32 v29, 3, v0")
    k("v_lshl_add_u32 v28, v29, 4, v28")
    k("v_lshlrev_b32 v29, 4, v25")
    k("s_cmp_eq_u32 s52, 6")
    k("s_cselect_b64 vcc, -1, 0")
    k("s_and_b32 s64, s52, 6")
    k("s_lshl_b32 s64, s64, 10")
    k("s_and_b32 s52, s52, 1")
    k("s_lshl_b32 s52, s52, 7")
    k("s_add_u32 s54, s54, s64")
    k("s_add_u32 s54, s54, s52")
    k("v_cndmask_b32 v28, v28, v29, vcc")
    k("v_lshl_add_u32 v28, v24, 8, v28")
    k(f"v_add_u32 v{VO}, s54, v28")
    for j in range(4):
        k(f"s_add_u32 s52, s70, {j}" if j < 3 else "s_mov_b32 s52, s71")
        k(f"s_lshr_b32 s{72+j}, s52, 1")
        k(f"s_mul_i32 s{72+j}, s{72+j}, 7168")
        k("s_and_b32 s52, s52, 1")
        k("s_lshl_b32 s52, s52, 3")
        k(f"s_add_u32 s{72+j}, s{72+j}, s52")
    for i in range(40): k(f"v_mov_b32 v{ACC+i}, 0")
    dequant_finish(3, 0)
    stamp_mid(k, P, 2)
    k("s_cmp_lg_u32 s62, 0")
    k("s_cbranch_scc1 " + ("L_wv_pub_done" if HOLD is None else "L_wv_pub_other"))
    k("v_xor_b32 v28, v0, v24")
    k("v_lshlrev_b32 v28, 4, v28")
    k("v_xor_b32 v29, 64, v28")
    for s in range(2):
        for j in range(5):
            r = FR + (s * 5 + j) * 4
            k(f"ds_read_b128 v[{r}:{r+3}], v{28+s} offset:{ARING + s*5120 + j*1024}")
    k("v_mov_b32 v31, 0")
    k("buffer_load_dword v30, v31, s[48:51], 0 offen sc1")
    k("s_mul_i32 s52, s4, 27")
    k("s_add_u32 s52, s52, s5")
    k("s_mul_i32 s52, s52, 10240")
    k(f"s_add_u32 s52, s52, {AQ_OFF}")
    k("v_lshl_add_u32 v26, v0, 4, s52")
    k("s_movk_i32 s54, 0x1000")
    k("s_movk_i32 s55, 0x2000")
    for n in range(10):
        r = FR + n * 4
        k(f"s_waitcnt lgkmcnt({9-n})")
        so = ["0", "s54", "s55"][n // 4]
        k(f"buffer_store_dwordx4 v[{r}:{r+3}], v26, s[44:47], {so} offen offset:{(n%4)*1024} sc1")
    k("s_lshl_b32 s52, s4, 8")
    k(f"s_add_u32 s52, s52, {SYNC_OFF}")
    k("v_mov_b32 v27, s52")
    k("v_mov_b32 v26, 1")
    k("s_mov_b64 exec, 1")
    k("s_waitcnt vmcnt(0)")
    k("v_readfirstlane_b32 s52, v30")
    k("s_cmp_lg_u32 s52, 0")
    k("s_cbranch_scc1 L_wv_rdy_done")
    poll_loop(k, "L_wv_rdy", "buffer_load_dword v30, v31, s[48:51], 0 offen sc1", ["v_readfirstlane_b32 s52, v30", "s_cmp_lg_u32 s52, 0"])
    k("buffer_atomic_add v26, v27, s[44:47], 0 offen sc1")
    stamp_mid(k, P, 3)
    if HOLD is not None: k("s_barrier")
    poll_loop(k, "L_wv_cnt", "buffer_load_dword v30, v27, s[44:47], 0 offen sc1", ["v_readfirstlane_b32 s52, v30", "s_cmp_ge_u32 s52, 27"])
    k("s_mov_b64 exec, -1")
    if HOLD is not None:
        k("s_branch L_wv_pub_done")
        k.label("L_wv_pub_other")
        k("s_barrier")
    k.label("L_wv_pub_done")
    k("s_barrier")
    stamp_mid(k, P, 1)
    k("s_mov_b32 s56, 0"); k("s_mov_b32 s57, 0")
    def newstage():
        k(f"v_add_u32 v{VAC}, s56, v{VAR}")
        k(f"v_add_u32 v{VBC}, s57, v{VBR}")
        k(f"v_add_u32 v{VBC+1}, s57, v{VBR+1}")
        k("s_add_u32 s56, s56, 10240")
        k(f"s_cmp_eq_u32 s56, {NA*10240}")
        k("s_cselect_b32 s56, 0, s56")
        k("s_add_u32 s57, s57, 8192")
        k(f"s_cmp_eq_u32 s57, {NB*8192}")
        k("s_cselect_b32 s57, 0, s57")
    def reads(fb):
        f = FR + fb * 28
        out = []
        for u in range(2):
            for sec in range(2):
                out.append(f"ds_read_b64_tr_b16 v[{f+20+u*4+sec*2}:{f+21+u*4+sec*2}], v{VBC+u} offset:{sec*512}")
        for j in range(5):
            out.append(f"ds_read_b128 v[{f+j*4}:{f+j*4+3}], v{VAC} offset:{j*1024}")
        return out
    def mfmas(fb, fill):
        f = FR + fb * 28
        for j in range(5):
            for u in range(2):
                a = ACC + (u * 5 + j) * 4
                if fill: k(fill.pop(0))
                k(f"v_mfma_f32_16x16x32_bf16 v[{a}:{a+3}], v[{f+j*4}:{f+j*4+3}], v[{f+20+u*4}:{f+23+u*4}], v[{a}:{a+3}]")
    newstage()
    k("s_barrier")
    for x in reads(0): k(x)
    k("s_mov_b32 s65, 0")
    k.label("L_wv_cloop")
    for fb in range(2):
        newstage()
        if fb == 1:
            k("s_add_u32 s65, s65, 1")
        k("s_waitcnt lgkmcnt(0)")
        k("s_barrier")
        mfmas(fb, reads(fb ^ 1))
    k("s_cmp_lt_u32 s65, 13")
    k("s_cbranch_scc1 L_wv_cloop")
    free = [s for s in range(NA) if s != 26 % NA]
    red = None
    for s in free:
        if s + 1 in free: red = ARING + s * 10240; break
    k("s_mul_i32 s52, s62, 5120")
    k(f"s_add_u32 s52, s52, {red}")
    k(f"v_lshl_add_u32 v{VRED}, v0, 4, s52")
    k("s_xor_b32 s52, s62, 2")
    k("s_mul_i32 s52, s52, 5120")
    k(f"s_add_u32 s52, s52, {red}")
    k(f"v_lshl_add_u32 v{VRED+1}, v0, 4, s52")
    k("s_waitcnt lgkmcnt(0)")
    f = FR
    for u in (1, 0):
        for j in range(5):
            a = ACC + (u * 5 + j) * 4
            k(f"v_mfma_f32_16x16x32_bf16 v[{a}:{a+3}], v[{f+j*4}:{f+j*4+3}], v[{f+20+u*4}:{f+23+u*4}], v[{a}:{a+3}]")
    stamp_mid(k, P, 0)
    k("s_nop 2")
    for j in range(5):
        a = ACC + (5 + j) * 4
        k(f"ds_write_b128 v{VRED}, v[{a}:{a+3}] offset:{j*1024}")
    k("s_waitcnt lgkmcnt(0)")
    k("s_barrier")
    for j in range(5): k(f"ds_read_b128 v[{FR+28+j*4}:{FR+28+j*4+3}], v{VRED+1} offset:{j*1024}")
    for j in range(5):
        k(f"s_waitcnt lgkmcnt({4-j})")
        for i in range(4): k(f"v_add_f32 v{ACC+j*4+i}, v{ACC+j*4+i}, v{FR+28+j*4+i}")
        t = FR + j * 2 + (2 if j >= 3 else 0)
        k(f"v_cvt_pk_bf16_f32 v{t}, v{ACC+j*4}, v{ACC+j*4+1}")
        k(f"v_cvt_pk_bf16_f32 v{t+1}, v{ACC+j*4+2}, v{ACC+j*4+3}")
        if j < 3: k(f"buffer_store_dwordx2 v[{t}:{t+1}], v{VO}, s[44:47], s{72+j} offen {stf}")
        if j == 4: k(f"buffer_store_dwordx4 v[{FR+8}:{FR+11}], v{VO}, s[44:47], s75 offen {stf}")
    stamp_end(k, P, 0, 44, 32, 62)
    k("s_endpgm")

def xr_orders(P):
    mode = P.get("xorder", "stag")
    segs = [[0, 1, 2, 3], [4, 5, 6, 7], [8, 9]]
    out = []
    for c in range(4):
        if mode == "lock": o = list(range(10))
        else:
            div = {"stag": 1, "stag2": 2, "stag0": 100}[mode]
            o = [c]
            for si in range(3):
                if si == 0: oth = [(c + j) % 4 for j in range(1, 4)]
                else: oth = [x for x in segs[si] if (x & 3) != c]
                if si + 1 < 3 and c < len(segs[si + 1]):
                    oth.insert(min(c // div, len(oth)), segs[si + 1][c])
                o += oth
        assert sorted(o) == list(range(10))
        out.append(o)
    return out

def xr_role(k, P):
    xf = P.get("x_flags", ""); uf = P.get("u_flags", ""); stf = P.get("k1_stflags", "")
    k("s_and_b32 s62, s3, 3")
    k("s_cmp_ge_u32 s3, 4")
    k("s_cbranch_scc1 L_xr_cons")
    tabs = [sum(x << (4 * i) for i, x in enumerate(o)) for o in xr_orders(P)]
    k(f"s_mov_b32 s66, {hex(tabs[0] & 0xffffffff)}")
    k(f"s_mov_b32 s67, {hex(tabs[0] >> 32)}")
    for c in range(1, 4):
        k(f"s_cmp_eq_u32 s50, {c}")
        k(f"s_cselect_b32 s66, {hex(tabs[c] & 0xffffffff)}, s66")
        k(f"s_cselect_b32 s67, {hex(tabs[c] >> 32)}, s67")
    VX = 4; VU = 12
    k("v_lshrrev_b32 v28, 3, v0")
    k("v_and_b32 v29, 7, v0")
    k("v_lshrrev_b32 v30, 4, v0")
    k("v_xor_b32 v29, v29, v30")
    k("v_mul_u32_u24 v28, 1280, v28")
    k("v_lshl_add_u32 v28, v29, 4, v28")
    k("s_lshl_b32 s51, s4, 2")
    k("s_add_u32 s51, s51, s62")
    k(f"s_mul_i32 s52, s51, {64*1280}")
    k(f"v_add_u32 v{VX}, s52, v28")
    k(f"v_xor_b32 v{VX+1}, 64, v{VX}")
    k(f"v_add_u32 v{VX+1}, {8*1280}, v{VX+1}")
    for i in range(2, 8): k(f"v_add_u32 v{VX+i}, {16*1280}, v{VX+i-2}")
    k("v_and_b32 v29, 15, v0")
    k("v_lshlrev_b32 v31, 2, v30")
    k("v_xor_b32 v29, v29, v31")
    k("v_mul_u32_u24 v28, 1280, v30")
    k("v_lshl_add_u32 v28, v29, 4, v28")
    k(f"s_mul_i32 s52, s62, {16*1280}")
    k("s_lshl_b32 s53, s5, 8")
    k("s_add_u32 s52, s52, s53")
    k(f"v_add_u32 v{VU}, s52, v28")
    for i in range(1, 4): k(f"v_add_u32 v{VU+i}, {4*1280*i}, v{VU}")
    k("s_lshl_b32 s55, s62, 13")
    k("s_lshl_b32 s56, s62, 12")
    k("s_add_u32 s56, s56, 32768")
    k("s_mov_b32 s60, 0")
    k("s_mov_b32 s65, 0")
    k("s_waitcnt lgkmcnt(0)")
    srd(k, 28, 8, 2048 * 640 * 2)
    srd(k, 32, 16, 640 * 640 * 2)
    k.label("L_xr_lloop")
    k("s_and_b32 s57, s66, 15")
    k("s_lshr_b64 s[66:67], s[66:67], 4")
    k("s_add_u32 m0, s56, s60")
    k("s_lshl_b32 s58, s57, 7")
    k(f"s_mul_i32 s59, s57, {64*1280}")
    for i in range(4):
        k(f"buffer_load_dwordx4 v{VU+i}, s[32:35], s59 offen {uf} lds")
        k("s_add_u32 m0, m0, 1024" if i < 3 else "s_add_u32 m0, s55, s60")
        k("s_nop 0")
    for i in range(8):
        k(f"buffer_load_dwordx4 v{VX+i}, s[28:31], s58 offen {xf} lds")
        if i < 7:
            k("s_add_u32 m0, m0, 1024"); k("s_nop 0")
    k(f"s_add_u32 s60, s60, {XSTG}")
    k(f"s_cmp_eq_u32 s60, {3*XSTG}")
    k("s_cselect_b32 s60, 0, s60")
    k("s_add_u32 s65, s65, 1")
    k("s_cmp_eq_u32 s65, 1")
    k("s_cbranch_scc1 L_xr_lloop")
    k("s_waitcnt vmcnt(12)")
    k("s_barrier")
    k("s_cmp_lt_u32 s65, 10")
    k("s_cbranch_scc1 L_xr_lloop")
    k("s_waitcnt vmcnt(0)")
    k("s_barrier")
    k("s_endpgm")
    k.label("L_xr_cons")
    import gen3
    kk = K("tmp"); gen3.xr_role(kk, P)
    i0 = kk.lines.index("L_xr_cons:")
    k.lines += kk.lines[i0 + 1:]

def gen_k1(P):
    name = "quip_s1_kernel"
    k = K(name)
    k("s_cmp_ge_u32 s2, 256")
    k("s_cbranch_scc1 L_k1_end")
    k("s_load_dwordx16 s[8:23], s[0:1], 0")
    k("s_load_dwordx2 s[24:25], s[0:1], 64")
    stamp_begin(k, P)
    k("v_lshrrev_b32 v1, 6, v0")
    k("v_and_b32 v0, 63, v0")
    k("v_readfirstlane_b32 s3, v1")
    k("s_and_b32 s4, s2, 1")
    k("s_bfe_u32 s5, s2, 0x20001")
    k("s_lshr_b32 s6, s2, 3")
    k("s_and_b32 s50, s6, 3")
    k("s_lshr_b32 s51, s6, 2")
    k("s_lshl_b32 s4, s4, 2")
    k("s_add_u32 s4, s4, s50")
    k("s_lshl_b32 s5, s5, 3")
    k("s_add_u32 s5, s5, s51")
    k("s_cmp_ge_u32 s5, 27")
    k("s_cbranch_scc1 L_k1_xr")
    wv_role(k, P)
    k.label("L_k1_xr")
    k("s_sub_u32 s5, s5, 27")
    k("s_add_u32 s50, s50, s5")
    k("s_and_b32 s50, s50, 3")
    xr_role(k, P)
    k.label("L_k1_end")
    k("s_endpgm")
    return name, k.text(), desc(name, 208, 102, 208), (256, 512, 163840)

def kernels(P):
    return [gen_k1(P), G1.gen_k2(P)]
def gen(P):
    return assemble(kernels(P))
def is_wv(b, P):
    return ((b >> 1) & 3) * 8 + (b >> 5) < 27
def is_xr(b, P):
    return ~is_wv(b, P)

if __name__ == "__main__":
    import json
    P = json.loads(sys.argv[2]) if len(sys.argv) > 2 else {}
    open(sys.argv[1], "w").write(gen(P))
```

```python
import sys
from asmlib import *
from gen import magic, stamp_begin, stamp_mid, stamp_end, XRF_OFF, WVF_OFF, STAMP_OFF, WS_BYTES, assemble
import gen4

def phase_c(k, P, pre):
    NX = P.get("NX", 3); NW = P.get("NW", 3)
    XR = 0; WR = NX * 16384
    assert WR + NW * 14336 <= 163840 and NX * 8 <= 60 and NW * 7 <= 60
    ldf = P.get("k2_ldflags", ""); stf = P.get("k2_stflags", "")
    k("s_and_b32 s62, s3, 3")
    k("s_cmp_ge_u32 s3, 4")
    k(f"s_cbranch_scc1 {pre}_cons")
    k("v_lshlrev_b32 v2, 4, v0")
    k("s_mov_b32 s56, 0")
    k("s_mov_b32 s65, 0")
    k("s_cmp_ge_u32 s62, 2")
    k(f"s_cbranch_scc1 {pre}_wl")
    def loader(name, N, per, issue):
        LA = N - 1
        k.label(f"{name}0")
        issue()
        k("s_add_u32 s65, s65, 1")
        k(f"s_cmp_lt_u32 s65, {LA}")
        k(f"s_cbranch_scc1 {name}0")
        k.label(f"{name}1")
        k(f"s_waitcnt vmcnt({per*(LA-1)})")
        k("s_barrier")
        issue()
        k("s_add_u32 s65, s65, 1")
        k("s_cmp_lt_u32 s65, 10")
        k(f"s_cbranch_scc1 {name}1")
        for r in range(LA - 1, -1, -1):
            k(f"s_waitcnt vmcnt({per*r})")
            k("s_barrier")
        k("s_endpgm")
    def adv():
        k("s_add_u32 s50, s50, 1")
        k("s_cmp_eq_u32 s50, 10")
        k("s_cselect_b32 s50, 0, s50")
    k("s_lshl_b32 s52, s10, 1")
    k("s_add_u32 s52, s52, s62")
    k("s_mul_i32 s52, s52, 81920")
    if XRF_OFF: k(f"s_add_u32 s52, s52, {XRF_OFF}")
    k("v_add_u32 v4, s52, v2")
    for i in range(1, 4): k(f"v_add_u32 v{4+i}, {20480*i}, v4")
    k("s_lshl_b32 s55, s62, 13")
    if XR: k(f"s_add_u32 s55, s55, {XR}")
    k("s_waitcnt lgkmcnt(0)")
    srd(k, 44, 24, WS_BYTES)
    def issueX():
        k("s_add_u32 m0, s55, s56")
        k("s_lshl_b32 s58, s50, 11")
        for i in range(4):
            k(f"buffer_load_dwordx4 v{4+i}, s[44:47], s58 offen {ldf} lds")
            k(f"buffer_load_dwordx4 v{4+i}, s[44:47], s58 offen offset:1024 {ldf} lds")
            if i < 3:
                k("s_add_u32 m0, m0, 2048"); k("s_nop 0")
        adv()
        k("s_add_u32 s56, s56, 16384")
        k(f"s_cmp_eq_u32 s56, {NX*16384}")
        k("s_cselect_b32 s56, 0, s56")
    loader(f"{pre}_x", NX, 8, issueX)
    k.label(f"{pre}_wl")
    k("s_and_b32 s62, s62, 1")
    k("s_mul_i32 s52, s11, 143360")
    k("s_mul_i32 s55, s62, 7168")
    k("s_add_u32 s52, s52, s55")
    k(f"s_add_u32 s52, s52, {WVF_OFF}")
    k("v_add_u32 v4, s52, v2")
    k("v_add_u32 v5, 4096, v4")
    k("v_mov_b32 v6, v4")
    k("s_cmp_lg_u32 s11, 15")
    k(f"s_cbranch_scc1 {pre}_nt15")
    k("v_mov_b32 v5, 0x7fffffff")
    k("v_and_b32 v7, 8, v0")
    k("v_cmp_eq_u32 vcc, 0, v7")
    k("s_nop 1")
    k("v_cndmask_b32 v6, v5, v4, vcc")
    k.label(f"{pre}_nt15")
    k(f"s_add_u32 s55, s55, {WR}")
    k("s_waitcnt lgkmcnt(0)")
    srd(k, 44, 24, WS_BYTES)
    def issueW():
        k("s_add_u32 m0, s55, s56")
        k("s_mul_i32 s58, s50, 14336")
        for i in range(4): k(f"buffer_load_dwordx4 v{4 if i < 2 else 6}, s[44:47], s58 offen offset:{i*1024} {ldf} lds")
        k("s_add_u32 m0, m0, 4096")
        k("s_add_u32 s56, s56, 14336")
        for i in range(3): k(f"buffer_load_dwordx4 v5, s[44:47], s58 offen offset:{i*1024} {ldf} lds")
        adv()
        k(f"s_cmp_eq_u32 s56, {NW*14336}")
        k("s_cselect_b32 s56, 0, s56")
    loader(f"{pre}_w", NW, 7, issueW)
    k.label(f"{pre}_cons")
    VXR = 4; VWR = 5; VXC = 6; VWC = 7
    VEW = 8; VER = 9; VST = 10
    ACC = 24
    FR = 80
    k("s_lshl_b32 s52, s62, 12")
    if XR: k(f"s_add_u32 s52, s52, {XR}")
    k(f"v_lshl_add_u32 v{VXR}, v0, 4, s52")
    k(f"v_lshlrev_b32 v{VWR}, 4, v0")
    k(f"v_add_u32 v{VWR}, {WR}, v{VWR}")
    for i in range(56): k(f"v_mov_b32 v{ACC+i}, 0")
    free = [s for s in range(NX) if s != 9 % NX]
    stg = None
    for s in free:
        if s + 1 in free: stg = XR + s * 16384; break
    if WR + NW * 14336 + 30720 <= 163840: stg = WR + NW * 14336
    k("s_mul_i32 s52, s62, 7680")
    k(f"s_add_u32 s52, s52, {stg}")
    k("v_and_b32 v18, 15, v0")
    k("v_mul_u32_u24 v18, 240, v18")
    k("v_lshrrev_b32 v19, 4, v0")
    k("v_lshl_add_u32 v20, v19, 4, v18")
    k(f"v_add_u32 v{VEW}, s52, v20")
    k("v_lshl_add_u32 v20, v19, 3, v18")
    k(f"v_add_u32 v{VER}, s52, v20")
    k(f"s_mov_b32 s53, {magic(14)}")
    k("s_lshl_b32 s54, s10, 2")
    k("s_add_u32 s54, s54, s62")
    k(f"s_mul_i32 s54, s54, {32*3456}")
    k("s_mul_i32 s55, s11, 224")
    k("s_add_u32 s54, s54, s55")
    k("s_sub_u32 s55, 3456, s55")
    k("v_mov_b32 v23, 0x7fffffff")
    VRD = 152
    for i in range(7):
        k(f"v_add_u32 v18, {64*i}, v0")
        k("v_mul_hi_u32 v19, v18, s53")
        k("v_mul_u32_u24 v20, 14, v19")
        k("v_sub_u32 v18, v18, v20")
        k("v_lshlrev_b32 v18, 4, v18")
        k("v_cmp_gt_u32 vcc, s55, v18")
        k("v_mul_u32_u24 v20, 240, v19")
        k(f"v_add3_u32 v{VRD+i}, v20, v18, s52")
        k("v_mul_u32_u24 v20, 3456, v19")
        k(f"v_add3_u32 v{VST+i}, v20, v18, s54")
        k(f"v_cndmask_b32 v{VST+i}, v23, v{VST+i}, vcc")
    k("s_waitcnt lgkmcnt(0)")
    srd(k, 28, 20, 2048 * 1728 * 2)
    if P.get("stamp"): srd(k, 44, 24, WS_BYTES)
    k("s_mov_b32 s56, 0"); k("s_mov_b32 s57, 0")
    def newstage():
        k(f"v_add_u32 v{VXC}, s56, v{VXR}")
        k(f"v_add_u32 v{VWC}, s57, v{VWR}")
        k("s_add_u32 s56, s56, 16384")
        k(f"s_cmp_eq_u32 s56, {NX*16384}")
        k("s_cselect_b32 s56, 0, s56")
        k("s_add_u32 s57, s57, 14336")
        k(f"s_cmp_eq_u32 s57, {NW*14336}")
        k("s_cselect_b32 s57, 0, s57")
    def reads(ks):
        f = FR + ks * 36
        out = [f"ds_read_b128 v[{f+28+u*4}:{f+31+u*4}], v{VXC} offset:{u*2048 + ks*1024}" for u in range(2)]
        out += [f"ds_read_b128 v[{f+b*4}:{f+b*4+3}], v{VWC} offset:{ks*7168 + b*1024}" for b in range(7)]
        return out
    def mfmas(ks, fill, waits):
        f = FR + ks * 36
        issued = 0
        for b in range(7):
            for u in range(2):
                if waits and u == 0: k(f"s_waitcnt lgkmcnt({min(15, 6 - b + issued)})")
                a = ACC + (u * 7 + b) * 4
                k(f"v_mfma_f32_16x16x32_bf16 v[{a}:{a+3}], v[{f+b*4}:{f+b*4+3}], v[{f+28+u*4}:{f+31+u*4}], v[{a}:{a+3}]")
                if fill: k(fill.pop(0)); issued += 1
    newstage()
    k("s_mov_b32 s65, 0")
    k("s_barrier")
    stamp_mid(k, P, 0)
    for x in reads(0): k(x)
    k.label(f"{pre}_cloop")
    mfmas(0, reads(1), True)
    k("s_cmp_eq_u32 s65, 9")
    k(f"s_cbranch_scc1 {pre}_cdone")
    newstage()
    k("s_add_u32 s65, s65, 1")
    k("s_waitcnt lgkmcnt(0)")
    k("s_barrier")
    mfmas(1, reads(0), False)
    k(f"s_branch {pre}_cloop")
    k.label(f"{pre}_cdone")
    mfmas(1, [], True)
    stamp_mid(k, P, 1)
    k("s_nop 4")
    T0 = FR
    for p in range(4):
        for u in range(2):
            t = T0 + (p * 2 + u) * 4
            a0 = ACC + (u * 7 + 2 * p) * 4; a1 = a0 + 4
            k(f"v_cvt_pk_bf16_f32 v{t}, v{a0}, v{a0+1}")
            k(f"v_cvt_pk_bf16_f32 v{t+1}, v{a0+2}, v{a0+3}")
            if p < 3:
                k(f"v_cvt_pk_bf16_f32 v{t+2}, v{a1}, v{a1+1}")
                k(f"v_cvt_pk_bf16_f32 v{t+3}, v{a1+2}, v{a1+3}")
                k(f"ds_write_b128 v{VEW}, v[{t}:{t+3}] offset:{u*16*240 + p*64}")
            else:
                k(f"ds_write_b64 v{VER}, v[{t}:{t+1}] offset:{u*16*240 + 192}")
    for i in range(7): k(f"ds_read_b128 v[{ACC+i*4}:{ACC+i*4+3}], v{VRD+i}")
    for i in range(7):
        k(f"s_waitcnt lgkmcnt({6-i})")
        k(f"buffer_store_dwordx4 v[{ACC+i*4}:{ACC+i*4+3}], v{VST+i}, s[28:31], 0 offen {stf}")
    stamp_mid(k, P, 2)
    stamp_end(k, P, 1, 44, 112, 62)

def gen_k2(P):
    name = "quip_s2_kernel"
    k = K(name)
    k("s_cmp_ge_u32 s2, 256")
    k("s_cbranch_scc1 L_k2_end")
    k("s_load_dwordx2 s[20:21], s[0:1], 48")
    k("s_load_dwordx2 s[24:25], s[0:1], 64")
    stamp_begin(k, P)
    k("v_lshrrev_b32 v1, 6, v0")
    k("v_and_b32 v0, 63, v0")
    k("v_readfirstlane_b32 s3, v1")
    k("s_and_b32 s8, s2, 7")
    k("s_lshr_b32 s9, s2, 3")
    k("s_lshr_b32 s10, s8, 1")
    k("s_lshl_b32 s10, s10, 2")
    k("s_and_b32 s12, s9, 3")
    k("s_add_u32 s10, s10, s12")
    k("s_and_b32 s11, s8, 1")
    k("s_lshl_b32 s11, s11, 3")
    k("s_lshr_b32 s9, s9, 2")
    k("s_add_u32 s11, s11, s9")
    k("s_add_u32 s50, s12, s9")
    k(f"s_and_b32 s50, s50, {P.get('crm', 0)}")
    k(f"s_mul_i32 s50, s50, {P.get('crot', 0)}")
    phase_c(k, P, "L_c")
    k.label("L_k2_end")
    k("s_endpgm")
    return name, k.text(), desc(name, 160, 102, 160), (256, 512, 163840)

def kernels(P):
    return [gen4.gen_k1(P), gen_k2(P)]
def gen(P):
    return assemble(kernels(P))
is_wv = gen4.is_wv; is_xr = gen4.is_xr

if __name__ == "__main__":
    import json
    P = json.loads(sys.argv[2]) if len(sys.argv) > 2 else {}
    open(sys.argv[1], "w").write(gen(P))
```

```python
import sys, json
from asmlib import *
import importlib, os
G = importlib.import_module(os.environ.get("GEN", "gen2"))

def gen_probe(P, what, mult, nk=2):
    name = "probe_kernel"
    k = K(name)
    k("s_cmp_ge_u32 s2, 1")
    k("s_cbranch_scc1 L_pr_end")
    k("s_load_dwordx2 s[6:7], s[0:1], 64")
    k("s_memrealtime s[40:41]")
    k("s_waitcnt lgkmcnt(0)")
    srd(k, 16, 6, G.WS_BYTES)
    k("v_lshlrev_b32 v1, 5, v0")
    fk, ff = 0, 0
    if what.startswith("max:") or what.startswith("min:"):
        _, fk, ff = what.split(":"); fk = int(fk); ff = int(ff)
    ismin = what.startswith("min:")
    for kid in range(nk):
        k("v_mov_b32 v20, -1"); k("v_mov_b32 v21, 0"); k(f"v_mov_b32 v22, {-1 if ismin else 0}")
        for i in range(16):
            k(f"s_mov_b32 s30, {G.STAMP_OFF + kid*0x10000 + i*2048}")
            k(f"buffer_load_dwordx4 v[4:7], v1, s[16:19], s30 offen")
            k(f"buffer_load_dwordx4 v[8:11], v1, s[16:19], s30 offen offset:16")
            k("s_waitcnt vmcnt(0)")
            k("v_min_u32 v20, v20, v5")
            k("v_max_u32 v21, v21, v6")
            k(f"v_{'min' if ismin else 'max'}_u32 v22, v22, v{4+ff}")
        k(f"s_mov_b32 s{20+2*kid}, -1"); k(f"s_mov_b32 s{21+2*kid}, 0")
        if kid == fk: k(f"s_mov_b32 s24, {-1 if ismin else 0}")
        for l in range(64):
            k(f"v_readlane_b32 s31, v20, {l}")
            k(f"v_readlane_b32 s32, v21, {l}")
            k(f"v_readlane_b32 s33, v22, {l}")
            k("s_nop 1")
            k(f"s_min_u32 s{20+2*kid}, s{20+2*kid}, s31")
            k(f"s_max_u32 s{21+2*kid}, s{21+2*kid}, s32")
            if kid == fk: k(f"s_{'min' if ismin else 'max'}_u32 s24, s24, s33")
    clock = "s_memrealtime"
    if what == "k1span": k("s_sub_u32 s25, s21, s20")
    elif what == "gap": k("s_sub_u32 s25, s22, s21")
    elif what == "k2span": k("s_sub_u32 s25, s23, s22")
    elif what == "tail": k("s_sub_u32 s25, s40, s23")
    elif what == "none": k("s_mov_b32 s25, 0")
    elif what.endswith(":1") and what.startswith("max:"):
        k(f"s_sub_u32 s25, s24, s{20 + 2*fk}")
    else:
        k(f"s_mul_hi_u32 s25, s24, {G.magic(24)}")
    k(f"s_mul_i32 s25, s25, {mult}")
    k("s_min_u32 s25, s25, 100000")
    k("s_memrealtime s[42:43]")
    k("s_waitcnt lgkmcnt(0)")
    k.label("L_pr_spin")
    k("s_memrealtime s[44:45]")
    k("s_waitcnt lgkmcnt(0)")
    k("s_sub_u32 s46, s44, s42")
    k("s_cmp_lt_u32 s46, s25")
    k("s_cbranch_scc1 L_pr_spin")
    k.label("L_pr_end")
    k("s_endpgm")
    return name, k.text(), desc(name, 32, 64), (1, 64, 0)

def gen(P, what, mult=4):
    P = dict(P); P["stamp"] = 1
    ks = G.kernels(P) + [gen_probe(P, what, mult)]
    return G.assemble(ks)

if __name__ == "__main__":
    P = json.loads(sys.argv[1])
    for i, w in enumerate(sys.argv[2:]):
        open(f"p_{i}.s", "w").write(gen(P, w))
```

```python
import sys
from asmlib import *
from gen import magic, VM, stamp_begin, stamp_mid, stamp_end, XRF_OFF, WVF_OFF, STAMP_OFF, WS_BYTES, assemble
import gen as G1

AQ_OFF = 0x600000
AQ_OFF = 0x900000
SYNC_OFF = 0xC00000
XSTG = 49152
SPIN_MAX = 1 << 20

def poll_loop(k, name, load, cmp_lines, cnt="s80", sleep=0, wait="vmcnt(0)"):
    k(f"s_mov_b32 {cnt}, 0")
    k.label(f"{name}")
    if sleep: k(f"s_sleep {sleep}")
    k(load)
    k(f"s_add_u32 {cnt}, {cnt}, 1")
    k(f"s_cmp_ge_u32 {cnt}, {SPIN_MAX}")
    k(f"s_cbranch_scc1 {name}_done")
    k(f"s_waitcnt {wait}")
    for l in cmp_lines: k(l)
    k(f"s_cbranch_scc0 {name}")
    k.label(f"{name}_done")

def wv_role(k, P):
    vf = P.get("v_flags", ""); stf = P.get("k1_stflags", "")
    NA = P.get("NA", 6); NB = P.get("NB", 12)
    ARING = 0; BRING = NA * 10240
    assert BRING + NB * 8192 <= 163840 and NB * 4 <= 60
    B0 = P.get("B0", 2)
    HOLD = P.get("hold")
    k("s_lshr_b32 s53, s4, 1")
    k("s_lshl_b32 s70, s53, 3")
    k("s_add_u32 s71, s70, 6")
    k("s_lshl_b32 s52, s53, 1")
    k("s_add_u32 s52, s52, 32")
    k("s_bitcmp1_b32 s4, 0")
    k("s_cselect_b32 s71, s52, s71")
    k("s_cselect_b32 s52, 3, 0")
    k("s_add_u32 s70, s70, s52")
    k("s_and_b32 s62, s3, 3")
    k("s_cmp_ge_u32 s3, 4")
    k("s_cbranch_scc1 L_wv_cons")
    H = P.get("H", 13)
    k(f"s_mul_i32 s68, s51, {P.get('rb', 2)}")
    k("s_lshr_b32 s52, s50, 1")
    k(f"s_mul_i32 s52, s52, {P.get('ra', 6)}")
    k("s_add_u32 s68, s68, s52")
    k(f"s_mul_hi_u32 s52, s68, {magic(H)}")
    k(f"s_mul_i32 s52, s52, {H}")
    k("s_sub_u32 s68, s68, s52")
    k("s_mov_b32 s64, s68")
    k(f"s_and_b32 s52, s50, {P.get('hm', 1)}")
    k("s_cmp_lg_u32 s52, 0")
    k(f"s_cselect_b32 s66, {H}, 0")
    k(f"s_cselect_b32 s67, {27-H}, {H}")
    k("s_mov_b32 s69, s67")
    def next_chunk():
        k("s_add_u32 s57, s66, s68")
        k("s_add_u32 s68, s68, 1")
        k("s_cmp_eq_u32 s68, s67")
        k("s_cselect_b32 s68, 0, s68")
        k("s_sub_u32 s69, s69, 1")
        k("s_cmp_eq_u32 s69, 0")
        k(f"s_cselect_b32 s52, {H}, 0")
        k("s_cselect_b32 s68, s64, s68")
        k(f"s_cselect_b32 s54, {H ^ (27-H)}, 0")
        k("s_xor_b32 s66, s66, s52")
        k("s_xor_b32 s67, s67, s54")
    k("s_cmp_ge_u32 s62, 2")
    k("s_cbranch_scc1 L_wv_bl")

    def dequant_part(ninstr, rowbase_s, rows_per_wave, widx_s, j0, grp_s, first_reg=32):
        R = first_reg
        k("v_lshrrev_b32 v24, 4, v0")
        k("v_and_b32 v25, 15, v0")
        k("v_mul_u32_u24 v26, 6912, v24")
        k("v_lshl_add_u32 v26, v25, 4, v26")
        k(f"s_lshl_b32 s52, {rowbase_s}, 4")
        k(f"s_mul_i32 s55, {widx_s}, {rows_per_wave}")
        k("s_add_u32 s52, s52, s55")
        k("s_mul_i32 s52, s52, 6912")
        k("s_lshl_b32 s54, s5, 8")
        k("s_add_u32 s52, s52, s54")
        k("v_add_u32 v4, s52, v26")
        for m in range(1, ninstr): k(f"v_add_u32 v{4+m}, {m*4*6912}, v4")
        k(f"s_mul_i32 s52, {grp_s}, 3456")
        k("s_lshl_b32 s54, s5, 7")
        k("s_add_u32 s52, s52, s54")
        k("v_lshl_add_u32 v8, v25, 3, s52")
        k("s_waitcnt lgkmcnt(0)")
        srd(k, 28, 10, 640 * 1728 * 4)
        srd(k, 36, 12, 5 * 1728 * 2)
        srd(k, 40, 14, 5 * 1728 * 2)
        for m in range(ninstr): k(f"buffer_load_dwordx4 v[{R+4*m}:{R+4*m+3}], v{4+m}, s[28:31], 0 offen")
        k("buffer_load_dwordx2 v[10:11], v8, s[36:39], 0 offen")
        k("buffer_load_dwordx2 v[12:13], v8, s[40:43], 0 offen")
        srd(k, 44, 24, WS_BYTES)
        k("v_lshrrev_b32 v26, 3, v25")
        k("v_mul_u32_u24 v26, 5120, v26")
        k("v_bfe_u32 v27, v25, 1, 2")
        k("v_lshl_add_u32 v26, v27, 8, v26")
        k("v_and_b32 v27, 1, v25")
        k("v_lshl_add_u32 v26, v27, 3, v26")
        k("v_lshrrev_b32 v27, 1, v25")
        for m in range(ninstr):
            k(f"s_add_u32 s52, s55, {4*m}")
            k(f"v_add_u32 v28, s52, v24")
            k("v_xor_b32 v28, v28, v27")
            k("v_and_b32 v29, 15, v28")
            k("v_lshrrev_b32 v28, 4, v28")
            k("v_lshlrev_b32 v28, 10, v28")
            k("v_lshl_add_u32 v28, v29, 4, v28")
            k(f"v_add_u32 v{4+m}, v28, v26")
    def dequant_finish(ninstr, j0, first_reg=32):
        R = first_reg
        k("s_waitcnt vmcnt(0)")
        for i in range(2):
            k(f"v_lshlrev_b32 v{14+2*i}, 16, v{10+i}"); k(f"v_and_b32 v{15+2*i}, 0xffff0000, v{10+i}")
            k(f"v_lshlrev_b32 v{18+2*i}, 16, v{12+i}"); k(f"v_and_b32 v{19+2*i}, 0xffff0000, v{12+i}")
        for m in range(ninstr):
            for i in range(4): k(f"v_cvt_f32_i32 v{R+4*m+i}, v{R+4*m+i}")
        for i in range(4): k(f"v_mul_f32 v{18+i}, -v{18+i}, v{14+i}")
        for m in range(ninstr):
            r = R + 4 * m
            for i in range(4): k(f"v_fma_f32 v{r+i}, v{r+i}, v{14+i}, v{18+i}")
            k(f"v_cvt_pk_bf16_f32 v{r}, v{r}, v{r+1}")
            k(f"v_cvt_pk_bf16_f32 v{r+1}, v{r+2}, v{r+3}")
            k(f"ds_write_b64 v{4+m}, v[{r}:{r+1}] offset:{ARING + j0*1024}")
        k("s_waitcnt lgkmcnt(0)")
        k("s_barrier")

    k("s_lshr_b32 s56, s71, 3")
    dequant_part(4, "s71", 16, "s62", 3, "s56")
    k(f"s_mul_i32 s52, s4, {27*10240}")
    k("s_mul_i32 s55, s62, 5120")
    k("s_add_u32 s52, s52, s55")
    k(f"s_add_u32 s52, s52, {AQ_OFF}")
    k("v_lshlrev_b32 v9, 4, v0")
    k("v_add_u32 v9, s52, v9")
    k("v_add_u32 v30, 4096, v9")
    if ARING: k(f"s_add_u32 s55, s55, {ARING}")
    k("s_mov_b32 s56, 0")
    dequant_finish(4, 3)
    def issueA():
        next_chunk()
        k("s_mul_i32 s58, s57, 10240")
        k("s_add_u32 m0, s55, s56")
        k("s_add_u32 s56, s56, 10240")
        for j in range(4): k(f"buffer_load_dwordx4 v9, s[44:47], s58 offen offset:{j*1024} sc1 lds")
        k("s_add_u32 m0, m0, 4096")
        k(f"s_cmp_eq_u32 s56, {NA*10240}")
        k(f"buffer_load_dwordx4 v30, s[44:47], s58 offen sc1 lds")
        k("s_cselect_b32 s56, 0, s56")
    if HOLD is not None: k("s_barrier")
    k("s_barrier")
    k("s_mov_b32 s65, 0")
    k.label("L_wv_a0")
    issueA()
    k("s_add_u32 s65, s65, 1")
    k(f"s_cmp_lt_u32 s65, {NA}")
    k("s_cbranch_scc1 L_wv_a0")
    k(f"s_waitcnt vmcnt({5*(NA-1)})")
    k("s_barrier")
    k.label("L_wv_a1")
    k(f"s_waitcnt vmcnt({5*(NA-2)})")
    k("s_barrier")
    issueA()
    k("s_add_u32 s65, s65, 1")
    k("s_cmp_lt_u32 s65, 27")
    k("s_cbranch_scc1 L_wv_a1")
    for r in range(NA - 2, -1, -1):
        k(f"s_waitcnt vmcnt({5*r})")
        k("s_barrier")
    k("s_endpgm")
    k.label("L_wv_bl")
    VB = 4
    k("s_and_b32 s62, s62, 1")
    k("v_lshrrev_b32 v24, 3, v0")
    k("v_and_b32 v25, 7, v0")
    k("v_mul_u32_u24 v26, 3456, v24")
    k("v_bfe_u32 v27, v0, 4, 1")
    k("v_lshlrev_b32 v27, 1, v27")
    k("v_xor_b32 v27, v25, v27")
    k("v_lshl_add_u32 v26, v27, 4, v26")
    k(f"s_mul_i32 s52, s62, {32*3456}")
    k("s_lshl_b32 s54, s5, 7")
    k("s_add_u32 s52, s52, s54")
    k(f"v_add_u32 v{VB}, s52, v26")
    k(f"v_xor_b32 v{VB+1}, 64, v{VB}")
    k(f"v_add_u32 v{VB+1}, {8*3456}, v{VB+1}")
    k(f"v_add_u32 v{VB+2}, {16*3456}, v{VB}")
    k(f"v_add_u32 v{VB+3}, {16*3456}, v{VB+1}")
    k("s_lshl_b32 s55, s62, 12")
    k(f"s_add_u32 s55, s55, {BRING}")
    k("s_mov_b32 s56, 0")
    k("s_mov_b32 s65, 0")
    k("s_waitcnt lgkmcnt(0)")
    srd(k, 32, 18, 1728 * 1728 * 2)
    def issueB():
        next_chunk()
        k(f"s_mul_i32 s58, s57, {64*3456}")
        k("s_add_u32 m0, s55, s56")
        k("s_add_u32 s56, s56, 8192")
        for n in range(4):
            k(f"buffer_load_dwordx4 v{VB+n}, s[32:35], s58 offen {vf} lds")
            if n < 3:
                k("s_add_u32 m0, m0, 1024")
                k("s_nop 0" if n < 2 else f"s_cmp_eq_u32 s56, {NB*8192}")
        k("s_cselect_b32 s56, 0, s56")
    k.label("L_wv_b0")
    issueB()
    k("s_add_u32 s65, s65, 1")
    k(f"s_cmp_lg_u32 s65, {B0}")
    k("s_cbranch_scc1 L_wv_b0n")
    k("s_barrier")
    k.label("L_wv_b0n")
    if HOLD is not None:
        k(f"s_cmp_lg_u32 s65, {HOLD}")
        k("s_cbranch_scc1 L_wv_b1n")
        k("s_barrier")
        k.label("L_wv_b1n")
    k(f"s_cmp_lt_u32 s65, {NB}")
    k("s_cbranch_scc1 L_wv_b0")
    k("s_barrier")
    k(f"s_waitcnt vmcnt({4*(NB-1)})")
    k("s_barrier")
    k.label("L_wv_b1")
    k(f"s_waitcnt vmcnt({4*(NB-2)})")
    k("s_barrier")
    issueB()
    k("s_add_u32 s65, s65, 1")
    k("s_cmp_lt_u32 s65, 27")
    k("s_cbranch_scc1 L_wv_b1")
    for r in range(NB - 2, -1, -1):
        k(f"s_waitcnt vmcnt({4*r})")
        k("s_barrier")
    k("s_endpgm")
    k.label("L_wv_cons")
    dequant_part(3, "s70", 12, "s62", 0, "s53")
    srd(k, 48, 22, 256)
    k("s_cmp_lg_u32 s2, 0")
    k("s_cbranch_scc1 L_wv_nz")
    k("s_cmp_lg_u32 s62, 1")
    k("s_cbranch_scc1 L_wv_nz")
    k("v_lshlrev_b32 v28, 8, v0")
    k(f"v_add_u32 v28, {SYNC_OFF}, v28")
    k("v_mov_b32 v29, 0")
    k("buffer_store_dword v29, v28, s[44:47], 0 offen sc1")
    k("v_mov_b32 v28, 1")
    k("s_waitcnt vmcnt(0)")
    k("s_mov_b64 exec, 1")
    k("buffer_store_dword v28, v29, s[48:51], 0 offen sc1")
    k("s_mov_b64 exec, -1")
    k.label("L_wv_nz")
    VAR = 48; VBR = 49; VAC = 51; VBC = 52; VO = 54; VRED = 55
    FR = 64
    ACC = 120
    k("s_and_b32 s60, s62, 1")
    k("s_lshr_b32 s61, s62, 1")
    k("s_mul_i32 s52, s61, 5120")
    if ARING: k(f"s_add_u32 s52, s52, {ARING}")
    k(f"v_lshl_add_u32 v{VAR}, v0, 4, s52")
    k("s_lshl_b32 s63, s60, 1")
    k("s_add_u32 s63, s63, s61")
    k("v_bfe_u32 v28, v0, 2, 2")
    k("v_lshl_add_u32 v28, v24, 3, v28")
    k("v_lshlrev_b32 v28, 7, v28")
    k("v_bfe_u32 v29, v0, 3, 2")
    k("v_xor_b32 v29, s63, v29")
    k("v_lshl_add_u32 v28, v29, 5, v28")
    k("v_and_b32 v29, 3, v0")
    k("v_lshl_add_u32 v28, v29, 3, v28")
    k("s_lshl_b32 s52, s61, 12")
    k(f"s_add_u32 s52, s52, {BRING}")
    k(f"v_add_u32 v{VBR}, s52, v28")
    k(f"v_xor_b32 v{VBR+1}, 32, v{VBR}")
    k("s_lshl_b32 s52, s5, 2")
    k("s_add_u32 s52, s52, s63")
    k(f"s_mul_hi_u32 s54, s52, {magic(7)}")
    k("s_mul_i32 s64, s54, 7")
    k("s_sub_u32 s52, s52, s64")
    k("s_mul_i32 s54, s54, 143360")
    k(f"s_add_u32 s54, s54, {WVF_OFF}")
    k("v_bfe_u32 v28, v0, 2, 1")
    k("v_lshlrev_b32 v28, 10, v28")
    k("v_bfe_u32 v29, v0, 3, 1")
    k("v_lshl_add_u32 v28, v29, 6, v28")
    k("v_and_b32 v29, 3, v0")
    k("v_lshl_add_u32 v28, v29, 4, v28")
    k("v_lshlrev_b32 v29, 4, v25")
    k("s_cmp_eq_u32 s52, 6")
    k("s_cselect_b64 vcc, -1, 0")
    k("s_and_b32 s64, s52, 6")
    k("s_lshl_b32 s64, s64, 10")
    k("s_and_b32 s52, s52, 1")
    k("s_lshl_b32 s52, s52, 7")
    k("s_add_u32 s54, s54, s64")
    k("s_add_u32 s54, s54, s52")
    k("v_cndmask_b32 v28, v28, v29, vcc")
    k("v_lshl_add_u32 v28, v24, 8, v28")
    k(f"v_add_u32 v{VO}, s54, v28")
    for j in range(4):
        k(f"s_add_u32 s52, s70, {j}" if j < 3 else "s_mov_b32 s52, s71")
        k(f"s_lshr_b32 s{72+j}, s52, 1")
        k(f"s_mul_i32 s{72+j}, s{72+j}, 7168")
        k("s_and_b32 s52, s52, 1")
        k("s_lshl_b32 s52, s52, 3")
        k(f"s_add_u32 s{72+j}, s{72+j}, s52")
    for i in range(40): k(f"v_mov_b32 v{ACC+i}, 0")
    dequant_finish(3, 0)
    stamp_mid(k, P, 2)
    k("s_cmp_lg_u32 s62, 0")
    k("s_cbranch_scc1 " + ("L_wv_pub_done" if HOLD is None else "L_wv_pub_other"))
    k("v_xor_b32 v28, v0, v24")
    k("v_lshlrev_b32 v28, 4, v28")
    k("v_xor_b32 v29, 64, v28")
    for s in range(2):
        for j in range(5):
            r = FR + (s * 5 + j) * 4
            k(f"ds_read_b128 v[{r}:{r+3}], v{28+s} offset:{ARING + s*5120 + j*1024}")
    k("v_mov_b32 v31, 0")
    k("buffer_load_dword v30, v31, s[48:51], 0 offen sc1")
    k("s_mul_i32 s52, s4, 27")
    k("s_add_u32 s52, s52, s5")
    k("s_mul_i32 s52, s52, 10240")
    k(f"s_add_u32 s52, s52, {AQ_OFF}")
    k("v_lshl_add_u32 v26, v0, 4, s52")
    k("s_movk_i32 s54, 0x1000")
    k("s_movk_i32 s55, 0x2000")
    for n in range(10):
        r = FR + n * 4
        k(f"s_waitcnt lgkmcnt({9-n})")
        so = ["0", "s54", "s55"][n // 4]
        k(f"buffer_store_dwordx4 v[{r}:{r+3}], v26, s[44:47], {so} offen offset:{(n%4)*1024} sc1")
    k("s_lshl_b32 s52, s4, 8")
    k(f"s_add_u32 s52, s52, {SYNC_OFF}")
    k("v_mov_b32 v27, s52")
    k("v_mov_b32 v26, 1")
    k("s_mov_b64 exec, 1")
    k("s_waitcnt vmcnt(0)")
    k("v_readfirstlane_b32 s52, v30")
    k("s_cmp_lg_u32 s52, 0")
    k("s_cbranch_scc1 L_wv_rdy_done")
    poll_loop(k, "L_wv_rdy", "buffer_load_dword v30, v31, s[48:51], 0 offen sc1", ["v_readfirstlane_b32 s52, v30", "s_cmp_lg_u32 s52, 0"])
    k("buffer_atomic_add v26, v27, s[44:47], 0 offen sc1")
    stamp_mid(k, P, 3)
    if HOLD is not None: k("s_barrier")
    poll_loop(k, "L_wv_cnt", "buffer_load_dword v30, v27, s[44:47], 0 offen sc1", ["v_readfirstlane_b32 s52, v30", "s_cmp_ge_u32 s52, 27"])
    k("s_mov_b64 exec, -1")
    if HOLD is not None:
        k("s_branch L_wv_pub_done")
        k.label("L_wv_pub_other")
        k("s_barrier")
    k.label("L_wv_pub_done")
    k("s_barrier")
    stamp_mid(k, P, 1)
    k("s_mov_b32 s56, 0"); k("s_mov_b32 s57, 0")
    def newstage():
        k(f"v_add_u32 v{VAC}, s56, v{VAR}")
        k(f"v_add_u32 v{VBC}, s57, v{VBR}")
        k(f"v_add_u32 v{VBC+1}, s57, v{VBR+1}")
        k("s_add_u32 s56, s56, 10240")
        k(f"s_cmp_eq_u32 s56, {NA*10240}")
        k("s_cselect_b32 s56, 0, s56")
        k("s_add_u32 s57, s57, 8192")
        k(f"s_cmp_eq_u32 s57, {NB*8192}")
        k("s_cselect_b32 s57, 0, s57")
    def reads(fb):
        f = FR + fb * 28
        out = []
        for u in range(2):
            for sec in range(2):
                out.append(f"ds_read_b64_tr_b16 v[{f+20+u*4+sec*2}:{f+21+u*4+sec*2}], v{VBC+u} offset:{sec*512}")
        for j in range(5):
            out.append(f"ds_read_b128 v[{f+j*4}:{f+j*4+3}], v{VAC} offset:{j*1024}")
        return out
    def mfmas(fb, fill):
        f = FR + fb * 28
        for j in range(5):
            for u in range(2):
                a = ACC + (u * 5 + j) * 4
                if fill: k(fill.pop(0))
                k(f"v_mfma_f32_16x16x32_bf16 v[{a}:{a+3}], v[{f+j*4}:{f+j*4+3}], v[{f+20+u*4}:{f+23+u*4}], v[{a}:{a+3}]")
    newstage()
    k("s_barrier")
    for x in reads(0): k(x)
    k("s_mov_b32 s65, 0")
    k.label("L_wv_cloop")
    for fb in range(2):
        newstage()
        if fb == 1:
            k("s_add_u32 s65, s65, 1")
        k("s_waitcnt lgkmcnt(0)")
        k("s_barrier")
        mfmas(fb, reads(fb ^ 1))
    k("s_cmp_lt_u32 s65, 13")
    k("s_cbranch_scc1 L_wv_cloop")
    free = [s for s in range(NA) if s != 26 % NA]
    red = None
    for s in free:
        if s + 1 in free: red = ARING + s * 10240; break
    k("s_mul_i32 s52, s62, 5120")
    k(f"s_add_u32 s52, s52, {red}")
    k(f"v_lshl_add_u32 v{VRED}, v0, 4, s52")
    k("s_xor_b32 s52, s62, 2")
    k("s_mul_i32 s52, s52, 5120")
    k(f"s_add_u32 s52, s52, {red}")
    k(f"v_lshl_add_u32 v{VRED+1}, v0, 4, s52")
    k("s_waitcnt lgkmcnt(0)")
    f = FR
    for u in (1, 0):
        for j in range(5):
            a = ACC + (u * 5 + j) * 4
            k(f"v_mfma_f32_16x16x32_bf16 v[{a}:{a+3}], v[{f+j*4}:{f+j*4+3}], v[{f+20+u*4}:{f+23+u*4}], v[{a}:{a+3}]")
    stamp_mid(k, P, 0)
    k("s_nop 2")
    for j in range(5):
        a = ACC + (5 + j) * 4
        k(f"ds_write_b128 v{VRED}, v[{a}:{a+3}] offset:{j*1024}")
    k("s_waitcnt lgkmcnt(0)")
    k("s_barrier")
    for j in range(5): k(f"ds_read_b128 v[{FR+28+j*4}:{FR+28+j*4+3}], v{VRED+1} offset:{j*1024}")
    for j in range(5):
        k(f"s_waitcnt lgkmcnt({4-j})")
        for i in range(4): k(f"v_add_f32 v{ACC+j*4+i}, v{ACC+j*4+i}, v{FR+28+j*4+i}")
        t = FR + j * 2 + (2 if j >= 3 else 0)
        k(f"v_cvt_pk_bf16_f32 v{t}, v{ACC+j*4}, v{ACC+j*4+1}")
        k(f"v_cvt_pk_bf16_f32 v{t+1}, v{ACC+j*4+2}, v{ACC+j*4+3}")
        if j < 3: k(f"buffer_store_dwordx2 v[{t}:{t+1}], v{VO}, s[44:47], s{72+j} offen {stf}")
        if j == 4: k(f"buffer_store_dwordx4 v[{FR+8}:{FR+11}], v{VO}, s[44:47], s75 offen {stf}")
    stamp_end(k, P, 0, 44, 32, 62)
    k("s_endpgm")

def xr_orders(P):
    mode = P.get("xorder", "stag")
    segs = [[0, 1, 2, 3], [4, 5, 6, 7], [8, 9]]
    out = []
    for c in range(4):
        if mode == "lock": o = list(range(10))
        elif mode == "lock1":
            sg = [[1, 2, 3, 4], [5, 6, 7, 8], [9]]
            o = [0, sg[0][c]]
            for si in range(3):
                oth = [sg[0][(c + j) % 4] for j in range(1, 4)] if si == 0 else [x for i, x in enumerate(sg[si]) if i != c]
                if si + 1 < 3 and c < len(sg[si + 1]): oth.insert(min(c, len(oth)), sg[si + 1][c])
                o += oth
        elif mode == "l6":
            o = [0, 1, 2, 3, 4, 5]; o.insert(2 + c, 6 + c); o += [6 + i for i in range(4) if i != c]
        elif mode == "l6h":
            h = c & 1
            o = [[0, 1, 2, 6, 3, 4, 8, 5, 7, 9], [0, 1, 2, 3, 7, 4, 5, 9, 6, 8]][h]
        elif mode == "rot5":
            o = [(5 * (c & 1) + i) % 10 for i in range(10)]
        elif mode == "half":
            h = c & 1
            o = [[0, 1, 2, 4, 3, 6, 5, 8, 7, 9], [1, 0, 3, 2, 5, 4, 7, 6, 9, 8]][h]
        elif mode == "lock2":
            sg = [[2, 3, 4, 5], [6, 7, 8, 9]]
            o = [c & 1, sg[0][c], (c & 1) ^ 1]
            oth = [sg[0][(c + j) % 4] for j in range(1, 4)]
            oth.insert(min(c, 3), sg[1][c]); o += oth
            o += [x for i, x in enumerate(sg[1]) if i != c]
        else:
            div = {"stag": 1, "stag2": 2, "stag0": 100}[mode]
            o = [c]
            for si in range(3):
                if si == 0: oth = [(c + j) % 4 for j in range(1, 4)]
                else: oth = [x for x in segs[si] if (x & 3) != c]
                if si + 1 < 3 and c < len(segs[si + 1]):
                    oth.insert(min(c // div, len(oth)), segs[si + 1][c])
                o += oth
        assert sorted(o) == list(range(10))
        out.append(o)
    return out

def xr_role(k, P):
    xf = P.get("x_flags", ""); uf = P.get("u_flags", ""); stf = P.get("k1_stflags", "")
    k("s_and_b32 s62, s3, 3")
    k("s_cmp_ge_u32 s3, 4")
    k("s_cbranch_scc1 L_xr_cons")
    tabs = [sum(x << (4 * i) for i, x in enumerate(o)) for o in xr_orders(P)]
    k(f"s_mov_b32 s66, {hex(tabs[0] & 0xffffffff)}")
    k(f"s_mov_b32 s67, {hex(tabs[0] >> 32)}")
    for c in range(1, 4):
        k(f"s_cmp_eq_u32 s50, {c}")
        k(f"s_cselect_b32 s66, {hex(tabs[c] & 0xffffffff)}, s66")
        k(f"s_cselect_b32 s67, {hex(tabs[c] >> 32)}, s67")
    VX = 4; VU = 12
    k("v_lshrrev_b32 v28, 3, v0")
    k("v_and_b32 v29, 7, v0")
    k("v_lshrrev_b32 v30, 4, v0")
    k("v_xor_b32 v29, v29, v30")
    k("v_mul_u32_u24 v28, 1280, v28")
    k("v_lshl_add_u32 v28, v29, 4, v28")
    k("s_lshl_b32 s51, s4, 2")
    k("s_add_u32 s51, s51, s62")
    k(f"s_mul_i32 s52, s51, {64*1280}")
    k(f"v_add_u32 v{VX}, s52, v28")
    k(f"v_xor_b32 v{VX+1}, 64, v{VX}")
    k(f"v_add_u32 v{VX+1}, {8*1280}, v{VX+1}")
    for i in range(2, 8): k(f"v_add_u32 v{VX+i}, {16*1280}, v{VX+i-2}")
    k("v_and_b32 v29, 15, v0")
    k("v_lshlrev_b32 v31, 2, v30")
    k("v_xor_b32 v29, v29, v31")
    k("v_mul_u32_u24 v28, 1280, v30")
    k("v_lshl_add_u32 v28, v29, 4, v28")
    k(f"s_mul_i32 s52, s62, {16*1280}")
    k("s_lshl_b32 s53, s5, 8")
    k("s_add_u32 s52, s52, s53")
    k(f"v_add_u32 v{VU}, s52, v28")
    for i in range(1, 4): k(f"v_add_u32 v{VU+i}, {4*1280*i}, v{VU}")
    k("s_lshl_b32 s55, s62, 13")
    k("s_lshl_b32 s56, s62, 12")
    k("s_add_u32 s56, s56, 32768")
    k("s_mov_b32 s60, 0")
    k("s_mov_b32 s65, 0")
    k("s_waitcnt lgkmcnt(0)")
    srd(k, 28, 8, 2048 * 640 * 2)
    srd(k, 32, 16, 640 * 640 * 2)
    k.label("L_xr_lloop")
    k("s_and_b32 s57, s66, 15")
    k("s_lshr_b64 s[66:67], s[66:67], 4")
    k("s_add_u32 m0, s56, s60")
    k("s_lshl_b32 s58, s57, 7")
    k(f"s_mul_i32 s59, s57, {64*1280}")
    for i in range(4):
        k(f"buffer_load_dwordx4 v{VU+i}, s[32:35], s59 offen {uf} lds")
        k("s_add_u32 m0, m0, 1024" if i < 3 else "s_add_u32 m0, s55, s60")
        k("s_nop 0")
    for i in range(8):
        k(f"buffer_load_dwordx4 v{VX+i}, s[28:31], s58 offen {xf} lds")
        if i < 7:
            k("s_add_u32 m0, m0, 1024"); k("s_nop 0")
    k(f"s_add_u32 s60, s60, {XSTG}")
    k(f"s_cmp_eq_u32 s60, {3*XSTG}")
    k("s_cselect_b32 s60, 0, s60")
    k("s_add_u32 s65, s65, 1")
    k("s_cmp_eq_u32 s65, 1")
    k("s_cbranch_scc1 L_xr_lloop")
    k("s_waitcnt vmcnt(12)")
    k("s_barrier")
    k("s_cmp_lt_u32 s65, 10")
    k("s_cbranch_scc1 L_xr_lloop")
    k("s_waitcnt vmcnt(0)")
    k("s_barrier")
    k("s_endpgm")
    k.label("L_xr_cons")
    import gen3
    kk = K("tmp"); gen3.xr_role(kk, P)
    i0 = kk.lines.index("L_xr_cons:")
    k.lines += kk.lines[i0 + 1:]

def gen_k1(P):
    name = "quip_s1_kernel"
    k = K(name)
    k("s_cmp_ge_u32 s2, 256")
    k("s_cbranch_scc1 L_k1_end")
    k("s_load_dwordx16 s[8:23], s[0:1], 0")
    k("s_load_dwordx2 s[24:25], s[0:1], 64")
    stamp_begin(k, P)
    k("v_lshrrev_b32 v1, 6, v0")
    k("v_and_b32 v0, 63, v0")
    k("v_readfirstlane_b32 s3, v1")
    k("s_and_b32 s4, s2, 1")
    k("s_bfe_u32 s5, s2, 0x20001")
    k("s_lshr_b32 s6, s2, 3")
    k("s_and_b32 s50, s6, 3")
    k("s_lshr_b32 s51, s6, 2")
    k("s_lshl_b32 s4, s4, 2")
    k("s_add_u32 s4, s4, s50")
    k("s_lshl_b32 s5, s5, 3")
    k("s_add_u32 s5, s5, s51")
    k("s_cmp_ge_u32 s5, 27")
    k("s_cbranch_scc1 L_k1_xr")
    wv_role(k, P)
    k.label("L_k1_xr")
    k("s_sub_u32 s5, s5, 27")
    k("s_add_u32 s50, s50, s5")
    k("s_and_b32 s50, s50, 3")
    xr_role(k, P)
    k.label("L_k1_end")
    k("s_endpgm")
    return name, k.text(), desc(name, 208, 102, 208), (256, 512, 163840)

def kernels(P):
    return [gen_k1(P), G1.gen_k2(P)]
def gen(P):
    return assemble(kernels(P))
def is_wv(b, P):
    return ((b >> 1) & 3) * 8 + (b >> 5) < 27
def is_xr(b, P):
    return ~is_wv(b, P)

if __name__ == "__main__":
    import json
    P = json.loads(sys.argv[2]) if len(sys.argv) > 2 else {}
    open(sys.argv[1], "w").write(gen(P))
```

```python
import sys
from asmlib import *
from gen import magic, VM, stamp_begin, stamp_mid, stamp_end, STAMP_OFF, WS_BYTES
from gen4 import xr_orders
XRF_OFF = 0; WVF_OFF = 0x300000; AQ_OFF = 0x900000; SYNC_OFF = 0xC00000; SYNC2_OFF = 0xC40000
TAGC = 0x5bd1e995
LCNT = 163840 - 64
NWV = {2: [32, 32, 32, 12], 4: [32, 32, 22, 22], 8: [27, 27, 27, 27]}
XSTG = 49152
SPIN_MAX = 1 << 20
FS = 8
KNAME = "standalone__weight_only_int_quip__prompt_kernel"

def poll_loop(k, name, load, cmp_lines, sleep=0, wait="vmcnt(0)"):
    k("s_mov_b32 s80, 0")
    k.label(name)
    if sleep: k(f"s_sleep {sleep}")
    k(load)
    k("s_add_u32 s80, s80, 1")
    k(f"s_cmp_ge_u32 s80, {SPIN_MAX}")
    k(f"s_cbranch_scc1 {name}_done")
    k(f"s_waitcnt {wait}")
    for l in cmp_lines: k(l)
    k(f"s_cbranch_scc0 {name}")
    k.label(f"{name}_done")

def lds_wait(k, name, n, sleep=0):
    poll_loop(k, name, "ds_read_b32 v30, v2", ["v_readfirstlane_b32 s52, v30", f"s_cmp_ge_u32 s52, {n}"], wait="lgkmcnt(0)", sleep=sleep)

def arrive(k):
    k("s_waitcnt vmcnt(0)")
    k("v_mov_b32 v7, 1")
    k("s_mov_b64 exec, 1")
    k("ds_add_u32 v2, v7")
    k("s_mov_b64 exec, -1")

def poll_sub(k, P):
    k.label("L_poll")
    k("s_mov_b32 exec_lo, -1")
    k("s_mov_b32 exec_hi, 0")
    poll_loop(k, "L_poll_l", "buffer_load_dword v30, v8, s[44:47], 0 offen sc1",
              ["v_readlane_b32 s59, v30, 31", f"s_add_u32 s52, s59, {TAGC}", "v_cmp_eq_u32 vcc, s52, v30", "s_mov_b32 s63, vcc_lo",
               "s_and_b32 s52, s63, s76", "s_cmp_eq_u32 s52, s76"], sleep=P.get("csleep", 0))
    k("s_mov_b64 exec, -1")
    k("s_setpc_b64 s[78:79]")

uid = [0]
def ensure(k):
    uid[0] += 1
    k("s_and_b32 s52, s63, s76")
    k("s_cmp_eq_u32 s52, s76")
    k(f"s_cbranch_scc1 L_ok{uid[0]}")
    k("s_call_b64 s[78:79], L_poll")
    k.label(f"L_ok{uid[0]}")

def bump(k):
    k("s_add_u32 s59, s59, 1")
    k("v_mov_b32 v30, s59")
    k("s_mov_b64 exec, 1")
    k("buffer_store_dword v30, v8, s[44:47], 0 offen offset:124 sc1")
    k("s_mov_b64 exec, -1")

def wv_role(k, P):
    NAD = 3; NB = P.get("NB", 11); TH = P.get("th", 4)
    ARING = 0; BRING = NAD * 20480; STG = BRING + NB * 8192
    RED = 124 * 1024
    assert STG + 10240 <= LCNT and NB % 2 == 1
    for i in (25, 26): assert not (BRING + (i % NB) * 8192 < RED + 20480 and RED < BRING + (i % NB + 1) * 8192)
    k("s_lshr_b32 s53, s4, 1")
    k("s_lshl_b32 s70, s53, 3")
    k("s_add_u32 s71, s70, 6")
    k("s_lshl_b32 s52, s53, 1")
    k("s_add_u32 s52, s52, 32")
    k("s_bitcmp1_b32 s4, 0")
    k("s_cselect_b32 s71, s52, s71")
    k("s_cselect_b32 s52, 3, 0")
    k("s_add_u32 s70, s70, s52")
    k(f"s_mul_i32 s68, s5, {P.get('on', 1)}")
    k(f"s_mul_i32 s52, s60, {P.get('oa', 7)}")
    k("s_add_u32 s68, s68, s52")
    k(f"s_mul_hi_u32 s52, s68, {magic(27)}")
    k("s_mul_i32 s52, s52, 27")
    k("s_sub_u32 s68, s68, s52")
    k("s_cmp_ge_u32 s3, 5")
    k("s_cbranch_scc1 L_wv_nodq")
    k("s_add_u32 s52, s70, s3")
    k("s_add_u32 s54, s71, s3")
    k("s_sub_u32 s54, s54, 3")
    k("s_cmp_ge_u32 s3, 3")
    k("s_cselect_b32 s52, s54, s52")
    k("v_lshrrev_b32 v24, 4, v0")
    k("v_and_b32 v25, 15, v0")
    k("v_mul_u32_u24 v26, 6912, v24")
    k("v_lshl_add_u32 v4, v25, 4, v26")
    k(f"s_mul_i32 s55, s52, {16*6912}")
    k("s_lshl_b32 s54, s68, 8")
    k("s_add_u32 s55, s55, s54")
    for m in range(1, 4): k(f"s_add_u32 s{55+m}, s55, {m*4*6912}")
    k("s_lshr_b32 s52, s52, 3")
    k("s_mul_i32 s52, s52, 3456")
    k("s_lshl_b32 s54, s68, 7")
    k("s_add_u32 s52, s52, s54")
    k("v_lshlrev_b32 v8, 3, v25")
    k("s_waitcnt lgkmcnt(0)")
    srd(k, 28, 10, 640 * 1728 * 4)
    R = 32
    for m in range(4): k(f"buffer_load_dwordx4 v[{R+4*m}:{R+4*m+3}], v4, s[28:31], s{55+m} offen")
    srd(k, 36, 12, 5 * 1728 * 2)
    srd(k, 40, 14, 5 * 1728 * 2)
    k("buffer_load_dwordx2 v[10:11], v8, s[36:39], s52 offen")
    k("buffer_load_dwordx2 v[12:13], v8, s[40:43], s52 offen")
    k("s_barrier")
    srd(k, 44, 24, WS_BYTES)
    k("v_lshrrev_b32 v27, 1, v25")
    k("v_lshlrev_b32 v26, 8, v27")
    k("v_and_b32 v28, 1, v25")
    k("v_lshl_add_u32 v26, v28, 3, v26")
    k("s_lshl_b32 s52, s3, 11")
    k(f"s_add_u32 s52, s52, {STG}")
    k("v_add_u32 v26, s52, v26")
    k("v_xor_b32 v27, v27, v24")
    k("v_lshl_add_u32 v4, v27, 4, v26")
    k("v_xor_b32 v5, 64, v4")
    k("v_xor_b32 v28, v0, v24")
    k("v_lshl_add_u32 v28, v28, 4, s52")
    k("v_xor_b32 v29, 64, v28")
    k("s_mul_i32 s52, s4, 27")
    k("s_add_u32 s52, s52, s68")
    k("s_mul_i32 s52, s52, 10240")
    k("s_lshl_b32 s54, s3, 10")
    k("s_add_u32 s52, s52, s54")
    k(f"s_add_u32 s52, s52, {AQ_OFF}")
    k("s_add_u32 s54, s52, 5120")
    k("v_lshlrev_b32 v9, 4, v0")
    k("s_waitcnt vmcnt(0)")
    for i in range(2):
        k(f"v_lshlrev_b32 v{14+2*i}, 16, v{10+i}"); k(f"v_and_b32 v{15+2*i}, 0xffff0000, v{10+i}")
        k(f"v_lshlrev_b32 v{18+2*i}, 16, v{12+i}"); k(f"v_and_b32 v{19+2*i}, 0xffff0000, v{12+i}")
    for i in range(4): k(f"v_mul_f32 v{18+i}, -v{18+i}, v{14+i}")
    for m in range(4):
        r = R + 4 * m
        for i in range(4): k(f"v_cvt_f32_i32 v{r+i}, v{r+i}")
        for i in range(4): k(f"v_fma_f32 v{r+i}, v{r+i}, v{14+i}, v{18+i}")
        k(f"v_cvt_pk_bf16_f32 v{r}, v{r}, v{r+1}")
        k(f"v_cvt_pk_bf16_f32 v{r+1}, v{r+2}, v{r+3}")
        k(f"ds_write_b64 v{4+(m&1)}, v[{r}:{r+1}] offset:{(m>>1)*128}")
    k("ds_read_b128 v[48:51], v28")
    k("ds_read_b128 v[52:55], v29 offset:1024")
    k("s_waitcnt lgkmcnt(1)")
    k("buffer_store_dwordx4 v[48:51], v9, s[44:47], s52 offen sc1")
    k("s_waitcnt lgkmcnt(0)")
    k("buffer_store_dwordx4 v[52:55], v9, s[44:47], s54 offen sc1")
    arrive(k)
    k("s_cmp_lt_u32 s3, 4")
    k("s_cbranch_scc1 L_wv_cons")
    k("s_branch L_wv_ld")
    k.label("L_wv_nodq")
    k("s_waitcnt lgkmcnt(0)")
    k("s_barrier")
    srd(k, 44, 24, WS_BYTES)
    k.label("L_wv_ld")
    VB = 12
    k("s_and_b32 s62, s3, 1")
    k("s_bfe_u32 s61, s3, 0x10001")
    k("v_lshrrev_b32 v24, 3, v0")
    k("v_and_b32 v25, 7, v0")
    k("v_mul_u32_u24 v26, 3456, v24")
    k("v_bfe_u32 v27, v0, 4, 1")
    k("v_lshlrev_b32 v27, 1, v27")
    k("v_xor_b32 v27, v25, v27")
    k("v_lshl_add_u32 v26, v27, 4, v26")
    k(f"s_mul_i32 s52, s62, {32*3456}")
    k("s_lshl_b32 s54, s5, 7")
    k("s_add_u32 s52, s52, s54")
    k(f"v_add_u32 v{VB}, s52, v26")
    k(f"v_xor_b32 v{VB+1}, 64, v{VB}")
    k(f"v_add_u32 v{VB+1}, {8*3456}, v{VB+1}")
    k(f"v_add_u32 v{VB+2}, {16*3456}, v{VB}")
    k(f"v_add_u32 v{VB+3}, {16*3456}, v{VB+1}")
    k("s_lshl_b32 s66, s62, 12")
    k(f"s_add_u32 s66, s66, {BRING}")
    srd(k, 32, 18, 1728 * 1728 * 2)
    def fireB():
        for n in range(4):
            k(f"buffer_load_dwordx4 v{VB+n}, s[32:35], s58 offen lds")
            if n < 3:
                k("s_add_u32 m0, m0, 1024"); k("s_nop 0")
    k("s_cmp_eq_u32 s61, 0")
    k("s_cbranch_scc1 L_wv_nopre")
    k("s_mov_b32 s57, s68")
    k("s_mov_b32 s56, s66")
    k("s_mov_b32 s65, 0")
    if P.get("xpf") is not None:
        XRX = P.get("xrx", 2)
        nw = NWV[XRX][3]; nmx = (32 - nw) // 5; H = 2 * nw
        xi = nmx * 4; per = xi + 10
        S0 = P["xpf"]; total = (P.get("xpe", 10) - S0) * per
        k(f"s_cmp_lt_u32 s7, {8 * (4 - XRX // 2)}")
        k("s_cbranch_scc1 L_wv_pre")
        srd(k, 36, 8, 2048 * 640 * 2)
        srd(k, 40, 16, 640 * 640 * 2)
        k("s_lshr_b32 s52, s7, 3")
        k(f"s_sub_u32 s52, s52, {4 - XRX // 2}")
        k(f"s_mul_i32 s52, s52, {256 * nmx * 1280}")
        k("s_lshr_b32 s53, s4, 2")
        k(f"s_mul_i32 s53, s53, {1024 * 1280}")
        k("s_add_u32 s72, s52, s53")
        k("v_mul_u32_u24 v20, 1280, v0")
        k("v_lshlrev_b32 v21, 7, v0")
        k("s_lshl_b32 s73, s6, 1")
        k("s_add_u32 s73, s73, s62")
        k.label("L_wv_pf")
        k(f"s_mul_hi_u32 s52, s73, {magic(per)}")
        k(f"s_mul_i32 s53, s52, {per}")
        k("s_sub_u32 s53, s73, s53")
        k(f"s_add_u32 s52, s52, {S0}")
        k(f"s_cmp_ge_u32 s53, {xi}")
        k("s_cbranch_scc1 L_wv_pfu")
        k(f"s_mul_i32 s53, s53, {64*1280}")
        k("s_lshl_b32 s52, s52, 7")
        k("s_add_u32 s52, s52, s53")
        k("s_add_u32 s52, s52, s72")
        k("buffer_load_dword v201, v20, s[36:39], s52 offen")
        k("s_branch L_wv_pfn")
        k.label("L_wv_pfu")
        k("s_mul_i32 s52, s52, 10")
        k("s_add_u32 s52, s52, s53")
        k(f"s_sub_u32 s52, s52, {xi}")
        k("s_lshl_b32 s52, s52, 13")
        k("buffer_load_dword v201, v21, s[40:43], s52 offen")
        k.label("L_wv_pfn")
        k(f"s_add_u32 s73, s73, {H}")
        k(f"s_cmp_lt_u32 s73, {total}")
        k(f"s_waitcnt vmcnt({P.get('pth', 1)})")
        k("s_cbranch_scc1 L_wv_pf")
    k.label("L_wv_pre")
    k("s_mov_b32 m0, s56")
    k(f"s_mul_i32 s58, s57, {64*3456}")
    fireB()
    k("s_add_u32 s57, s57, 1")
    k("s_cmp_eq_u32 s57, 27")
    k("s_cselect_b32 s57, 0, s57")
    k("s_add_u32 s56, s56, 8192")
    k("s_add_u32 s65, s65, 1")
    k(f"s_cmp_ge_u32 s65, {P.get('n1', 6)}")
    k("s_cbranch_scc1 L_wv_pre2")
    k(f"s_waitcnt vmcnt({TH})")
    k.label("L_wv_pre2")
    k(f"s_cmp_lt_u32 s65, {NB}")
    k("s_cbranch_scc1 L_wv_pre")
    k.label("L_wv_nopre")
    k(f"s_mul_i32 s52, s4, {27 << FS}")
    k(f"s_add_u32 s52, s52, {SYNC_OFF}")
    k(f"v_lshl_add_u32 v6, v0, {FS}, s52")
    k(f"s_lshl_b32 s53, s5, {FS}")
    k("s_add_u32 s52, s52, s53")
    k("v_lshl_add_u32 v8, v0, 2, s52")
    k("s_lshl_b32 s52, s5, 2")
    k(f"s_mul_hi_u32 s72, s52, {magic(7)}")
    k("s_add_u32 s52, s52, 3")
    k(f"s_mul_hi_u32 s73, s52, {magic(7)}")
    k("s_cmp_eq_u32 s72, s73")
    k("s_cselect_b32 s74, 0xffff, -1")
    k("v_bfe_u32 v18, v0, 4, 1")
    k("v_add_u32 v18, s72, v18")
    k("v_and_b32 v16, 15, v0")
    k("v_lshl_add_u32 v16, v16, 4, v18")
    k(f"v_lshlrev_b32 v16, {FS}, v16")
    k(f"v_add_u32 v16, {SYNC2_OFF}, v16")
    k("v_mul_u32_u24 v18, 7, v18")
    k("v_lshrrev_b32 v18, 2, v18")
    k("v_sub_u32 v18, s5, v18")
    k("v_lshl_add_u32 v17, v18, 5, v16")
    k("s_lshl_b32 s75, s4, 2")
    k("s_cmp_lg_u32 s3, 5")
    k("s_cbranch_scc1 L_wv_go")
    k("s_lshl_b32 s53, s68, 2")
    k("s_mov_b64 exec, 0x7ffffff")
    k("buffer_load_dword v11, v6, s[44:47], 0 offen offset:124 sc1")
    k("s_mov_b32 exec_lo, s74")
    k("buffer_load_dword v19, v16, s[44:47], 0 offen offset:124 sc1")
    k("s_mov_b32 exec_lo, 0x7ffffff")
    k("s_waitcnt vmcnt(1)")
    k(f"v_add_u32 v11, {TAGC}, v11")
    lds_wait(k, "L_wv_own", 5)
    k("buffer_store_dword v11, v6, s[44:47], s53 offen sc1")
    k("s_mov_b64 exec, -1")
    k.label("L_wv_go")
    k(f"s_mul_i32 s52, s4, {27*10240}")
    k("s_mul_i32 s55, s62, 5120")
    k("s_add_u32 s52, s52, s55")
    k(f"s_add_u32 s52, s52, {AQ_OFF}")
    k("v_lshl_add_u32 v9, v0, 4, s52")
    k("v_add_u32 v10, 4096, v9")
    k("s_mul_i32 s52, s61, 10240")
    k("s_add_u32 s55, s55, s52")
    k("s_add_u32 s57, s68, s61")
    k("s_add_u32 s57, s57, 1")
    k("s_sub_u32 s52, s57, 27")
    k("s_cselect_b32 s57, s57, s52")
    k(f"s_add_u32 s67, s57, {NB-1}")
    k("s_sub_u32 s52, s67, 27")
    k("s_cselect_b32 s67, s67, s52")
    k("s_lshl_b32 s69, s61, 13")
    k("s_cmp_lg_u32 s3, 4")
    k("s_cbranch_scc1 L_wv_np")
    k(f"s_lshl_b64 s[76:77], 15, s57")
    k("s_lshr_b64 s[78:79], s[76:77], 27")
    k("s_or_b32 s76, s76, s78")
    k("s_and_b32 s76, s76, 0x7ffffff")
    if P.get("ps", 16): k(f"s_sleep {P.get('ps', 16)}")
    k("s_call_b64 s[78:79], L_poll")
    k("v_mov_b32 v30, s63")
    k("ds_write_b32 v2, v30 offset:4")
    k("s_branch L_wv_np2")
    k.label("L_wv_np")
    poll_loop(k, "L_wv_lm", "ds_read_b32 v30, v2 offset:4", ["v_readfirstlane_b32 s63, v30", "s_cmp_lg_u32 s63, 0"], wait="lgkmcnt(0)", sleep=1)
    k.label("L_wv_np2")
    vm = VM()
    def prepA(D):
        k("s_lshl_b32 s76, 1, s57")
        ensure(k)
        k("s_mul_i32 s64, s57, 10240")
        k("s_add_u32 s57, s57, 2")
        k("s_sub_u32 s52, s57, 27")
        k("s_cselect_b32 s57, s57, s52")
        k(f"s_add_u32 m0, s55, {ARING + (D % NAD)*20480}")
    def fireA(D):
        for j in range(4): k(f"buffer_load_dwordx4 v9, s[44:47], s64 offen offset:{j*1024} sc1 lds")
        k("s_add_u32 m0, m0, 4096")
        k("s_nop 0")
        k("buffer_load_dwordx4 v10, s[44:47], s64 offen sc1 lds")
        for _ in range(5): vm.issue(("A", D))
    def prepB():
        k(f"s_mul_i32 s58, s67, {64*3456}")
        k("s_add_u32 s67, s67, 2")
        k("s_sub_u32 s52, s67, 27")
        k("s_cselect_b32 s67, s67, s52")
        k("s_add_u32 s56, s66, s69")
        k("s_add_u32 s69, s69, 16384")
        k(f"s_sub_u32 s52, s69, {NB*8192}")
        k("s_cselect_b32 s69, s69, s52")
    na = 0; nb = (NB - 1) // 2
    for _ in range(2):
        prepA(na); k("s_nop 0"); fireA(na); na += 1
    for D in range(13):
        lim = D - 1 + NAD if D >= 1 else NAD - 1
        la = [x for x in range(na, min(12, lim) + 1)][:1]
        lb = [nb] if (D >= 1 and nb <= 12) else []
        if lb: prepB()
        if la: prepA(la[0])
        k(f"s_waitcnt vmcnt({vm.wait_for(lambda t: t[1] <= D)})")
        k("s_barrier")
        if la: fireA(la[0])
        if lb:
            k("s_mov_b32 m0, s56"); k("s_nop 0"); fireB()
            for _ in range(4): vm.issue(("B", nb))
            nb += 1
        na += len(la)
    assert na == 13 and nb >= 13
    k("s_cmp_lg_u32 s3, 4")
    k("s_cbranch_scc1 L_wv_nobump")
    bump(k)
    k.label("L_wv_nobump")
    k("s_mov_b32 s53, 9")
    k("s_branch L_c_ld")
    k.label("L_wv_cons")
    VAR = 48; VBR = 49; VAC = 51; VBC = 52; VO = 54; VRED = 55; VARS = 57
    FR = 64; ACC = 120
    k("s_and_b32 s60, s3, 1")
    k("s_lshr_b32 s61, s3, 1")
    k("s_mul_i32 s52, s61, 5120")
    k(f"v_lshl_add_u32 v{VAR}, v0, 4, s52")
    k("s_lshl_b32 s54, s61, 2")
    k("v_or_b32 v28, s54, v24")
    k("v_xor_b32 v28, v28, v0")
    k("s_lshl_b32 s52, s61, 10")
    k(f"s_add_u32 s52, s52, {STG}")
    k(f"v_lshl_add_u32 v{VARS}, v28, 4, s52")
    k("s_lshl_b32 s63, s60, 1")
    k("s_add_u32 s63, s63, s61")
    k("v_bfe_u32 v28, v0, 2, 2")
    k("v_lshl_add_u32 v28, v24, 3, v28")
    k("v_lshlrev_b32 v28, 7, v28")
    k("v_bfe_u32 v29, v0, 3, 2")
    k("v_xor_b32 v29, s63, v29")
    k("v_lshl_add_u32 v28, v29, 5, v28")
    k("v_and_b32 v29, 3, v0")
    k("v_lshl_add_u32 v28, v29, 3, v28")
    k("s_lshl_b32 s52, s61, 12")
    k(f"s_add_u32 s52, s52, {BRING}")
    k(f"v_add_u32 v{VBR}, s52, v28")
    k(f"v_xor_b32 v{VBR+1}, 32, v{VBR}")
    k("s_lshl_b32 s52, s5, 2")
    k("s_add_u32 s52, s52, s63")
    k(f"s_mul_hi_u32 s54, s52, {magic(7)}")
    k("s_mul_i32 s64, s54, 7")
    k("s_sub_u32 s52, s52, s64")
    k("s_mul_i32 s54, s54, 143360")
    k(f"s_add_u32 s54, s54, {WVF_OFF}")
    k("v_bfe_u32 v28, v0, 2, 1")
    k("v_lshlrev_b32 v28, 10, v28")
    k("v_bfe_u32 v29, v0, 3, 1")
    k("v_lshl_add_u32 v28, v29, 6, v28")
    k("v_and_b32 v29, 3, v0")
    k("v_lshl_add_u32 v28, v29, 4, v28")
    k("v_lshlrev_b32 v29, 4, v25")
    k("s_cmp_eq_u32 s52, 6")
    k("s_cselect_b64 vcc, -1, 0")
    k("s_and_b32 s64, s52, 6")
    k("s_lshl_b32 s64, s64, 10")
    k("s_and_b32 s52, s52, 1")
    k("s_lshl_b32 s52, s52, 7")
    k("s_add_u32 s54, s54, s64")
    k("s_add_u32 s54, s54, s52")
    k("v_cndmask_b32 v28, v28, v29, vcc")
    k("v_lshl_add_u32 v28, v24, 8, v28")
    k(f"v_add_u32 v{VO}, s54, v28")
    for j in range(4):
        k(f"s_add_u32 s52, s70, {j}" if j < 3 else "s_mov_b32 s52, s71")
        k(f"s_lshr_b32 s{72+j}, s52, 1")
        k(f"s_mul_i32 s{72+j}, s{72+j}, 7168")
        k("s_and_b32 s52, s52, 1")
        k("s_lshl_b32 s52, s52, 3")
        k(f"s_add_u32 s{72+j}, s{72+j}, s52")
    for i in range(40): k(f"v_mov_b32 v{ACC+i}, 0")
    k("s_mul_i32 s52, s3, 5120")
    k(f"s_add_u32 s52, s52, {RED}")
    k(f"v_lshl_add_u32 v{VRED}, v0, 4, s52")
    k("s_xor_b32 s52, s3, 2")
    k("s_mul_i32 s52, s52, 5120")
    k(f"s_add_u32 s52, s52, {RED}")
    k(f"v_lshl_add_u32 v{VRED+1}, v0, 4, s52")
    def reads(fb, va, aoff, astr, vb):
        f = FR + fb * 28
        out = [f"ds_read_b64_tr_b16 v[{f+20+u*4+sec*2}:{f+21+u*4+sec*2}], v{vb+u} offset:{sec*512}" for u in range(2) for sec in range(2)]
        return out + [f"ds_read_b128 v[{f+j*4}:{f+j*4+3}], v{va} offset:{aoff + j*astr}" for j in range(5)]
    def nextB():
        return [f"v_add_u32 v{VBC}, s57, v{VBR}", f"v_add_u32 v{VBC+1}, s57, v{VBR+1}", "s_add_u32 s57, s57, 8192",
                f"s_cmp_eq_u32 s57, {NB*8192}", "s_cselect_b32 s57, 0, s57"]
    def nextA():
        return [f"v_add_u32 v{VAC}, s56, v{VAR}", "s_add_u32 s56, s56, 20480", f"s_cmp_eq_u32 s56, {NAD*20480}", "s_cselect_b32 s56, 0, s56"]
    def mf(fb, j, u):
        f = FR + fb * 28; a = ACC + (u * 5 + j) * 4
        return f"v_mfma_f32_16x16x32_bf16 v[{a}:{a+3}], v[{f+j*4}:{f+j*4+3}], v[{f+20+u*4}:{f+23+u*4}], v[{a}:{a+3}]"
    def mfmas(fb, fill, waits):
        issued = 0
        for j in range(5):
            for u in range(2):
                for _ in range(2):
                    if fill:
                        x = fill.pop(0); k(x)
                        if x.startswith("ds_"): issued += 1
                if waits and u == 0: k(f"s_waitcnt lgkmcnt({4 - j + issued})")
                k(mf(fb, j, u))
        while fill: k(fill.pop(0))
    k("s_mov_b32 s56, 0"); k("s_mov_b32 s57, 8192")
    for x in nextA() + nextB(): k(x)
    k("s_mov_b32 s65, 0")
    k("s_barrier")
    for x in reads(1, VARS, 0, 2048, VBR): k(x)
    k("s_waitcnt lgkmcnt(0)")
    k("s_branch L_wv_cent")
    k.label("L_wv_cloop")
    k("s_waitcnt lgkmcnt(0)")
    k("s_barrier")
    k.label("L_wv_cent")
    mfmas(1, reads(0, VAC, ARING, 1024, VBC) + nextB(), False)
    mfmas(0, reads(1, VAC, ARING + 10240, 1024, VBC) + nextA() + nextB() + ["s_add_u32 s65, s65, 1"], True)
    k("s_cmp_lt_u32 s65, 13")
    k("s_cbranch_scc1 L_wv_cloop")
    k("s_waitcnt lgkmcnt(0)")
    for u in (1, 0):
        for j in range(5): k(mf(1, j, u))
    stamp_mid(k, P, 0)
    k("s_nop 2")
    for j in range(5):
        a = ACC + (5 + j) * 4
        k(f"ds_write_b128 v{VRED}, v[{a}:{a+3}] offset:{j*1024}")
    k("s_waitcnt lgkmcnt(0)")
    k("s_barrier")
    for j in range(5): k(f"ds_read_b128 v[{FR+28+j*4}:{FR+28+j*4+3}], v{VRED+1} offset:{j*1024}")
    for j in range(5):
        k(f"s_waitcnt lgkmcnt({4-j})")
        for i in range(4): k(f"v_add_f32 v{ACC+j*4+i}, v{ACC+j*4+i}, v{FR+28+j*4+i}")
        t = FR + j * 2 + (2 if j >= 3 else 0)
        k(f"v_cvt_pk_bf16_f32 v{t}, v{ACC+j*4}, v{ACC+j*4+1}")
        k(f"v_cvt_pk_bf16_f32 v{t+1}, v{ACC+j*4+2}, v{ACC+j*4+3}")
        if j < 3: k(f"buffer_store_dwordx2 v[{t}:{t+1}], v{VO}, s[44:47], s{72+j} offen sc1")
        if j == 4: k(f"buffer_store_dwordx4 v[{FR+8}:{FR+11}], v{VO}, s[44:47], s75 offen sc1")
    k("s_branch L_c_cons")

def xr_role(k, P):
    k("s_and_b32 s62, s3, 3")
    k("s_cmp_lt_u32 s3, 4")
    k("s_cbranch_scc1 L_xr_cons")
    tabs = [sum(x << (4 * i) for i, x in enumerate(o)) for o in xr_orders(P)]
    k(f"s_mov_b32 s66, {hex(tabs[0] & 0xffffffff)}")
    k(f"s_mov_b32 s67, {hex(tabs[0] >> 32)}")
    for c in range(1, 4):
        k(f"s_cmp_eq_u32 s50, {c}")
        k(f"s_cselect_b32 s66, {hex(tabs[c] & 0xffffffff)}, s66")
        k(f"s_cselect_b32 s67, {hex(tabs[c] >> 32)}, s67")
    VX = 4; VU = 12
    k("v_lshrrev_b32 v28, 3, v0")
    k("v_and_b32 v29, 7, v0")
    k("v_lshrrev_b32 v30, 4, v0")
    k("v_xor_b32 v29, v29, v30")
    k("v_mul_u32_u24 v28, 1280, v28")
    k("v_lshl_add_u32 v28, v29, 4, v28")
    k("s_lshl_b32 s51, s4, 2")
    k("s_add_u32 s51, s51, s62")
    k(f"s_mul_i32 s52, s51, {64*1280}")
    k(f"v_add_u32 v{VX}, s52, v28")
    k(f"v_xor_b32 v{VX+1}, 64, v{VX}")
    k(f"v_add_u32 v{VX+1}, {8*1280}, v{VX+1}")
    for i in range(2, 8): k(f"v_add_u32 v{VX+i}, {16*1280}, v{VX+i-2}")
    k("v_and_b32 v29, 15, v0")
    k("v_lshlrev_b32 v31, 1, v30")
    k("v_xor_b32 v29, v29, v31")
    k("v_mul_u32_u24 v28, 1280, v30")
    k("v_lshl_add_u32 v28, v29, 4, v28")
    k(f"s_mul_i32 s52, s62, {16*1280}")
    k("s_lshl_b32 s53, s5, 8")
    k("s_add_u32 s52, s52, s53")
    k(f"v_add_u32 v{VU}, s52, v28")
    k(f"v_add_u32 v{VU+1}, {4*1280}, v{VU}")
    k(f"v_xor_b32 v{VU+2}, 128, v{VU}")
    k(f"v_add_u32 v{VU+2}, {8*1280}, v{VU+2}")
    k(f"v_add_u32 v{VU+3}, {4*1280}, v{VU+2}")
    k("s_lshl_b32 s55, s62, 13")
    k("s_lshl_b32 s56, s62, 12")
    k("s_add_u32 s56, s56, 32768")
    k("s_mov_b32 s60, 0")
    k("s_mov_b32 s65, 0")
    k("s_waitcnt lgkmcnt(0)")
    srd(k, 28, 8, 2048 * 640 * 2)
    srd(k, 32, 16, 640 * 640 * 2)
    XL = P.get("XL", 7)
    k.label("L_xr_lloop")
    k("s_and_b32 s57, s66, 15")
    k("s_lshr_b64 s[66:67], s[66:67], 4")
    k("s_add_u32 m0, s56, s60")
    k("s_lshl_b32 s58, s57, 7")
    k(f"s_mul_i32 s59, s57, {64*1280}")
    for n in range(12):
        if n < 4: k(f"buffer_load_dwordx4 v{VU+n}, s[32:35], s59 offen lds")
        else: k(f"buffer_load_dwordx4 v{VX+n-4}, s[28:31], s58 offen lds")
        if n < 11:
            k("s_add_u32 m0, m0, 1024" if n != 3 else "s_add_u32 m0, s55, s60")
            if n + 1 == XL:
                k("s_cmp_lg_u32 s65, 1")
                k("s_cbranch_scc1 L_xr_ne")
                k(f"s_waitcnt vmcnt({XL})")
                k("s_barrier")
                k.label("L_xr_ne")
            else: k("s_nop 0")
    k(f"s_add_u32 s60, s60, {XSTG}")
    k(f"s_cmp_eq_u32 s60, {3*XSTG}")
    k("s_cselect_b32 s60, 0, s60")
    k("s_add_u32 s65, s65, 1")
    k("s_cmp_le_u32 s65, 2")
    k("s_cbranch_scc1 L_xr_lloop")
    k("s_waitcnt vmcnt(12)")
    k("s_barrier")
    k("s_cmp_lt_u32 s65, 10")
    k("s_cbranch_scc1 L_xr_lloop")
    k("s_waitcnt vmcnt(0)")
    k("s_barrier")
    srd(k, 44, 24, WS_BYTES)
    k("s_lshl_b32 s52, s4, 5")
    k("v_add_u32 v16, s52, v0")
    k(f"v_lshlrev_b32 v16, {FS}, v16")
    k(f"v_add_u32 v16, {SYNC2_OFF}, v16")
    k("v_mov_b32 v17, v16")
    k("s_lshl_b32 s75, s5, 2")
    k("s_add_u32 s75, s75, 96")
    k("s_mov_b32 s74, -1")
    k("s_mov_b32 s53, 4")
    k("s_cmp_lg_u32 s3, 5")
    k("s_cbranch_scc1 L_c_ld")
    k("s_mov_b32 exec_hi, 0")
    k("buffer_load_dword v19, v16, s[44:47], 0 offen offset:124 sc1")
    k("s_mov_b64 exec, -1")
    k("s_branch L_c_ld")
    k.label("L_xr_cons")
    VXR = 4; VUR = 6; VXC = 10; VUC = 12; VO2 = 16
    XACC = 128
    k("s_and_b32 s61, s62, 1")
    k("s_lshr_b32 s63, s62, 1")
    k("v_and_b32 v28, 15, v0")
    k("v_lshrrev_b32 v31, 4, v0")
    k("v_bfe_u32 v29, v0, 1, 3")
    k("v_xor_b32 v29, v29, v31")
    k("v_lshlrev_b32 v29, 4, v29")
    k("v_lshl_add_u32 v28, v28, 7, v29")
    k("s_lshl_b32 s52, s61, 14")
    k(f"v_add_u32 v{VXR}, s52, v28")
    k(f"v_xor_b32 v{VXR+1}, 64, v{VXR}")
    k("v_bfe_u32 v29, v0, 2, 2")
    k("v_lshl_add_u32 v28, v31, 3, v29")
    k("v_lshlrev_b32 v28, 8, v28")
    k("v_bfe_u32 v29, v0, 2, 3")
    k("s_lshl_b32 s52, s63, 2")
    k("v_xor_b32 v29, s52, v29")
    k("v_lshl_add_u32 v28, v29, 5, v28")
    k("v_and_b32 v29, 3, v0")
    k("v_lshl_add_u32 v28, v29, 3, v28")
    k(f"v_add_u32 v{VUR}, 32768, v28")
    for eb in range(1, 4): k(f"v_xor_b32 v{VUR+eb}, {32*eb}, v{VUR}")
    k("s_lshl_b32 s52, s4, 1")
    k("s_add_u32 s52, s52, s61")
    k("s_mul_i32 s52, s52, 163840")
    k("s_lshl_b32 s53, s5, 1")
    k("s_add_u32 s53, s53, s63")
    k("s_lshl_b32 s53, s53, 11")
    k("s_add_u32 s52, s52, s53")
    if XRF_OFF: k(f"s_add_u32 s52, s52, {XRF_OFF}")
    k(f"v_lshl_add_u32 v{VO2}, v0, 4, s52")
    for mb in range(1, 8): k(f"s_mov_b32 s{67+mb}, {20480*mb}")
    for i in range(128): k(f"v_mov_b32 v{XACC+i}, 0")
    k("s_waitcnt lgkmcnt(0)")
    srd(k, 44, 24, WS_BYTES)
    FB = [32, 80]
    def acc(eb, mb): return XACC + (mb * 4 + eb) * 4
    def ureads(ks, dst, va):
        return [f"ds_read_b64_tr_b16 v[{dst+eb*4+sec*2}:{dst+eb*4+sec*2+1}], v{va+eb} offset:{(32*ks + 4*sec)*256}" for eb in range(4) for sec in range(2)]
    def xr_reads(ks, buf):
        f = FB[buf]
        return ureads(ks, f + 32, VUC) + [f"ds_read_b128 v[{f+mb*4}:{f+mb*4+3}], v{VXC+ks} offset:{mb*2048}" for mb in range(8)]
    def newstage():
        return [f"v_add_u32 v{VXC+ks}, s64, v{VXR+ks}" for ks in range(2)] + [f"v_add_u32 v{VUC+eb}, s64, v{VUR+eb}" for eb in range(4)] + \
               [f"s_add_u32 s64, s64, {XSTG}", f"s_cmp_eq_u32 s64, {3*XSTG}", "s_cselect_b32 s64, 0, s64"]
    def mf(a, u, x): return f"v_mfma_f32_16x16x32_bf16 v[{a}:{a+3}], v[{u}:{u+3}], v[{x}:{x+3}], v[{a}:{a+3}]"
    def mfmas(buf, fill):
        f = FB[buf]
        for mb in range(8):
            for eb in range(4):
                k(mf(acc(eb, mb), f + 32 + eb * 4, f + mb * 4))
                if fill: k(fill.pop(0))
        assert not fill
    k("s_mov_b32 s64, 0")
    k("s_mov_b32 s65, 0")
    for x in newstage(): k(x)
    k("s_barrier")
    for x in xr_reads(0, 0): k(x)
    k.label("L_xr_cloop")
    k("s_waitcnt lgkmcnt(0)")
    mfmas(0, xr_reads(1, 1) + newstage() + ["s_add_u32 s65, s65, 1", "s_cmp_eq_u32 s65, 8"])
    k("s_waitcnt lgkmcnt(0)")
    k("s_barrier")
    k("s_cbranch_scc1 L_xr_tail")
    mfmas(1, xr_reads(0, 0))
    k("s_branch L_xr_cloop")
    k.label("L_xr_tail")
    UF = [32, 48, 64, 80]; XB = [20, 24, 96, 100, 104, 108, 112, 116]; OT = 120
    q = []
    def lds(s_, tag): k(s_); q.append(tag)
    def ur(t): return ureads(t & 1, UF[t], VUC if t < 2 else VUR)
    def xread(n):
        mb, t = n // 4, n % 4
        r = XB[n % 8]
        return f"ds_read_b128 v[{r}:{r+3}], v{(VXC if t < 2 else VXR) + (t & 1)} offset:{mb*2048}"
    pre = [(x, ("u", 0)) for x in ur(0)] + [(xread(0), ("x", 0))] + [(x, ("u", 1)) for x in ur(1)] + [(xread(1), ("x", 1))]
    f = FB[1]; n = 0
    for mb in range(8):
        for eb in range(4):
            k(mf(acc(eb, mb), f + 32 + eb * 4, f + mb * 4))
            if pre: lds(*pre.pop(0))
            n += 1
            if n == 20:
                k("s_barrier")
                pre = [(x, ("u", 2)) for x in ur(2)]
    assert not pre
    outq = []; osel = [0]
    def out_instrs(mb):
        r = []
        for p in range(2):
            t = OT + osel[0] * 4; osel[0] ^= 1
            a0 = acc(2 * p, mb); a1 = acc(2 * p + 1, mb)
            so = "0" if mb == 0 else f"s{67+mb}"
            r.append([f"v_cvt_pk_bf16_f32 v{t}, v{a0}, v{a0+1}", f"v_cvt_pk_bf16_f32 v{t+1}, v{a0+2}, v{a0+3}",
                      f"v_cvt_pk_bf16_f32 v{t+2}, v{a1}, v{a1+1}", f"v_cvt_pk_bf16_f32 v{t+3}, v{a1+2}, v{a1+3}",
                      f"buffer_store_dwordx4 v[{t}:{t+3}], v{VO2}, s[44:47], {so} offen offset:{p*1024} sc1"])
        return r
    nx = 2
    for n in range(32):
        mb, t = n // 4, n % 4
        if n == 0:
            lds(xread(2), ("x", 2)); nx = 3
            for x in ur(3): lds(x, ("u", 3))
        while nx < 32 and nx <= n + 5: lds(xread(nx), ("x", nx)); nx += 1
        need = max(i for i, tg in enumerate(q) if tg == ("x", n) or (mb == 0 and tg == ("u", t)))
        k(f"s_waitcnt lgkmcnt({min(15, len(q) - 1 - need)})")
        o = outq.pop(0) if (t >= 2 and outq) else []
        for eb in range(4):
            k(mf(acc(eb, mb), UF[t] + eb * 4, XB[n % 8]))
            if o: k(o.pop(0))
        while o: k(o.pop(0))
        if t == 3: outq = out_instrs(mb)
    stamp_mid(k, P, 0)
    k("s_nop 7")
    while outq:
        for x in outq.pop(0): k(x)
    k("s_barrier")

def mtmask(t):
    m = 0
    for eb in range(4 * t, 4 * t + 4):
        g, r = eb >> 3, eb & 7
        if g == 4: mt = 2 * (r >> 1) + 1
        else: mt = 2 * g + (1 if 3 <= r < 6 else 0)
        m |= 1 << mt
    return m

def c_ids(k):
    k("s_and_b32 s52, s2, 7")
    k("s_lshr_b32 s54, s2, 3")
    k("s_lshr_b32 s4, s52, 1")
    k("s_lshl_b32 s4, s4, 2")
    k("s_and_b32 s55, s54, 3")
    k("s_add_u32 s4, s4, s55")
    k("s_and_b32 s5, s52, 1")
    k("s_lshl_b32 s5, s5, 3")
    k("s_lshr_b32 s54, s54, 2")
    k("s_add_u32 s5, s5, s54")

def phase_c(k, P):
    NX = P.get("NX", 5); NW = 3
    XR = 0; WR = NX * 16384; STG = WR + NW * 14336
    assert STG + 30720 <= LCNT and STG <= 124 * 1024 and 144 * 1024 <= STG + 30720
    order = P.get("corder", list(range(10)))
    k.label("L_c_cons")
    arrive(k)
    stamp_mid(k, P, 1)
    c_ids(k)
    VXR = 4; VWR = 5; VXC = 6; VWC = 7; VEW = 8; VER = 9; VST = 10
    ACC = 24; FR = 80; VRD = 152
    k("s_lshl_b32 s52, s3, 12")
    k(f"v_lshl_add_u32 v{VXR}, v0, 4, s52")
    k(f"v_lshlrev_b32 v{VWR}, 4, v0")
    k(f"v_add_u32 v{VWR}, {WR}, v{VWR}")
    for i in range(56): k(f"v_mov_b32 v{ACC+i}, 0")
    k("s_mul_i32 s52, s3, 7680")
    k(f"s_add_u32 s52, s52, {STG}")
    k("v_and_b32 v18, 15, v0")
    k("v_mul_u32_u24 v18, 240, v18")
    k("v_lshrrev_b32 v19, 4, v0")
    k("v_lshl_add_u32 v20, v19, 4, v18")
    k(f"v_add_u32 v{VEW}, s52, v20")
    k("v_lshl_add_u32 v20, v19, 3, v18")
    k(f"v_add_u32 v{VER}, s52, v20")
    k(f"s_mov_b32 s53, {magic(14)}")
    k("s_lshl_b32 s54, s4, 2")
    k("s_add_u32 s54, s54, s3")
    k(f"s_mul_i32 s54, s54, {32*3456}")
    k("s_mul_i32 s55, s5, 224")
    k("s_add_u32 s54, s54, s55")
    k("s_sub_u32 s55, 3456, s55")
    k("v_mov_b32 v23, 0x7fffffff")
    for i in range(7):
        k(f"v_add_u32 v18, {64*i}, v0")
        k("v_mul_hi_u32 v19, v18, s53")
        k("v_mul_u32_u24 v20, 14, v19")
        k("v_sub_u32 v18, v18, v20")
        k("v_lshlrev_b32 v18, 4, v18")
        k("v_cmp_gt_u32 vcc, s55, v18")
        k("v_mul_u32_u24 v20, 240, v19")
        k(f"v_add3_u32 v{VRD+i}, v20, v18, s52")
        k("v_mul_u32_u24 v20, 3456, v19")
        k(f"v_add3_u32 v{VST+i}, v20, v18, s54")
        k(f"v_cndmask_b32 v{VST+i}, v23, v{VST+i}, vcc")
    srd(k, 28, 20, 2048 * 1728 * 2)
    k("s_mov_b32 s56, 0"); k("s_mov_b32 s57, 0")
    def newstage():
        return [f"v_add_u32 v{VXC}, s56, v{VXR}", f"v_add_u32 v{VWC}, s57, v{VWR}", "s_add_u32 s56, s56, 16384", f"s_cmp_eq_u32 s56, {NX*16384}",
                "s_cselect_b32 s56, 0, s56", "s_add_u32 s57, s57, 14336", f"s_cmp_eq_u32 s57, {NW*14336}", "s_cselect_b32 s57, 0, s57"]
    def reads(ks):
        f = FR + ks * 36
        out = [f"ds_read_b128 v[{f+28+u*4}:{f+31+u*4}], v{VXC} offset:{XR + u*2048 + ks*1024}" for u in range(2)]
        return out + [f"ds_read_b128 v[{f+b*4}:{f+b*4+3}], v{VWC} offset:{ks*7168 + b*1024}" for b in range(7)]
    def mfmas(ks, fill, waits):
        f = FR + ks * 36; issued = 0
        for b in range(7):
            for u in range(2):
                if waits and u == 0: k(f"s_waitcnt lgkmcnt({min(15, 6 - b + issued)})")
                a = ACC + (u * 7 + b) * 4
                k(f"v_mfma_f32_16x16x32_bf16 v[{a}:{a+3}], v[{f+b*4}:{f+b*4+3}], v[{f+28+u*4}:{f+31+u*4}], v[{a}:{a+3}]")
                n = 1 if (fill and fill[0].startswith("ds_")) else 2
                for _ in range(n):
                    if fill:
                        x = fill.pop(0); k(x)
                        if x.startswith("ds_"): issued += 1
        while fill: k(fill.pop(0))
    for x in newstage(): k(x)
    k("s_mov_b32 s65, 0")
    k("s_barrier")
    stamp_mid(k, P, 2)
    for x in reads(0): k(x)
    k.label("L_c_cloop")
    mfmas(0, reads(1) + newstage() + ["s_add_u32 s65, s65, 1", "s_cmp_eq_u32 s65, 10"], True)
    k("s_cbranch_scc1 L_c_cdone")
    k("s_waitcnt lgkmcnt(0)")
    k("s_barrier")
    mfmas(1, reads(0), False)
    k("s_branch L_c_cloop")
    k.label("L_c_cdone")
    mfmas(1, [], True)
    stamp_mid(k, P, 3)
    k("s_nop 4")
    for p in range(4):
        for u in range(2):
            t = FR + (p * 2 + u) * 4
            a0 = ACC + (u * 7 + 2 * p) * 4; a1 = a0 + 4
            k(f"v_cvt_pk_bf16_f32 v{t}, v{a0}, v{a0+1}")
            k(f"v_cvt_pk_bf16_f32 v{t+1}, v{a0+2}, v{a0+3}")
            if p < 3:
                k(f"v_cvt_pk_bf16_f32 v{t+2}, v{a1}, v{a1+1}")
                k(f"v_cvt_pk_bf16_f32 v{t+3}, v{a1+2}, v{a1+3}")
                k(f"ds_write_b128 v{VEW}, v[{t}:{t+3}] offset:{u*16*240 + p*64}")
            else:
                k(f"ds_write_b64 v{VER}, v[{t}:{t+1}] offset:{u*16*240 + 192}")
    for i in range(7): k(f"ds_read_b128 v[{ACC+i*4}:{ACC+i*4+3}], v{VRD+i}")
    for i in range(7):
        k(f"s_waitcnt lgkmcnt({6-i})")
        k(f"buffer_store_dwordx4 v[{ACC+i*4}:{ACC+i*4+3}], v{VST+i}, s[28:31], 0 offen {P.get('k2_stflags', '')}")
    stamp_end(k, P, 0, 44, 112, 3)
    k("s_endpgm")
    k.label("L_c_ld")
    c_ids(k)
    k("s_and_b32 s62, s3, 1")
    k("s_lshl_b32 s52, s4, 4")
    k("s_add_u32 s52, s52, s5")
    k(f"s_lshl_b32 s52, s52, {FS}")
    k(f"s_add_u32 s52, s52, {SYNC2_OFF}")
    k("v_lshl_add_u32 v8, v0, 2, s52")
    k("s_mov_b32 s63, 0")
    k("s_cmp_ge_u32 s3, 6")
    k("s_cbranch_scc1 L_c_xl")
    k("s_mul_i32 s52, s5, 7")
    k("s_add_u32 s54, s52, 6")
    k("s_lshr_b32 s52, s52, 2")
    k("s_lshr_b32 s54, s54, 2")
    k("s_min_u32 s54, s54, 26")
    k("s_sub_u32 s52, s54, s52")
    k("s_mov_b32 s66, 1")
    k("s_cmp_ge_u32 s52, 1")
    k("s_cselect_b32 s66, 0x101, s66")
    k("s_cmp_ge_u32 s52, 2")
    k("s_cselect_b32 s66, 0x10101, s66")
    k("s_mul_i32 s52, s5, 143360")
    k("s_mul_i32 s55, s62, 7168")
    k("s_add_u32 s52, s52, s55")
    k(f"s_add_u32 s52, s52, {WVF_OFF}")
    k("v_lshl_add_u32 v4, v0, 4, s52")
    k("v_add_u32 v5, 4096, v4")
    k("v_mov_b32 v6, v4")
    k("s_cmp_lg_u32 s5, 15")
    k("s_cbranch_scc1 L_c_nt15")
    k("v_mov_b32 v5, 0x7fffffff")
    k("v_and_b32 v7, 8, v0")
    k("v_cmp_eq_u32 vcc, 0, v7")
    k("s_nop 1")
    k("v_cndmask_b32 v6, v5, v4, vcc")
    k.label("L_c_nt15")
    k(f"s_add_u32 s55, s55, {WR}")
    k("s_barrier")
    k("s_cmp_lg_u32 s3, 5")
    k("s_cbranch_scc1 L_c_nopush")
    k("s_waitcnt vmcnt(0)")
    k(f"v_add_u32 v19, {TAGC}, v19")
    k("s_mov_b32 exec_lo, s74")
    k("s_mov_b32 exec_hi, 0")
    lds_wait(k, "L_c_own", "s53")
    k("buffer_store_dword v19, v17, s[44:47], s75 offen sc1")
    k("s_mov_b64 exec, -1")
    stamp_mid(k, P, 0)
    k("s_branch L_c_pushed")
    k.label("L_c_nopush")
    lds_wait(k, "L_c_own4", "s53", sleep=1)
    k.label("L_c_pushed")
    if P.get("ps2", 8): k(f"s_sleep {P.get('ps2', 8)}")
    def run(name, N, per, prep, fire, init, fin=None):
        vm = VM(); ni = 0
        def both(i):
            prep(i); k("s_nop 0"); fire(i)
            for _ in range(per): vm.issue(i)
        for _ in range(init): both(ni); ni += 1
        stamp_mid(k, P, 1)
        for b in range(10):
            lim = min(9, b - 1 + N if b >= 1 else N - 1)
            todo = list(range(ni, lim + 1))[:1]
            if todo: prep(todo[0])
            k(f"s_waitcnt vmcnt({vm.wait_for(lambda t: t <= b)})")
            k("s_barrier")
            if todo:
                fire(todo[0])
                for _ in range(per): vm.issue(todo[0])
                ni += 1
        assert ni == 10
        if fin: fin()
        if P.get("stamp"):
            k("s_and_b32 s62, s3, 3")
            stamp_end(k, P, 2, 44, 32, 62)
        k("s_endpgm")
    def prepW(i):
        k(f"s_mul_i32 s76, s66, {mtmask(order[i])}")
        ensure(k)
        k(f"s_mov_b32 s58, {order[i]*14336}")
        k(f"s_add_u32 m0, s55, {(i % NW)*14336}")
    def fireW(i):
        for j in range(4): k(f"buffer_load_dwordx4 v{4 if j < 2 else 6}, s[44:47], s58 offen offset:{j*1024} sc1 lds")
        k("s_add_u32 m0, m0, 4096")
        k("s_nop 0")
        for j in range(3): k(f"buffer_load_dwordx4 v5, s[44:47], s58 offen offset:{j*1024} sc1 lds")
    def finW():
        k("s_cmp_lg_u32 s3, 4")
        k("s_cbranch_scc1 L_c_nobump")
        bump(k)
        k.label("L_c_nobump")
    run("L_c_w", NW, 7, prepW, fireW, 2, finW)
    k.label("L_c_xl")
    k("s_lshl_b32 s52, s4, 1")
    k("s_add_u32 s52, s52, s62")
    k("s_mul_i32 s52, s52, 81920")
    if XRF_OFF: k(f"s_add_u32 s52, s52, {XRF_OFF}")
    k("v_lshl_add_u32 v4, v0, 4, s52")
    for i in range(1, 4): k(f"v_add_u32 v{4+i}, {20480*i}, v4")
    k("s_lshl_b32 s55, s62, 13")
    k("s_barrier")
    if P.get("xhold"): lds_wait(k, "L_c_xh", "s53", sleep=1)
    def prepX(i):
        if i == 0 or order[i] // 2 != order[i - 1] // 2:
            k(f"s_mov_b32 s76, {1 << (24 + order[i] // 2)}")
            ensure(k)
        k(f"s_mov_b32 s58, {order[i]*2048}")
        k(f"s_add_u32 m0, s55, {XR + (i % NX)*16384}")
    def fireX(i):
        for j in range(4):
            k(f"buffer_load_dwordx4 v{4+j}, s[44:47], s58 offen sc1 lds")
            k(f"buffer_load_dwordx4 v{4+j}, s[44:47], s58 offen offset:1024 sc1 lds")
            if j < 3:
                k("s_add_u32 m0, m0, 2048"); k("s_nop 0")
    run("L_c_x", NX, 8, prepX, fireX, P.get("X0", NX))

def gen(P):
    uid[0] = 0
    k = K(KNAME)
    k("s_cmp_ge_u32 s2, 256")
    k("s_cbranch_scc1 L_end")
    k("s_load_dwordx16 s[8:23], s[0:1], 0")
    k("s_load_dwordx2 s[24:25], s[0:1], 64")
    stamp_begin(k, P)
    k("s_getpc_b64 s[40:41]")
    k.label("L_pc0")
    k("v_subrev_u32 v4, 504, v0")
    k("v_cmp_gt_u32 vcc, 8, v4")
    k("s_and_saveexec_b64 s[44:45], vcc")
    k("s_cbranch_execz L_noipf")
    k("s_and_b32 s41, s41, 0xffff")
    k("s_mov_b32 s42, L_end - L_pc0")
    k("s_mov_b32 s43, 0x00020000")
    k("s_and_b32 s46, s2, 0xf8")
    k("v_add_lshl_u32 v4, s46, v4, 7")
    k("buffer_load_dword v200, v4, s[40:43], 0 offen")
    k.label("L_noipf")
    k("s_mov_b64 exec, -1")
    k("v_lshrrev_b32 v1, 6, v0")
    k(f"v_mov_b32 v2, {LCNT}")
    k("v_mov_b32 v3, 0")
    k("v_readfirstlane_b32 s3, v1")
    k("ds_write2_b32 v2, v3, v3 offset0:0 offset1:1")
    k("v_and_b32 v0, 63, v0")
    k("s_bfe_u32 s4, s2, 0x10002")
    k("s_and_b32 s5, s2, 3")
    k("s_lshr_b32 s6, s2, 3")
    nwv = NWV[P.get("xrx", 2)]
    base = [sum(nwv[:j]) for j in range(4)]
    xbase = [sum(32 - n for n in nwv[:j]) for j in range(4)]
    pk = lambda v: hex(sum(x << (8 * j) for j, x in enumerate(v)))
    k("s_lshl_b32 s7, s5, 3")
    k(f"s_lshr_b32 s52, {pk(nwv)}, s7")
    k("s_and_b32 s52, s52, 0xff")
    k(f"s_lshr_b32 s53, {pk(base)}, s7")
    k("s_and_b32 s53, s53, 0xff")
    k("s_cmp_ge_u32 s6, s52")
    k("s_cbranch_scc1 L_xr")
    k("s_add_u32 s53, s53, s6")
    k("s_and_b32 s60, s53, 3")
    k("s_lshl_b32 s4, s4, 2")
    k("s_add_u32 s4, s4, s60")
    k("s_lshr_b32 s5, s53, 2")
    wv_role(k, P)
    poll_sub(k, P)
    k.label("L_xr")
    k(f"s_lshr_b32 s53, {pk(xbase)}, s7")
    k("s_and_b32 s53, s53, 0xff")
    k("s_sub_u32 s6, s6, s52")
    k("s_add_u32 s6, s6, s53")
    k(f"s_mul_hi_u32 s60, s6, {magic(5)}")
    k("s_mul_i32 s5, s60, 5")
    k("s_sub_u32 s5, s6, s5")
    k("s_lshl_b32 s4, s4, 2")
    k("s_add_u32 s4, s4, s60")
    k("s_add_u32 s50, s60, s5")
    k("s_and_b32 s50, s50, 3")
    xr_role(k, P)
    phase_c(k, P)
    k.label("L_end")
    k("s_endpgm")
    src = "; QuIP weight-only int4 layer: y = (x@U) @ (dequant(qw)@V), one fused launch (generated by dev/gen9.py)\n"
    src += "; @launch grid=(256,1,1) block=(512,1,1) lds=163840\n" + HEADER + k.text()
    src += '.section .rodata,"a"\n' + desc(KNAME, 256, 102, 256)
    return src

def is_wv(b, P):
    import numpy as np
    return (b >> 3) < np.array(NWV[P.get("xrx", 2)])[b & 3]
def is_xr(b, P):
    return ~is_wv(b, P)

if __name__ == "__main__":
    import json
    P = json.loads(sys.argv[2]) if len(sys.argv) > 2 else {}
    open(sys.argv[1], "w").write(gen(P))
```

```python
import sys
from asmlib import *
from gen import magic, VM, stamp_begin, stamp_mid, stamp_end, STAMP_OFF
from gen4 import xr_orders
XRF_OFF = 0x1000000
WVF_OFF = 0x2000000
AQ_OFF = 0x3000000
SYNC_OFF = 0xC00000; SYNC2_OFF = 0xC40000; PROBE_OFF = 0xC80000
WS_BYTES = 0x5000000
TAGC = 0x5bd1e995
LCNT = 163840 - 64
NWV = {2: [32, 32, 32, 12], 4: [32, 32, 22, 22], 8: [27, 27, 27, 27]}
XSTG = 49152
SPIN_MAX = 1 << 20
FS = 8
KNAME = "standalone__weight_only_int_quip__prompt_kernel"

def poll_loop(k, name, load, cmp_lines, sleep=0, wait="vmcnt(0)"):
    k("s_mov_b32 s80, 0")
    k.label(name)
    if sleep: k(f"s_sleep {sleep}")
    k(load)
    k("s_add_u32 s80, s80, 1")
    k(f"s_cmp_ge_u32 s80, {SPIN_MAX}")
    k(f"s_cbranch_scc1 {name}_done")
    k(f"s_waitcnt {wait}")
    for l in cmp_lines: k(l)
    k(f"s_cbranch_scc0 {name}")
    k.label(f"{name}_done")

def lds_wait(k, name, n, sleep=0):
    poll_loop(k, name, "ds_read_b32 v30, v2", ["v_readfirstlane_b32 s52, v30", f"s_cmp_ge_u32 s52, {n}"], wait="lgkmcnt(0)", sleep=sleep)

def arrive(k):
    k("s_waitcnt vmcnt(0)")
    k("v_mov_b32 v7, 1")
    k("s_mov_b64 exec, 1")
    k("ds_add_u32 v2, v7")
    k("s_mov_b64 exec, -1")

def poll_sub(k, P):
    k.label("L_poll")
    k("s_mov_b32 exec_lo, -1")
    k("s_mov_b32 exec_hi, 0")
    pm = P.get("pm", "sc1")
    ld = f"buffer_load_dword v30, v8, s[44:47], 0 offen {pm}" if pm != "atom" else "v_mov_b32 v30, 0\nbuffer_atomic_or v30, v8, s[44:47], 0 offen sc0 sc1"
    poll_loop(k, "L_poll_l", ld,
              ["v_readlane_b32 s59, v30, 31", f"s_add_u32 s52, s59, {TAGC}", "v_subrev_u32 v30, s52, v30",
               "v_cmp_eq_u32 vcc, 1, v30", "s_mov_b32 s83, vcc_lo", "v_cmp_gt_u32 vcc, 2, v30", "s_mov_b32 s63, vcc_lo",
               "s_and_b32 s52, s63, s76", "s_cmp_eq_u32 s52, s76"], sleep=P.get("csleep", 0))
    k("s_mov_b64 exec, -1")
    k("s_setpc_b64 s[78:79]")

uid = [0]
def ensure(k):
    uid[0] += 1
    k("s_and_b32 s52, s63, s76")
    k("s_cmp_eq_u32 s52, s76")
    k(f"s_cbranch_scc1 L_ok{uid[0]}")
    k("s_call_b64 s[78:79], L_poll")
    k.label(f"L_ok{uid[0]}")

def gather(k, P, reg, addr):
    gm = P.get("gm", "sc1")
    if gm == "atom":
        k(f"v_mov_b32 {reg}, 0")
        k(f"buffer_atomic_or {reg}, {addr}, s[44:47], 0 offen offset:124 sc0 sc1")
    else:
        k(f"buffer_load_dword {reg}, {addr}, s[44:47], 0 offen offset:124 {gm}")

def push(k, P, data, addr, so):
    if P.get("wm") == "atom": k(f"buffer_atomic_swap {data}, {addr}, s[44:47], {so} offen sc1")
    else: k(f"buffer_store_dword {data}, {addr}, s[44:47], {so} offen sc1")

def bump(k):
    k("s_add_u32 s59, s59, 2")
    k("v_mov_b32 v30, s59")
    k("s_mov_b64 exec, 1")
    k("buffer_store_dword v30, v8, s[44:47], 0 offen offset:124 sc1")
    k("s_mov_b64 exec, -1")

puid = [0]
def probe(k, P, reps=1):
    if "pol" in P: return
    puid[0] += 1
    k("s_lshr_b32 s52, s2, 4")
    k("s_lshl_b32 s52, s52, 14")
    k("s_and_b32 s54, s2, 15")
    k("s_lshl_b32 s54, s54, 9")
    k("s_add_u32 s52, s52, s54")
    k(f"s_add_u32 s52, s52, {PROBE_OFF}")
    k("s_add_u32 s84, s24, s52")
    k("s_addc_u32 s85, s25, 0")
    k("s_mov_b32 s54, 0")
    for i in range(reps):
        k(f"s_load_dword s100, s[84:85], {i*128}")
        k(f"s_load_dword s101, s[84:85], {8192 + i*128}")
        k("s_waitcnt lgkmcnt(1)")
        k(f"s_sleep {P.get('pg', 1)}")
        k("s_getreg_b32 s81, hwreg(HW_REG_IB_STS, 8, 4)")
        k("s_add_u32 s54, s54, s81")
        if i + 1 < reps: k("s_waitcnt lgkmcnt(0)")
    k(f"s_cmp_le_u32 s54, {reps // 2}")
    k("s_cselect_b32 s81, 2, 1")
    decide(k, P, "s81")

def decide(k, P, default):
    if "pol" in P:
        return
    k(f"v_mov_b32 v31, {default}")
    k("s_mov_b64 exec, 1")
    k("ds_cmpst_rtn_b32 v30, v2, v3, v31 offset:12")
    k("s_waitcnt lgkmcnt(0)")
    k("s_mov_b64 exec, -1")
    k("v_readfirstlane_b32 s82, v30")
    k("s_cmp_eq_u32 s82, 0")
    k(f"s_cselect_b32 s82, {default}, s82")
    k("s_sub_u32 s82, s82, 1")
    k("s_lshl_b32 s82, s82, 13")

def wv_role(k, P):
    NAD = 3; NB = P.get("NB", 11); TH = P.get("th", 4)
    ARING = 0; BRING = NAD * 20480; STG = BRING + NB * 8192
    RED = 124 * 1024
    assert STG + 10240 <= LCNT and NB % 2 == 1
    for i in (25, 26): assert not (BRING + (i % NB) * 8192 < RED + 20480 and RED < BRING + (i % NB + 1) * 8192)
    k("s_lshr_b32 s53, s4, 1")
    k("s_lshl_b32 s70, s53, 3")
    k("s_add_u32 s71, s70, 6")
    k("s_lshl_b32 s52, s53, 1")
    k("s_add_u32 s52, s52, 32")
    k("s_bitcmp1_b32 s4, 0")
    k("s_cselect_b32 s71, s52, s71")
    k("s_cselect_b32 s52, 3, 0")
    k("s_add_u32 s70, s70, s52")
    k(f"s_mul_i32 s68, s5, {P.get('on', 1)}")
    k(f"s_mul_i32 s52, s60, {P.get('oa', 7)}")
    k("s_add_u32 s68, s68, s52")
    k(f"s_mul_hi_u32 s52, s68, {magic(27)}")
    k("s_mul_i32 s52, s52, 27")
    k("s_sub_u32 s68, s68, s52")
    k("s_cmp_ge_u32 s3, 5")
    k("s_cbranch_scc1 L_wv_nodq")
    k("s_add_u32 s52, s70, s3")
    k("s_add_u32 s54, s71, s3")
    k("s_sub_u32 s54, s54, 3")
    k("s_cmp_ge_u32 s3, 3")
    k("s_cselect_b32 s52, s54, s52")
    k("v_lshrrev_b32 v24, 4, v0")
    k("v_and_b32 v25, 15, v0")
    k("v_mul_u32_u24 v26, 6912, v24")
    k("v_lshl_add_u32 v4, v25, 4, v26")
    k(f"s_mul_i32 s55, s52, {16*6912}")
    k("s_lshl_b32 s54, s68, 8")
    k("s_add_u32 s55, s55, s54")
    for m in range(1, 4): k(f"s_add_u32 s{55+m}, s55, {m*4*6912}")
    k("s_lshr_b32 s52, s52, 3")
    k("s_mul_i32 s52, s52, 3456")
    k("s_lshl_b32 s54, s68, 7")
    k("s_add_u32 s52, s52, s54")
    k("v_lshlrev_b32 v8, 3, v25")
    k("s_waitcnt lgkmcnt(0)")
    srd(k, 28, 10, 640 * 1728 * 4)
    R = 32
    for m in range(4): k(f"buffer_load_dwordx4 v[{R+4*m}:{R+4*m+3}], v4, s[28:31], s{55+m} offen")
    srd(k, 36, 12, 5 * 1728 * 2)
    srd(k, 40, 14, 5 * 1728 * 2)
    k("buffer_load_dwordx2 v[10:11], v8, s[36:39], s52 offen")
    k("buffer_load_dwordx2 v[12:13], v8, s[40:43], s52 offen")
    k("s_barrier")
    srd(k, 44, 24, WS_BYTES)
    k("v_lshrrev_b32 v27, 1, v25")
    k("v_lshlrev_b32 v26, 8, v27")
    k("v_and_b32 v28, 1, v25")
    k("v_lshl_add_u32 v26, v28, 3, v26")
    k("s_lshl_b32 s52, s3, 11")
    k(f"s_add_u32 s52, s52, {STG}")
    k("v_add_u32 v26, s52, v26")
    k("v_xor_b32 v27, v27, v24")
    k("v_lshl_add_u32 v4, v27, 4, v26")
    k("v_xor_b32 v5, 64, v4")
    k("v_xor_b32 v28, v0, v24")
    k("v_lshl_add_u32 v28, v28, 4, s52")
    k("v_xor_b32 v29, 64, v28")
    k("s_lshl_b32 s52, s4, 22")
    k("s_lshl_b32 s54, s68, 15")
    k("s_add_u32 s52, s52, s54")
    k("s_lshl_b32 s54, s3, 10")
    k("s_add_u32 s52, s52, s54")
    k(f"s_add_u32 s52, s52, {AQ_OFF}")
    k("s_mov_b32 s55, s52")
    k("v_lshlrev_b32 v9, 4, v0")
    k("s_waitcnt vmcnt(0)")
    for i in range(2):
        k(f"v_lshlrev_b32 v{14+2*i}, 16, v{10+i}"); k(f"v_and_b32 v{15+2*i}, 0xffff0000, v{10+i}")
        k(f"v_lshlrev_b32 v{18+2*i}, 16, v{12+i}"); k(f"v_and_b32 v{19+2*i}, 0xffff0000, v{12+i}")
    for i in range(4): k(f"v_mul_f32 v{18+i}, -v{18+i}, v{14+i}")
    for m in range(4):
        r = R + 4 * m
        for i in range(4): k(f"v_cvt_f32_i32 v{r+i}, v{r+i}")
        for i in range(4): k(f"v_fma_f32 v{r+i}, v{r+i}, v{14+i}, v{18+i}")
        k(f"v_cvt_pk_bf16_f32 v{r}, v{r}, v{r+1}")
        k(f"v_cvt_pk_bf16_f32 v{r+1}, v{r+2}, v{r+3}")
        k(f"ds_write_b64 v{4+(m&1)}, v[{r}:{r+1}] offset:{(m>>1)*128}")
    k("ds_read_b128 v[48:51], v28")
    k("ds_read_b128 v[52:55], v29 offset:1024")
    decide(k, P, 1)
    k("s_add_u32 s55, s55, s82")
    k("s_add_u32 s54, s55, 16384")
    k("s_waitcnt lgkmcnt(0)")
    k("buffer_store_dwordx4 v[48:51], v9, s[44:47], s55 offen sc1")
    k("buffer_store_dwordx4 v[52:55], v9, s[44:47], s54 offen sc1")
    arrive(k)
    k("s_cmp_lt_u32 s3, 4")
    k("s_cbranch_scc1 L_wv_cons")
    k("s_branch L_wv_ld")
    k.label("L_wv_nodq")
    k("s_waitcnt lgkmcnt(0)")
    k("s_barrier")
    k("s_cmp_lg_u32 s3, 5")
    k("s_cbranch_scc1 L_wv_npi")
    probe(k, P)
    k.label("L_wv_npi")
    srd(k, 44, 24, WS_BYTES)
    k.label("L_wv_ld")
    VB = 12
    k("s_and_b32 s62, s3, 1")
    k("s_bfe_u32 s61, s3, 0x10001")
    k("v_lshrrev_b32 v24, 3, v0")
    k("v_and_b32 v25, 7, v0")
    k("v_mul_u32_u24 v26, 3456, v24")
    k("v_bfe_u32 v27, v0, 4, 1")
    k("v_lshlrev_b32 v27, 1, v27")
    k("v_xor_b32 v27, v25, v27")
    k("v_lshl_add_u32 v26, v27, 4, v26")
    k(f"s_mul_i32 s52, s62, {32*3456}")
    k("s_lshl_b32 s54, s5, 7")
    k("s_add_u32 s52, s52, s54")
    k(f"v_add_u32 v{VB}, s52, v26")
    k(f"v_xor_b32 v{VB+1}, 64, v{VB}")
    k(f"v_add_u32 v{VB+1}, {8*3456}, v{VB+1}")
    k(f"v_add_u32 v{VB+2}, {16*3456}, v{VB}")
    k(f"v_add_u32 v{VB+3}, {16*3456}, v{VB+1}")
    k("s_lshl_b32 s66, s62, 12")
    k(f"s_add_u32 s66, s66, {BRING}")
    srd(k, 32, 18, 1728 * 1728 * 2)
    def fireB():
        for n in range(4):
            k(f"buffer_load_dwordx4 v{VB+n}, s[32:35], s58 offen lds")
            if n < 3:
                k("s_add_u32 m0, m0, 1024"); k("s_nop 0")
    k("s_cmp_eq_u32 s61, 0")
    k("s_cbranch_scc1 L_wv_nopre")
    k("s_mov_b32 s57, s68")
    k("s_mov_b32 s56, s66")
    k("s_mov_b32 s65, 0")
    if P.get("xpf") is not None:
        XRX = P.get("xrx", 2)
        nw = NWV[XRX][3]; nmx = (32 - nw) // 5; H = 2 * nw
        xi = nmx * 4; per = xi + 10
        S0 = P["xpf"]; total = (P.get("xpe", 10) - S0) * per
        k(f"s_cmp_lt_u32 s7, {8 * (4 - XRX // 2)}")
        k("s_cbranch_scc1 L_wv_pre")
        srd(k, 36, 8, 2048 * 640 * 2)
        srd(k, 40, 16, 640 * 640 * 2)
        k("s_lshr_b32 s52, s7, 3")
        k(f"s_sub_u32 s52, s52, {4 - XRX // 2}")
        k(f"s_mul_i32 s52, s52, {256 * nmx * 1280}")
        k("s_lshr_b32 s53, s4, 2")
        k(f"s_mul_i32 s53, s53, {1024 * 1280}")
        k("s_add_u32 s72, s52, s53")
        k("v_mul_u32_u24 v20, 1280, v0")
        k("v_lshlrev_b32 v21, 7, v0")
        k("s_lshl_b32 s73, s6, 1")
        k("s_add_u32 s73, s73, s62")
        k.label("L_wv_pf")
        k(f"s_mul_hi_u32 s52, s73, {magic(per)}")
        k(f"s_mul_i32 s53, s52, {per}")
        k("s_sub_u32 s53, s73, s53")
        k(f"s_add_u32 s52, s52, {S0}")
        k(f"s_cmp_ge_u32 s53, {xi}")
        k("s_cbranch_scc1 L_wv_pfu")
        k(f"s_mul_i32 s53, s53, {64*1280}")
        k("s_lshl_b32 s52, s52, 7")
        k("s_add_u32 s52, s52, s53")
        k("s_add_u32 s52, s52, s72")
        k("buffer_load_dword v201, v20, s[36:39], s52 offen")
        k("s_branch L_wv_pfn")
        k.label("L_wv_pfu")
        k("s_mul_i32 s52, s52, 10")
        k("s_add_u32 s52, s52, s53")
        k(f"s_sub_u32 s52, s52, {xi}")
        k("s_lshl_b32 s52, s52, 13")
        k("buffer_load_dword v201, v21, s[40:43], s52 offen")
        k.label("L_wv_pfn")
        k(f"s_add_u32 s73, s73, {H}")
        k(f"s_cmp_lt_u32 s73, {total}")
        k(f"s_waitcnt vmcnt({P.get('pth', 1)})")
        k("s_cbranch_scc1 L_wv_pf")
    k.label("L_wv_pre")
    k("s_mov_b32 m0, s56")
    k(f"s_mul_i32 s58, s57, {64*3456}")
    fireB()
    k("s_add_u32 s57, s57, 1")
    k("s_cmp_eq_u32 s57, 27")
    k("s_cselect_b32 s57, 0, s57")
    k("s_add_u32 s56, s56, 8192")
    k("s_add_u32 s65, s65, 1")
    k(f"s_cmp_ge_u32 s65, {P.get('n1', 6)}")
    k("s_cbranch_scc1 L_wv_pre2")
    k(f"s_waitcnt vmcnt({TH})")
    k.label("L_wv_pre2")
    k(f"s_cmp_lt_u32 s65, {NB}")
    k("s_cbranch_scc1 L_wv_pre")
    k.label("L_wv_nopre")
    k(f"s_mul_i32 s52, s4, {27 << FS}")
    k(f"s_add_u32 s52, s52, {SYNC_OFF}")
    k(f"v_lshl_add_u32 v6, v0, {FS}, s52")
    k(f"s_lshl_b32 s53, s5, {FS}")
    k("s_add_u32 s52, s52, s53")
    k("v_lshl_add_u32 v8, v0, 2, s52")
    k("s_lshl_b32 s52, s5, 2")
    k(f"s_mul_hi_u32 s72, s52, {magic(7)}")
    k("s_add_u32 s52, s52, 3")
    k(f"s_mul_hi_u32 s73, s52, {magic(7)}")
    k("s_cmp_eq_u32 s72, s73")
    k("s_cselect_b32 s74, 0xffff, -1")
    k("v_bfe_u32 v18, v0, 4, 1")
    k("v_add_u32 v18, s72, v18")
    k("v_and_b32 v16, 15, v0")
    k("v_lshl_add_u32 v16, v16, 4, v18")
    k(f"v_lshlrev_b32 v16, {FS}, v16")
    k(f"v_add_u32 v16, {SYNC2_OFF}, v16")
    k("v_mul_u32_u24 v18, 7, v18")
    k("v_lshrrev_b32 v18, 2, v18")
    k("v_sub_u32 v18, s5, v18")
    k("v_lshl_add_u32 v17, v18, 5, v16")
    k("s_lshl_b32 s75, s4, 2")
    k("s_cmp_lg_u32 s3, 5")
    k("s_cbranch_scc1 L_wv_go")
    k("s_lshl_b32 s53, s68, 2")
    k("s_mov_b64 exec, 0x7ffffff")
    gather(k, P, "v11", "v6")
    k("s_mov_b32 exec_lo, s74")
    gather(k, P, "v19", "v16")
    k("s_mov_b32 exec_lo, 0x7ffffff")
    k("s_waitcnt vmcnt(1)")
    k(f"v_add_u32 v11, {TAGC}, v11")
    k("s_lshr_b32 s52, s82, 13")
    k("v_add_u32 v11, s52, v11")
    lds_wait(k, "L_wv_own", 5)
    push(k, P, "v11", "v6", "s53")
    k("s_mov_b64 exec, -1")
    k.label("L_wv_go")
    k("s_lshl_b32 s52, s4, 22")
    k("s_lshl_b32 s55, s62, 14")
    k("s_add_u32 s52, s52, s55")
    k("s_mul_i32 s55, s62, 5120")
    k(f"s_add_u32 s52, s52, {AQ_OFF}")
    k("v_lshl_add_u32 v9, v0, 4, s52")
    k("v_add_u32 v10, 4096, v9")
    k("s_mul_i32 s52, s61, 10240")
    k("s_add_u32 s55, s55, s52")
    k("s_add_u32 s57, s68, s61")
    k("s_add_u32 s57, s57, 1")
    k("s_sub_u32 s52, s57, 27")
    k("s_cselect_b32 s57, s57, s52")
    k(f"s_add_u32 s67, s57, {NB-1}")
    k("s_sub_u32 s52, s67, 27")
    k("s_cselect_b32 s67, s67, s52")
    k("s_lshl_b32 s69, s61, 13")
    k("s_cmp_lg_u32 s3, 4")
    k("s_cbranch_scc1 L_wv_np")
    k(f"s_lshl_b64 s[76:77], 15, s57")
    k("s_lshr_b64 s[78:79], s[76:77], 27")
    k("s_or_b32 s76, s76, s78")
    k("s_and_b32 s76, s76, 0x7ffffff")
    if P.get("ps", 16): k(f"s_sleep {P.get('ps', 16)}")
    k("s_call_b64 s[78:79], L_poll")
    k("v_mov_b32 v30, s63")
    k("v_mov_b32 v31, s83")
    k("ds_write2_b32 v2, v30, v31 offset0:1 offset1:2")
    k("s_branch L_wv_np2")
    k.label("L_wv_np")
    poll_loop(k, "L_wv_lm", "ds_read2_b32 v[30:31], v2 offset0:1 offset1:2", ["v_readfirstlane_b32 s83, v31", "v_readfirstlane_b32 s63, v30", "s_cmp_lg_u32 s63, 0"], wait="lgkmcnt(0)", sleep=1)
    k.label("L_wv_np2")
    stamp_mid(k, P, 3)
    vm = VM()
    def prepA(D):
        k("s_lshl_b32 s76, 1, s57")
        ensure(k)
        k("s_lshl_b32 s64, s57, 15")
        k("s_bitcmp1_b32 s83, s57")
        k("s_cselect_b32 s52, 8192, 0")
        k("s_add_u32 s64, s64, s52")
        k("s_add_u32 s57, s57, 2")
        k("s_sub_u32 s52, s57, 27")
        k("s_cselect_b32 s57, s57, s52")
        k(f"s_add_u32 m0, s55, {ARING + (D % NAD)*20480}")
    def fireA(D):
        for j in range(4): k(f"buffer_load_dwordx4 v9, s[44:47], s64 offen offset:{j*1024} sc1 lds")
        k("s_add_u32 m0, m0, 4096")
        k("s_nop 0")
        k("buffer_load_dwordx4 v10, s[44:47], s64 offen sc1 lds")
        for _ in range(5): vm.issue(("A", D))
    def prepB():
        k(f"s_mul_i32 s58, s67, {64*3456}")
        k("s_add_u32 s67, s67, 2")
        k("s_sub_u32 s52, s67, 27")
        k("s_cselect_b32 s67, s67, s52")
        k("s_add_u32 s56, s66, s69")
        k("s_add_u32 s69, s69, 16384")
        k(f"s_sub_u32 s52, s69, {NB*8192}")
        k("s_cselect_b32 s69, s69, s52")
    na = 0; nb = (NB - 1) // 2
    for _ in range(2):
        prepA(na); k("s_nop 0"); fireA(na); na += 1
    for D in range(13):
        lim = D - 1 + NAD if D >= 1 else NAD - 1
        la = [x for x in range(na, min(12, lim) + 1)][:1]
        lb = [nb] if (D >= 1 and nb <= 12) else []
        if lb: prepB()
        if la: prepA(la[0])
        k(f"s_waitcnt vmcnt({vm.wait_for(lambda t: t[1] <= D)})")
        k("s_barrier")
        if la: fireA(la[0])
        if lb:
            k("s_mov_b32 m0, s56"); k("s_nop 0"); fireB()
            for _ in range(4): vm.issue(("B", nb))
            nb += 1
        na += len(la)
    assert na == 13 and nb >= 13
    k("s_cmp_lg_u32 s3, 4")
    k("s_cbranch_scc1 L_wv_nobump")
    bump(k)
    k.label("L_wv_nobump")
    if "pol" not in P:
        k("s_and_b32 s52, s63, 0x7ffffff")
        k("s_and_b32 s53, s83, s52")
        k("s_bcnt1_i32_b32 s52, s52")
        k("s_bcnt1_i32_b32 s53, s53")
        k("s_lshl_b32 s53, s53, 1")
        k("s_cmp_gt_u32 s53, s52")
        k("s_cselect_b32 s82, 8192, 0")
    k("s_mov_b32 s53, 9")
    k("s_branch L_c_ld")
    k.label("L_wv_cons")
    VAR = 48; VBR = 49; VAC = 51; VBC = 52; VO = 54; VRED = 55; VARS = 57
    FR = 64; ACC = 120
    k("s_and_b32 s60, s3, 1")
    k("s_lshr_b32 s61, s3, 1")
    k("s_mul_i32 s52, s61, 5120")
    k(f"v_lshl_add_u32 v{VAR}, v0, 4, s52")
    k("s_lshl_b32 s54, s61, 2")
    k("v_or_b32 v28, s54, v24")
    k("v_xor_b32 v28, v28, v0")
    k("s_lshl_b32 s52, s61, 10")
    k(f"s_add_u32 s52, s52, {STG}")
    k(f"v_lshl_add_u32 v{VARS}, v28, 4, s52")
    k("s_lshl_b32 s63, s60, 1")
    k("s_add_u32 s63, s63, s61")
    k("v_bfe_u32 v28, v0, 2, 2")
    k("v_lshl_add_u32 v28, v24, 3, v28")
    k("v_lshlrev_b32 v28, 7, v28")
    k("v_bfe_u32 v29, v0, 3, 2")
    k("v_xor_b32 v29, s63, v29")
    k("v_lshl_add_u32 v28, v29, 5, v28")
    k("v_and_b32 v29, 3, v0")
    k("v_lshl_add_u32 v28, v29, 3, v28")
    k("s_lshl_b32 s52, s61, 12")
    k(f"s_add_u32 s52, s52, {BRING}")
    k(f"v_add_u32 v{VBR}, s52, v28")
    k(f"v_xor_b32 v{VBR+1}, 32, v{VBR}")
    k("s_lshl_b32 s52, s5, 2")
    k("s_add_u32 s52, s52, s63")
    k(f"s_mul_hi_u32 s54, s52, {magic(7)}")
    k("s_mul_i32 s64, s54, 7")
    k("s_sub_u32 s52, s52, s64")
    k("s_mov_b32 s64, s54")
    k("s_lshr_b32 s54, s64, 2")
    k("s_lshl_b32 s54, s54, 22")
    k("s_and_b32 s81, s64, 3")
    k("s_lshl_b32 s81, s81, 19")
    k("s_add_u32 s54, s54, s81")
    k(f"s_add_u32 s54, s54, {WVF_OFF}")
    k("v_bfe_u32 v28, v0, 2, 1")
    k("v_lshlrev_b32 v28, 10, v28")
    k("v_bfe_u32 v29, v0, 3, 1")
    k("v_lshl_add_u32 v28, v29, 6, v28")
    k("v_and_b32 v29, 3, v0")
    k("v_lshl_add_u32 v28, v29, 4, v28")
    k("v_lshlrev_b32 v29, 4, v25")
    k("s_cmp_eq_u32 s52, 6")
    k("s_cselect_b64 vcc, -1, 0")
    k("s_and_b32 s64, s52, 6")
    k("s_lshl_b32 s64, s64, 10")
    k("s_and_b32 s52, s52, 1")
    k("s_lshl_b32 s52, s52, 7")
    k("s_add_u32 s54, s54, s64")
    k("s_add_u32 s54, s54, s52")
    k("v_cndmask_b32 v28, v28, v29, vcc")
    k("v_lshrrev_b32 v29, 1, v24")
    k("v_lshl_add_u32 v28, v29, 8, v28")
    k("v_add_u32 v28, s54, v28")
    for j in range(5):
        k(f"s_add_u32 s52, s70, {j}" if j < 3 else f"s_add_u32 s52, s71, {j-3}")
        k(f"s_lshr_b32 s{72+j}, s52, 1")
        k(f"s_lshl_b32 s{72+j}, s{72+j}, 14")
        if not P.get("dualW", 1):
            k("s_and_b32 s81, s52, 2")
            k("s_lshl_b32 s81, s81, 12")
            k(f"s_add_u32 s{72+j}, s{72+j}, s81")
        k("s_and_b32 s52, s52, 1")
        k("s_lshl_b32 s52, s52, 9")
        k(f"s_add_u32 s{72+j}, s{72+j}, s52")
    k("s_mov_b32 s77, 0x40000000")
    k("v_and_b32 v29, 1, v24")
    k("v_cmp_eq_u32 vcc, 1, v29")
    for g in range(3):
        k(f"v_mov_b32 v29, s{72+2*g}")
        k(f"v_mov_b32 v30, s{73+2*g}")
        k("v_cndmask_b32 v29, v29, v30, vcc")
        k(f"v_add_u32 v{58+g}, v28, v29")
    k("s_movk_i32 s72, 0x2000")
    if P.get("tlb", 1):
        k("s_mov_b64 exec, 1")
        k("buffer_load_dword v201, v58, s[44:47], 0 offen sc1")
        k("s_mov_b64 exec, -1")
    for i in range(40): k(f"v_mov_b32 v{ACC+i}, 0")
    k("s_mul_i32 s52, s3, 5120")
    k(f"s_add_u32 s52, s52, {RED}")
    k(f"v_lshl_add_u32 v{VRED}, v0, 4, s52")
    k("s_xor_b32 s52, s3, 2")
    k("s_mul_i32 s52, s52, 5120")
    k(f"s_add_u32 s52, s52, {RED}")
    k(f"v_lshl_add_u32 v{VRED+1}, v0, 4, s52")
    def reads(fb, va, aoff, astr, vb):
        f = FR + fb * 28
        out = [f"ds_read_b64_tr_b16 v[{f+20+u*4+sec*2}:{f+21+u*4+sec*2}], v{vb+u} offset:{sec*512}" for u in range(2) for sec in range(2)]
        return out + [f"ds_read_b128 v[{f+j*4}:{f+j*4+3}], v{va} offset:{aoff + j*astr}" for j in range(5)]
    def nextB():
        return [f"v_add_u32 v{VBC}, s57, v{VBR}", f"v_add_u32 v{VBC+1}, s57, v{VBR+1}", "s_add_u32 s57, s57, 8192",
                f"s_cmp_eq_u32 s57, {NB*8192}", "s_cselect_b32 s57, 0, s57"]
    def nextA():
        return [f"v_add_u32 v{VAC}, s56, v{VAR}", "s_add_u32 s56, s56, 20480", f"s_cmp_eq_u32 s56, {NAD*20480}", "s_cselect_b32 s56, 0, s56"]
    def mf(fb, j, u):
        f = FR + fb * 28; a = ACC + (u * 5 + j) * 4
        return f"v_mfma_f32_16x16x32_bf16 v[{a}:{a+3}], v[{f+j*4}:{f+j*4+3}], v[{f+20+u*4}:{f+23+u*4}], v[{a}:{a+3}]"
    def mfmas(fb, fill, waits):
        issued = 0
        for j in range(5):
            for u in range(2):
                for _ in range(2):
                    if fill:
                        x = fill.pop(0); k(x)
                        if x.startswith("ds_"): issued += 1
                if waits and u == 0: k(f"s_waitcnt lgkmcnt({4 - j + issued})")
                k(mf(fb, j, u))
        while fill: k(fill.pop(0))
    k("s_mov_b32 s56, 0"); k("s_mov_b32 s57, 8192")
    for x in nextA() + nextB(): k(x)
    k("s_mov_b32 s65, 0")
    k("s_barrier")
    for x in reads(1, VARS, 0, 2048, VBR): k(x)
    k("s_waitcnt lgkmcnt(0)")
    k("s_branch L_wv_cent")
    k.label("L_wv_cloop")
    k("s_waitcnt lgkmcnt(0)")
    k("s_barrier")
    k.label("L_wv_cent")
    mfmas(1, reads(0, VAC, ARING, 1024, VBC) + nextB(), False)
    mfmas(0, reads(1, VAC, ARING + 10240, 1024, VBC) + nextA() + nextB() + ["s_add_u32 s65, s65, 1"], True)
    k("s_cmp_lt_u32 s65, 13")
    k("s_cbranch_scc1 L_wv_cloop")
    k("s_waitcnt lgkmcnt(0)")
    for u in (1, 0):
        for j in range(5): k(mf(1, j, u))
    stamp_mid(k, P, 0)
    k("s_nop 2")
    for j in range(5):
        a = ACC + (5 + j) * 4
        k(f"ds_write_b128 v{VRED}, v[{a}:{a+3}] offset:{j*1024}")
    k("s_waitcnt lgkmcnt(0)")
    k("s_barrier")
    for j in range(5): k(f"ds_read_b128 v[{FR+28+j*4}:{FR+28+j*4+3}], v{VRED+1} offset:{j*1024}")
    for j in range(5):
        k(f"s_waitcnt lgkmcnt({4-j})")
        for i in range(4): k(f"v_add_f32 v{ACC+j*4+i}, v{ACC+j*4+i}, v{FR+28+j*4+i}")
        t = FR + j * 2
        k(f"v_cvt_pk_bf16_f32 v{t}, v{ACC+j*4}, v{ACC+j*4+1}")
        k(f"v_cvt_pk_bf16_f32 v{t+1}, v{ACC+j*4+2}, v{ACC+j*4+3}")
        if j & 1 or j == 4:
            t = FR + (j >> 1) * 4
            k("s_nop 1")
            k(f"v_permlane16_swap_b32 v{t}, v{t+2}")
            k(f"v_permlane16_swap_b32 v{t+1}, v{t+3}")
            if P.get("dualW", 1):
                k(f"buffer_store_dwordx4 v[{t}:{t+3}], v{58 + (j >> 1)}, s[44:47], 0 offen sc1")
                k(f"buffer_store_dwordx4 v[{t}:{t+3}], v{58 + (j >> 1)}, s[44:47], s72 offen sc1")
            else:
                k(f"buffer_store_dwordx4 v[{t}:{t+3}], v{58 + (j >> 1)}, s[44:47], 0 offen sc1")
    k("s_branch L_c_cons")

def xr_role(k, P):
    k("s_and_b32 s62, s3, 3")
    k("s_cmp_lt_u32 s3, 4")
    k("s_cbranch_scc1 L_xr_cons")
    tabs = [sum(x << (4 * i) for i, x in enumerate(o)) for o in xr_orders(P)]
    k(f"s_mov_b32 s66, {hex(tabs[0] & 0xffffffff)}")
    k(f"s_mov_b32 s67, {hex(tabs[0] >> 32)}")
    for c in range(1, 4):
        k(f"s_cmp_eq_u32 s50, {c}")
        k(f"s_cselect_b32 s66, {hex(tabs[c] & 0xffffffff)}, s66")
        k(f"s_cselect_b32 s67, {hex(tabs[c] >> 32)}, s67")
    VX = 4; VU = 12
    k("v_lshrrev_b32 v28, 3, v0")
    k("v_and_b32 v29, 7, v0")
    k("v_lshrrev_b32 v30, 4, v0")
    k("v_xor_b32 v29, v29, v30")
    k("v_mul_u32_u24 v28, 1280, v28")
    k("v_lshl_add_u32 v28, v29, 4, v28")
    k("s_lshl_b32 s51, s4, 2")
    k("s_add_u32 s51, s51, s62")
    k(f"s_mul_i32 s52, s51, {64*1280}")
    k(f"v_add_u32 v{VX}, s52, v28")
    k(f"v_xor_b32 v{VX+1}, 64, v{VX}")
    k(f"v_add_u32 v{VX+1}, {8*1280}, v{VX+1}")
    for i in range(2, 8): k(f"v_add_u32 v{VX+i}, {16*1280}, v{VX+i-2}")
    k("v_and_b32 v29, 15, v0")
    k("v_lshlrev_b32 v31, 1, v30")
    k("v_xor_b32 v29, v29, v31")
    k("v_mul_u32_u24 v28, 1280, v30")
    k("v_lshl_add_u32 v28, v29, 4, v28")
    k(f"s_mul_i32 s52, s62, {16*1280}")
    k("s_lshl_b32 s53, s5, 8")
    k("s_add_u32 s52, s52, s53")
    k(f"v_add_u32 v{VU}, s52, v28")
    k(f"v_add_u32 v{VU+1}, {4*1280}, v{VU}")
    k(f"v_xor_b32 v{VU+2}, 128, v{VU}")
    k(f"v_add_u32 v{VU+2}, {8*1280}, v{VU+2}")
    k(f"v_add_u32 v{VU+3}, {4*1280}, v{VU+2}")
    k("s_lshl_b32 s55, s62, 13")
    k("s_lshl_b32 s56, s62, 12")
    k("s_add_u32 s56, s56, 32768")
    k("s_mov_b32 s60, 0")
    k("s_mov_b32 s65, 0")
    k("s_waitcnt lgkmcnt(0)")
    srd(k, 28, 8, 2048 * 640 * 2)
    srd(k, 32, 16, 640 * 640 * 2)
    XL = P.get("XL", 7)
    k("s_barrier")
    stamp_mid(k, P, 2)
    k.label("L_xr_lloop")
    k("s_and_b32 s57, s66, 15")
    k("s_lshr_b64 s[66:67], s[66:67], 4")
    k("s_add_u32 m0, s56, s60")
    k("s_lshl_b32 s58, s57, 7")
    k(f"s_mul_i32 s59, s57, {64*1280}")
    for n in range(12):
        if n < 4: k(f"buffer_load_dwordx4 v{VU+n}, s[32:35], s59 offen lds")
        else: k(f"buffer_load_dwordx4 v{VX+n-4}, s[28:31], s58 offen lds")
        if n < 11:
            k("s_add_u32 m0, m0, 1024" if n != 3 else "s_add_u32 m0, s55, s60")
            if n + 1 == XL:
                k("s_cmp_lg_u32 s65, 1")
                k("s_cbranch_scc1 L_xr_ne")
                k(f"s_waitcnt vmcnt({XL})")
                stamp_mid(k, P, 3)
                k("s_barrier")
                k.label("L_xr_ne")
            else: k("s_nop 0")
    k(f"s_add_u32 s60, s60, {XSTG}")
    k(f"s_cmp_eq_u32 s60, {3*XSTG}")
    k("s_cselect_b32 s60, 0, s60")
    k("s_add_u32 s65, s65, 1")
    k("s_cmp_le_u32 s65, 2")
    k("s_cbranch_scc1 L_xr_lloop")
    k("s_waitcnt vmcnt(12)")
    k("s_barrier")
    k("s_cmp_lt_u32 s65, 10")
    k("s_cbranch_scc1 L_xr_lloop")
    k("s_waitcnt vmcnt(0)")
    k("s_barrier")
    srd(k, 44, 24, WS_BYTES)
    k("s_lshl_b32 s52, s4, 5")
    k("v_add_u32 v16, s52, v0")
    k(f"v_lshlrev_b32 v16, {FS}, v16")
    k(f"v_add_u32 v16, {SYNC2_OFF}, v16")
    k("v_mov_b32 v17, v16")
    k("s_lshl_b32 s75, s5, 2")
    k("s_add_u32 s75, s75, 96")
    k("s_mov_b32 s74, -1")
    k("s_mov_b32 s53, 4")
    decide(k, P, 1)
    k("s_cmp_lg_u32 s3, 5")
    k("s_cbranch_scc1 L_c_ld")
    k("s_mov_b32 exec_hi, 0")
    gather(k, P, "v19", "v16")
    k("s_mov_b64 exec, -1")
    k("s_lshr_b32 s52, s82, 13")
    k("s_waitcnt vmcnt(0)")
    k("v_add_u32 v19, s52, v19")
    k("s_branch L_c_ld")
    k.label("L_xr_cons")
    k("s_waitcnt lgkmcnt(0)")
    k("s_barrier")
    k("s_cmp_ge_u32 s3, 1")
    k("s_cbranch_scc1 L_xr_npr")
    probe(k, P, P.get("xreps", 3))
    k.label("L_xr_npr")
    VXR = 4; VUR = 6; VXC = 10; VUC = 12; VO2 = 16
    XACC = 128
    k("s_and_b32 s61, s62, 1")
    k("s_lshr_b32 s63, s62, 1")
    k("v_and_b32 v28, 15, v0")
    k("v_lshrrev_b32 v31, 4, v0")
    k("v_bfe_u32 v29, v0, 1, 3")
    k("v_xor_b32 v29, v29, v31")
    k("v_lshlrev_b32 v29, 4, v29")
    k("v_lshl_add_u32 v28, v28, 7, v29")
    k("s_lshl_b32 s52, s61, 14")
    k(f"v_add_u32 v{VXR}, s52, v28")
    k(f"v_xor_b32 v{VXR+1}, 64, v{VXR}")
    k("v_bfe_u32 v29, v0, 2, 2")
    k("v_lshl_add_u32 v28, v31, 3, v29")
    k("v_lshlrev_b32 v28, 8, v28")
    k("v_bfe_u32 v29, v0, 2, 3")
    k("s_lshl_b32 s52, s63, 2")
    k("v_xor_b32 v29, s52, v29")
    k("v_lshl_add_u32 v28, v29, 5, v28")
    k("v_and_b32 v29, 3, v0")
    k("v_lshl_add_u32 v28, v29, 3, v28")
    k(f"v_add_u32 v{VUR}, 32768, v28")
    for eb in range(1, 4): k(f"v_xor_b32 v{VUR+eb}, {32*eb}, v{VUR}")
    k("s_lshl_b32 s54, s4, 1")
    k("s_add_u32 s54, s54, s61")
    k("s_lshr_b32 s52, s54, 2")
    k("s_lshl_b32 s52, s52, 22")
    k("s_and_b32 s81, s54, 3")
    k("s_lshl_b32 s81, s81, 19")
    k("s_add_u32 s52, s52, s81")
    k(f"s_add_u32 s52, s52, {XRF_OFF}")
    k("s_lshl_b32 s53, s5, 1")
    k("s_add_u32 s53, s53, s63")
    k("s_lshl_b32 s53, s53, 15")
    k("s_add_u32 s52, s52, s53")
    k("v_and_b32 v28, 15, v0")
    k("v_bfe_u32 v29, v0, 4, 1")
    k("v_lshl_add_u32 v28, v29, 5, v28")
    k("v_lshrrev_b32 v29, 5, v0")
    k("v_lshl_add_u32 v28, v29, 4, v28")
    k(f"v_lshl_add_u32 v{VO2}, v28, 4, s52")
    k("s_mov_b32 s68, 4096"); k("s_mov_b32 s69, 16384"); k("s_mov_b32 s70, 20480")
    for i in range(128): k(f"v_mov_b32 v{XACC+i}, 0")
    k("s_waitcnt lgkmcnt(0)")
    srd(k, 44, 24, WS_BYTES)
    FB = [32, 80]
    def acc(eb, mb): return XACC + (mb * 4 + eb) * 4
    def ureads(ks, dst, va):
        return [f"ds_read_b64_tr_b16 v[{dst+eb*4+sec*2}:{dst+eb*4+sec*2+1}], v{va+eb} offset:{(32*ks + 4*sec)*256}" for eb in range(4) for sec in range(2)]
    def xr_reads(ks, buf):
        f = FB[buf]
        return ureads(ks, f + 32, VUC) + [f"ds_read_b128 v[{f+mb*4}:{f+mb*4+3}], v{VXC+ks} offset:{mb*2048}" for mb in range(8)]
    def newstage():
        return [f"v_add_u32 v{VXC+ks}, s64, v{VXR+ks}" for ks in range(2)] + [f"v_add_u32 v{VUC+eb}, s64, v{VUR+eb}" for eb in range(4)] + \
               [f"s_add_u32 s64, s64, {XSTG}", f"s_cmp_eq_u32 s64, {3*XSTG}", "s_cselect_b32 s64, 0, s64"]
    def mf(a, u, x): return f"v_mfma_f32_16x16x32_bf16 v[{a}:{a+3}], v[{u}:{u+3}], v[{x}:{x+3}], v[{a}:{a+3}]"
    def mfmas(buf, fill):
        f = FB[buf]
        for mb in range(8):
            for eb in range(4):
                k(mf(acc(eb, mb), f + 32 + eb * 4, f + mb * 4))
                if fill: k(fill.pop(0))
        assert not fill
    k("s_mov_b32 s64, 0")
    k("s_mov_b32 s65, 0")
    for x in newstage(): k(x)
    k("s_barrier")
    for x in xr_reads(0, 0): k(x)
    k.label("L_xr_cloop")
    k("s_waitcnt lgkmcnt(0)")
    mfmas(0, xr_reads(1, 1) + newstage() + ["s_add_u32 s65, s65, 1", "s_cmp_eq_u32 s65, 8"])
    k("s_waitcnt lgkmcnt(0)")
    k("s_barrier")
    k("s_cbranch_scc1 L_xr_tail")
    mfmas(1, xr_reads(0, 0))
    k("s_branch L_xr_cloop")
    k.label("L_xr_tail")
    decide(k, P, 1)
    k(f"v_add_u32 v{VO2}, s82, v{VO2}")
    UF = [32, 48, 64, 80]; XB = [20, 24, 96, 100, 104, 108, 112, 116]; OT = 120
    q = []
    def lds(s_, tag): k(s_); q.append(tag)
    def ur(t): return ureads(t & 1, UF[t], VUC if t < 2 else VUR)
    def xread(n):
        mb, t = n // 4, n % 4
        r = XB[n % 8]
        return f"ds_read_b128 v[{r}:{r+3}], v{(VXC if t < 2 else VXR) + (t & 1)} offset:{mb*2048}"
    pre = [(x, ("u", 0)) for x in ur(0)] + [(xread(0), ("x", 0))] + [(x, ("u", 1)) for x in ur(1)] + [(xread(1), ("x", 1))]
    f = FB[1]; n = 0
    for mb in range(8):
        for eb in range(4):
            k(mf(acc(eb, mb), f + 32 + eb * 4, f + mb * 4))
            if pre: lds(*pre.pop(0))
            n += 1
            if n == 20:
                k("s_barrier")
                pre = [(x, ("u", 2)) for x in ur(2)]
    assert not pre
    outq = []; osel = [0]
    def out_instrs(mb):
        r = []
        for p in range(2):
            t = OT + osel[0] * 4; osel[0] ^= 1
            a0 = acc(2 * p, mb); a1 = acc(2 * p + 1, mb)
            so = ["0", "s68", "s69", "s70"][2 * p + (mb >> 2)]
            r.append([f"v_cvt_pk_bf16_f32 v{t}, v{a0}, v{a0+1}", f"v_cvt_pk_bf16_f32 v{t+1}, v{a0+2}, v{a0+3}",
                      f"v_cvt_pk_bf16_f32 v{t+2}, v{a1}, v{a1+1}", f"v_cvt_pk_bf16_f32 v{t+3}, v{a1+2}, v{a1+3}",
                      "s_nop 1", f"v_permlane16_swap_b32 v{t}, v{t+2}", f"v_permlane16_swap_b32 v{t+1}, v{t+3}",
                      f"buffer_store_dwordx4 v[{t}:{t+3}], v{VO2}, s[44:47], {so} offen offset:{(mb & 3)*1024} sc1"])
        return r
    nx = 2
    for n in range(32):
        mb, t = n // 4, n % 4
        if n == 0:
            lds(xread(2), ("x", 2)); nx = 3
            for x in ur(3): lds(x, ("u", 3))
        while nx < 32 and nx <= n + 5: lds(xread(nx), ("x", nx)); nx += 1
        need = max(i for i, tg in enumerate(q) if tg == ("x", n) or (mb == 0 and tg == ("u", t)))
        k(f"s_waitcnt lgkmcnt({min(15, len(q) - 1 - need)})")
        o = outq.pop(0) if (t >= 2 and outq) else []
        for eb in range(4):
            k(mf(acc(eb, mb), UF[t] + eb * 4, XB[n % 8]))
            if o: k(o.pop(0))
        while o: k(o.pop(0))
        if t == 3: outq = out_instrs(mb)
    stamp_mid(k, P, 0)
    k("s_nop 7")
    while outq:
        for x in outq.pop(0): k(x)
    k("s_barrier")

def mtmask(t):
    m = 0
    for eb in range(4 * t, 4 * t + 4):
        g, r = eb >> 3, eb & 7
        if g == 4: mt = 2 * (r >> 1) + 1
        else: mt = 2 * g + (1 if 3 <= r < 6 else 0)
        m |= 1 << mt
    return m

def c_ids(k):
    k("s_and_b32 s52, s2, 7")
    k("s_lshr_b32 s54, s2, 3")
    k("s_lshr_b32 s4, s52, 1")
    k("s_lshl_b32 s4, s4, 2")
    k("s_and_b32 s55, s54, 3")
    k("s_add_u32 s4, s4, s55")
    k("s_and_b32 s5, s52, 1")
    k("s_lshl_b32 s5, s5, 3")
    k("s_lshr_b32 s54, s54, 2")
    k("s_add_u32 s5, s5, s54")

def phase_c(k, P):
    NX = P.get("NX", 5); NW = P.get("NW", 3)
    XR = 0; WR = NX * 16384; STG = WR + NW * 14336
    assert STG + 30720 <= LCNT and STG <= 124 * 1024 and 144 * 1024 <= STG + 30720
    order = P.get("corder", list(range(10)))
    k.label("L_c_cons")
    arrive(k)
    k.label("L_c_cons2")
    stamp_mid(k, P, 1)
    c_ids(k)
    VXR = 4; VWR = 5; VXC = 6; VWC = 7; VEW = 8; VER = 9; VST = 10
    ACC = 24; FR = 80; VRD = 152
    k("s_lshl_b32 s52, s3, 11")
    k(f"v_lshl_add_u32 v{VXR}, v0, 4, s52")
    k(f"v_lshlrev_b32 v{VWR}, 4, v0")
    k(f"v_add_u32 v{VWR}, {WR}, v{VWR}")
    for i in range(56): k(f"v_mov_b32 v{ACC+i}, 0")
    k("s_mul_i32 s52, s3, 7680")
    k(f"s_add_u32 s52, s52, {STG}")
    k("v_and_b32 v18, 15, v0")
    k("v_mul_u32_u24 v18, 240, v18")
    k("v_lshrrev_b32 v19, 4, v0")
    k("v_lshl_add_u32 v20, v19, 4, v18")
    k(f"v_add_u32 v{VEW}, s52, v20")
    k("v_lshl_add_u32 v20, v19, 3, v18")
    k(f"v_add_u32 v{VER}, s52, v20")
    k(f"s_mov_b32 s53, {magic(14)}")
    k("s_lshl_b32 s54, s4, 2")
    k("s_add_u32 s54, s54, s3")
    k(f"s_mul_i32 s54, s54, {32*3456}")
    k("s_mul_i32 s55, s5, 224")
    k("s_add_u32 s54, s54, s55")
    k("s_sub_u32 s55, 3456, s55")
    k("v_mov_b32 v23, 0x7fffffff")
    for i in range(7):
        k(f"v_add_u32 v18, {64*i}, v0")
        k("v_mul_hi_u32 v19, v18, s53")
        k("v_mul_u32_u24 v20, 14, v19")
        k("v_sub_u32 v18, v18, v20")
        k("v_lshlrev_b32 v18, 4, v18")
        k("v_cmp_gt_u32 vcc, s55, v18")
        k("v_mul_u32_u24 v20, 240, v19")
        k(f"v_add3_u32 v{VRD+i}, v20, v18, s52")
        k("v_mul_u32_u24 v20, 3456, v19")
        k(f"v_add3_u32 v{VST+i}, v20, v18, s54")
        k(f"v_cndmask_b32 v{VST+i}, v23, v{VST+i}, vcc")
    srd(k, 28, 20, 2048 * 1728 * 2)
    k("s_mov_b32 s56, 0"); k("s_mov_b32 s57, 0")
    def newstage():
        return [f"v_add_u32 v{VXC}, s56, v{VXR}", f"v_add_u32 v{VWC}, s57, v{VWR}", "s_add_u32 s56, s56, 16384", f"s_cmp_eq_u32 s56, {NX*16384}",
                "s_cselect_b32 s56, 0, s56", "s_add_u32 s57, s57, 14336", f"s_cmp_eq_u32 s57, {NW*14336}", "s_cselect_b32 s57, 0, s57"]
    def reads(ks):
        f = FR + ks * 36
        out = [f"ds_read_b128 v[{f+28+u*4}:{f+31+u*4}], v{VXC} offset:{XR + u*1024 + ks*8192}" for u in range(2)]
        return out + [f"ds_read_b128 v[{f+b*4}:{f+b*4+3}], v{VWC} offset:{ks*7168 + b*1024}" for b in range(7)]
    def mfmas(ks, fill, waits):
        f = FR + ks * 36; issued = 0
        for b in range(7):
            for u in range(2):
                if waits and u == 0: k(f"s_waitcnt lgkmcnt({min(15, 6 - b + issued)})")
                a = ACC + (u * 7 + b) * 4
                k(f"v_mfma_f32_16x16x32_bf16 v[{a}:{a+3}], v[{f+b*4}:{f+b*4+3}], v[{f+28+u*4}:{f+31+u*4}], v[{a}:{a+3}]")
                n = 1 if (fill and fill[0].startswith("ds_")) else 2
                for _ in range(n):
                    if fill:
                        x = fill.pop(0); k(x)
                        if x.startswith("ds_"): issued += 1
        while fill: k(fill.pop(0))
    for x in newstage(): k(x)
    k("s_mov_b32 s65, 0")
    k("s_barrier")
    stamp_mid(k, P, 2)
    for x in reads(0): k(x)
    k.label("L_c_cloop")
    mfmas(0, reads(1) + newstage() + ["s_add_u32 s65, s65, 1", "s_cmp_eq_u32 s65, 10"], True)
    k("s_cbranch_scc1 L_c_cdone")
    k("s_waitcnt lgkmcnt(0)")
    k("s_barrier")
    mfmas(1, reads(0), False)
    k("s_branch L_c_cloop")
    k.label("L_c_cdone")
    mfmas(1, [], True)
    stamp_mid(k, P, 3)
    k("s_nop 4")
    for p in range(4):
        for u in range(2):
            t = FR + (p * 2 + u) * 4
            a0 = ACC + (u * 7 + 2 * p) * 4; a1 = a0 + 4
            k(f"v_cvt_pk_bf16_f32 v{t}, v{a0}, v{a0+1}")
            k(f"v_cvt_pk_bf16_f32 v{t+1}, v{a0+2}, v{a0+3}")
            if p < 3:
                k(f"v_cvt_pk_bf16_f32 v{t+2}, v{a1}, v{a1+1}")
                k(f"v_cvt_pk_bf16_f32 v{t+3}, v{a1+2}, v{a1+3}")
                k(f"ds_write_b128 v{VEW}, v[{t}:{t+3}] offset:{u*16*240 + p*64}")
            else:
                k(f"ds_write_b64 v{VER}, v[{t}:{t+1}] offset:{u*16*240 + 192}")
    for i in range(7): k(f"ds_read_b128 v[{ACC+i*4}:{ACC+i*4+3}], v{VRD+i}")
    for i in range(7):
        k(f"s_waitcnt lgkmcnt({6-i})")
        k(f"buffer_store_dwordx4 v[{ACC+i*4}:{ACC+i*4+3}], v{VST+i}, s[28:31], 0 offen {P.get('k2_stflags', '')}")
    stamp_end(k, P, 0, 44, 112, 3)
    k("s_endpgm")
    k.label("L_c_ld")
    c_ids(k)
    k("s_and_b32 s62, s3, 1")
    k("s_lshl_b32 s52, s4, 4")
    k("s_add_u32 s52, s52, s5")
    k(f"s_lshl_b32 s52, s52, {FS}")
    k(f"s_add_u32 s52, s52, {SYNC2_OFF}")
    k("v_lshl_add_u32 v8, v0, 2, s52")
    k("s_mov_b32 s63, 0")
    k("s_cmp_ge_u32 s3, 6")
    k("s_cbranch_scc1 L_c_xl")
    k("s_mul_i32 s52, s5, 7")
    k("s_add_u32 s54, s52, 6")
    k("s_lshr_b32 s52, s52, 2")
    k("s_lshr_b32 s54, s54, 2")
    k("s_min_u32 s54, s54, 26")
    k("s_sub_u32 s52, s54, s52")
    k("s_mov_b32 s66, 1")
    k("s_cmp_ge_u32 s52, 1")
    k("s_cselect_b32 s66, 0x101, s66")
    k("s_cmp_ge_u32 s52, 2")
    k("s_cselect_b32 s66, 0x10101, s66")
    k("s_lshr_b32 s52, s5, 2")
    k("s_lshl_b32 s52, s52, 22")
    k("s_and_b32 s81, s5, 3")
    k("s_lshl_b32 s81, s81, 19")
    k("s_add_u32 s52, s52, s81")
    k(f"s_add_u32 s52, s52, {WVF_OFF}")
    k("s_lshl_b32 s55, s62, 14")
    k("s_add_u32 s52, s52, s55")
    if P.get("dualW", 1): k("s_add_u32 s52, s52, s82")
    else:
        k("s_lshl_b32 s55, s62, 13")
        k("s_add_u32 s52, s52, s55")
    k("s_mul_i32 s55, s62, 7168")
    k("v_lshl_add_u32 v4, v0, 4, s52")
    k("v_add_u32 v5, 4096, v4")
    k("v_mov_b32 v6, v4")
    k("s_cmp_lg_u32 s5, 15")
    k("s_cbranch_scc1 L_c_nt15")
    k("v_mov_b32 v5, 0x7fffffff")
    k("v_and_b32 v7, 8, v0")
    k("v_cmp_eq_u32 vcc, 0, v7")
    k("s_nop 1")
    k("v_cndmask_b32 v6, v5, v4, vcc")
    k.label("L_c_nt15")
    k(f"s_add_u32 s55, s55, {WR}")
    k("s_barrier")
    k("s_cmp_lg_u32 s3, 5")
    k("s_cbranch_scc1 L_c_nopush")
    k("s_cmp_eq_u32 s74, 0")
    k("s_cbranch_scc1 L_c_nopush")
    k("s_waitcnt vmcnt(0)")
    k(f"v_add_u32 v19, {TAGC}, v19")
    k("s_mov_b32 exec_lo, s74")
    k("s_mov_b32 exec_hi, 0")
    lds_wait(k, "L_c_own", "s53")
    push(k, P, "v19", "v17", "s75")
    k("s_mov_b64 exec, -1")
    stamp_mid(k, P, 0)
    k("s_branch L_c_pushed")
    k.label("L_c_nopush")
    lds_wait(k, "L_c_own4", "s53", sleep=1)
    k.label("L_c_pushed")
    if P.get("ps2", 8): k(f"s_sleep {P.get('ps2', 8)}")
    def run(name, N, per, prep, fire, init, fin=None):
        vm = VM(); ni = 0
        def both(i):
            prep(i); k("s_nop 0"); fire(i)
            for _ in range(per): vm.issue(i)
        for _ in range(init): both(ni); ni += 1
        stamp_mid(k, P, 1)
        for b in range(10):
            lim = min(9, b - 1 + N if b >= 1 else N - 1)
            todo = list(range(ni, lim + 1))[:1]
            if todo: prep(todo[0])
            k(f"s_waitcnt vmcnt({vm.wait_for(lambda t: t <= b)})")
            k("s_barrier")
            if todo:
                fire(todo[0])
                for _ in range(per): vm.issue(todo[0])
                ni += 1
        assert ni == 10
        if fin: fin()
        if P.get("stamp"):
            k("s_cmp_eq_u32 s3, 5")
            k("s_cselect_b32 s99, s82, s99")
            k("s_and_b32 s62, s3, 3")
            stamp_end(k, P, 2, 44, 32, 62)
        k("s_endpgm")
    def prepW(i):
        k(f"s_mul_i32 s76, s66, {mtmask(order[i])}")
        ensure(k)
        k(f"s_mov_b32 s58, {order[i]*32768}")
        k(f"s_add_u32 m0, s55, {(i % NW)*14336}")
    def fireW(i):
        for j in range(4): k(f"buffer_load_dwordx4 v{4 if j < 2 else 6}, s[44:47], s58 offen offset:{j*1024} sc1 lds")
        k("s_add_u32 m0, m0, 4096")
        k("s_nop 0")
        for j in range(3): k(f"buffer_load_dwordx4 v5, s[44:47], s58 offen offset:{j*1024} sc1 lds")
    def finW():
        k("s_cmp_lg_u32 s3, 4")
        k("s_cbranch_scc1 L_c_nobump")
        bump(k)
        k.label("L_c_nobump")
    run("L_c_w", NW, 7, prepW, fireW, P.get("W0", 2), finW)
    k.label("L_c_xl")
    k("s_lshr_b32 s52, s4, 2")
    k("s_lshl_b32 s52, s52, 22")
    k("s_and_b32 s81, s4, 3")
    k("s_lshl_b32 s81, s81, 19")
    k("s_add_u32 s52, s52, s81")
    k(f"s_add_u32 s52, s52, {XRF_OFF}")
    k("s_lshl_b32 s55, s62, 14")
    k("s_add_u32 s52, s52, s55")
    k("v_lshl_add_u32 v4, v0, 4, s52")
    k("v_add_u32 v5, 4096, v4")
    k("s_lshl_b32 s55, s62, 13")
    k("s_barrier")
    if P.get("xhold", 1): lds_wait(k, "L_c_xh", "s53", sleep=1)
    def prepX(i):
        if i == 0 or order[i] // 2 != order[i - 1] // 2:
            k(f"s_mov_b32 s76, {1 << (24 + order[i] // 2)}")
            ensure(k)
        k(f"s_bitcmp1_b32 s83, {24 + order[i] // 2}")
        k("s_cselect_b32 s58, 8192, 0")
        k(f"s_add_u32 s58, s58, {order[i]*32768}")
        k(f"s_add_u32 m0, s55, {XR + (i % NX)*16384}")
    def fireX(i):
        for j in range(4): k(f"buffer_load_dwordx4 v4, s[44:47], s58 offen offset:{j*1024} sc1 lds")
        k("s_add_u32 m0, m0, 4096")
        k("s_nop 0")
        for j in range(4): k(f"buffer_load_dwordx4 v5, s[44:47], s58 offen offset:{j*1024} sc1 lds")
    run("L_c_x", NX, 8, prepX, fireX, P.get("X0", NX))

def gen(P):
    uid[0] = 0
    P = dict(P)
    for kk_, v in (("dualA", 0), ("tlb", 0), ("X0", 2), ("xfirst", 0)): P.setdefault(kk_, v)

    k = K(KNAME)
    k("s_cmp_ge_u32 s2, 256")
    k("s_cbranch_scc1 L_end")
    k("s_load_dwordx16 s[8:23], s[0:1], 0")
    k("s_load_dwordx2 s[24:25], s[0:1], 64")
    stamp_begin(k, P)
    k("s_getpc_b64 s[40:41]")
    k.label("L_pc0")
    k("v_subrev_u32 v4, 504, v0")
    k("v_cmp_gt_u32 vcc, 8, v4")
    k("s_and_saveexec_b64 s[44:45], vcc")
    k("s_cbranch_execz L_noipf")
    k("s_and_b32 s41, s41, 0xffff")
    k("s_mov_b32 s42, L_end - L_pc0")
    k("s_mov_b32 s43, 0x00020000")
    k("s_and_b32 s46, s2, 0xf8")
    k("v_add_lshl_u32 v4, s46, v4, 7")
    k("buffer_load_dword v200, v4, s[40:43], 0 offen")
    k.label("L_noipf")
    k("s_mov_b64 exec, -1")
    k("v_lshrrev_b32 v1, 6, v0")
    k(f"v_mov_b32 v2, {LCNT}")
    k("v_mov_b32 v3, 0")
    k("v_readfirstlane_b32 s3, v1")
    k("ds_write2_b32 v2, v3, v3 offset0:0 offset1:1")
    k("ds_write2_b32 v2, v3, v3 offset0:2 offset1:3")
    k("v_and_b32 v0, 63, v0")
    k("s_bfe_u32 s4, s2, 0x10002")
    k(f"s_xor_b32 s82, s4, {P.get('pol', 0)}")
    k("s_lshl_b32 s82, s82, 13")
    k("s_and_b32 s5, s2, 3")
    k("s_lshr_b32 s6, s2, 3")
    nwv = NWV[P.get("xrx", 2)]
    base = [sum(nwv[:j]) for j in range(4)]
    xbase = [sum(32 - n for n in nwv[:j]) for j in range(4)]
    pk = lambda v: hex(sum(x << (8 * j) for j, x in enumerate(v)))
    k("s_lshl_b32 s7, s5, 3")
    k(f"s_lshr_b32 s52, {pk(nwv)}, s7")
    k("s_and_b32 s52, s52, 0xff")
    k(f"s_lshr_b32 s53, {pk(base)}, s7")
    k("s_and_b32 s53, s53, 0xff")
    kx = K("x")
    kx(f"s_lshr_b32 s53, {pk(xbase)}, s7")
    kx("s_and_b32 s53, s53, 0xff")
    kx("s_sub_u32 s6, s6, s52")
    kx("s_add_u32 s6, s6, s53")
    kx(f"s_mul_hi_u32 s60, s6, {magic(5)}")
    kx("s_mul_i32 s5, s60, 5")
    kx("s_sub_u32 s5, s6, s5")
    kx("s_lshl_b32 s4, s4, 2")
    kx("s_add_u32 s4, s4, s60")
    kx("s_add_u32 s50, s60, s5")
    kx("s_and_b32 s50, s50, 3")
    xr_role(kx, P)
    i0 = kx.lines.index("L_xr_cons:")
    k("s_cmp_ge_u32 s6, s52")
    if P.get("xfirst", 1):
        k("s_cbranch_scc0 L_wv")
        k.lines += kx.lines[:i0]
        k.label("L_wv")
    else:
        k("s_cbranch_scc1 L_xr")
    k("s_add_u32 s53, s53, s6")
    k("s_and_b32 s60, s53, 3")
    k("s_lshl_b32 s4, s4, 2")
    k("s_add_u32 s4, s4, s60")
    k("s_lshr_b32 s5, s53, 2")
    wv_role(k, P)
    poll_sub(k, P)
    if not P.get("xfirst", 1):
        k.label("L_xr")
        k.lines += kx.lines[:i0]
    k.lines += kx.lines[i0:]
    phase_c(k, P)
    return finish(k)

def finish(k):
    k.label("L_end")
    k("s_endpgm")
    src = "; QuIP weight-only int4 layer: y = (x@U) @ (dequant(qw)@V), one fused launch (generated by dev/gen9.py)\n"
    src += "; @launch grid=(256,1,1) block=(512,1,1) lds=163840\n" + HEADER + k.text()
    src += '.section .rodata,"a"\n' + desc(KNAME, 256, 102, 256)
    return src

def is_wv(b, P):
    import numpy as np
    return (b >> 3) < np.array(NWV[P.get("xrx", 2)])[b & 3]
def is_xr(b, P):
    return ~is_wv(b, P)

if __name__ == "__main__":
    import json
    P = json.loads(sys.argv[2]) if len(sys.argv) > 2 else {}
    open(sys.argv[1], "w").write(gen(P))
```

```python
import sys
from asmlib import *
from gen import magic, VM, stamp_begin, stamp_mid, stamp_end, XRF_OFF, WVF_OFF, STAMP_OFF, WS_BYTES, assemble
import gen as G1

AQ_OFF = 0x600000
AQ_OFF = 0x900000
SYNC_OFF = 0xC00000
XSTG = 49152
SPIN_MAX = 1 << 20

def poll_loop(k, name, load, cmp_lines, cnt="s80", sleep=0, wait="vmcnt(0)"):
    k(f"s_mov_b32 {cnt}, 0")
    k.label(f"{name}")
    if sleep: k(f"s_sleep {sleep}")
    k(load)
    k(f"s_add_u32 {cnt}, {cnt}, 1")
    k(f"s_cmp_ge_u32 {cnt}, {SPIN_MAX}")
    k(f"s_cbranch_scc1 {name}_done")
    k(f"s_waitcnt {wait}")
    for l in cmp_lines: k(l)
    k(f"s_cbranch_scc0 {name}")
    k.label(f"{name}_done")

def wv_role(k, P):
    vf = P.get("v_flags", ""); stf = P.get("k1_stflags", "")
    NA = P.get("NA", 6); NB = P.get("NB", 12)
    ARING = 0; BRING = NA * 10240
    assert BRING + NB * 8192 <= 163840 and NB * 4 <= 60
    B0 = P.get("B0", 2)
    HOLD = P.get("hold")
    k("s_lshr_b32 s53, s4, 1")
    k("s_lshl_b32 s70, s53, 3")
    k("s_add_u32 s71, s70, 6")
    k("s_lshl_b32 s52, s53, 1")
    k("s_add_u32 s52, s52, 32")
    k("s_bitcmp1_b32 s4, 0")
    k("s_cselect_b32 s71, s52, s71")
    k("s_cselect_b32 s52, 3, 0")
    k("s_add_u32 s70, s70, s52")
    k("s_and_b32 s62, s3, 3")
    k("s_cmp_ge_u32 s3, 4")
    k("s_cbranch_scc1 L_wv_cons")
    H = P.get("H", 13)
    k(f"s_mul_i32 s68, s51, {P.get('rb', 2)}")
    k("s_lshr_b32 s52, s50, 1")
    k(f"s_mul_i32 s52, s52, {P.get('ra', 6)}")
    k("s_add_u32 s68, s68, s52")
    k(f"s_mul_hi_u32 s52, s68, {magic(H)}")
    k(f"s_mul_i32 s52, s52, {H}")
    k("s_sub_u32 s68, s68, s52")
    k("s_mov_b32 s64, s68")
    k(f"s_and_b32 s52, s50, {P.get('hm', 1)}")
    k("s_cmp_lg_u32 s52, 0")
    k(f"s_cselect_b32 s66, {H}, 0")
    k(f"s_cselect_b32 s67, {27-H}, {H}")
    k("s_mov_b32 s69, s67")
    def next_chunk():
        k("s_add_u32 s57, s66, s68")
        k("s_add_u32 s68, s68, 1")
        k("s_cmp_eq_u32 s68, s67")
        k("s_cselect_b32 s68, 0, s68")
        k("s_sub_u32 s69, s69, 1")
        k("s_cmp_eq_u32 s69, 0")
        k(f"s_cselect_b32 s52, {H}, 0")
        k("s_cselect_b32 s68, s64, s68")
        k(f"s_cselect_b32 s54, {H ^ (27-H)}, 0")
        k("s_xor_b32 s66, s66, s52")
        k("s_xor_b32 s67, s67, s54")
    k("s_cmp_ge_u32 s62, 2")
    k("s_cbranch_scc1 L_wv_bl")

    def dequant_part(ninstr, rowbase_s, rows_per_wave, widx_s, j0, grp_s, first_reg=32):
        R = first_reg
        k("v_lshrrev_b32 v24, 4, v0")
        k("v_and_b32 v25, 15, v0")
        k("v_mul_u32_u24 v26, 6912, v24")
        k("v_lshl_add_u32 v26, v25, 4, v26")
        k(f"s_lshl_b32 s52, {rowbase_s}, 4")
        k(f"s_mul_i32 s55, {widx_s}, {rows_per_wave}")
        k("s_add_u32 s52, s52, s55")
        k("s_mul_i32 s52, s52, 6912")
        k("s_lshl_b32 s54, s5, 8")
        k("s_add_u32 s52, s52, s54")
        k("v_add_u32 v4, s52, v26")
        for m in range(1, ninstr): k(f"v_add_u32 v{4+m}, {m*4*6912}, v4")
        k(f"s_mul_i32 s52, {grp_s}, 3456")
        k("s_lshl_b32 s54, s5, 7")
        k("s_add_u32 s52, s52, s54")
        k("v_lshl_add_u32 v8, v25, 3, s52")
        k("s_waitcnt lgkmcnt(0)")
        srd(k, 28, 10, 640 * 1728 * 4)
        srd(k, 36, 12, 5 * 1728 * 2)
        srd(k, 40, 14, 5 * 1728 * 2)
        for m in range(ninstr): k(f"buffer_load_dwordx4 v[{R+4*m}:{R+4*m+3}], v{4+m}, s[28:31], 0 offen")
        k("buffer_load_dwordx2 v[10:11], v8, s[36:39], 0 offen")
        k("buffer_load_dwordx2 v[12:13], v8, s[40:43], 0 offen")
        srd(k, 44, 24, WS_BYTES)
        k("v_lshrrev_b32 v26, 3, v25")
        k("v_mul_u32_u24 v26, 5120, v26")
        k("v_bfe_u32 v27, v25, 1, 2")
        k("v_lshl_add_u32 v26, v27, 8, v26")
        k("v_and_b32 v27, 1, v25")
        k("v_lshl_add_u32 v26, v27, 3, v26")
        k("v_lshrrev_b32 v27, 1, v25")
        for m in range(ninstr):
            k(f"s_add_u32 s52, s55, {4*m}")
            k(f"v_add_u32 v28, s52, v24")
            k("v_xor_b32 v28, v28, v27")
            k("v_and_b32 v29, 15, v28")
            k("v_lshrrev_b32 v28, 4, v28")
            k("v_lshlrev_b32 v28, 10, v28")
            k("v_lshl_add_u32 v28, v29, 4, v28")
            k(f"v_add_u32 v{4+m}, v28, v26")
    def dequant_finish(ninstr, j0, first_reg=32):
        R = first_reg
        k("s_waitcnt vmcnt(0)")
        for i in range(2):
            k(f"v_lshlrev_b32 v{14+2*i}, 16, v{10+i}"); k(f"v_and_b32 v{15+2*i}, 0xffff0000, v{10+i}")
            k(f"v_lshlrev_b32 v{18+2*i}, 16, v{12+i}"); k(f"v_and_b32 v{19+2*i}, 0xffff0000, v{12+i}")
        for m in range(ninstr):
            for i in range(4): k(f"v_cvt_f32_i32 v{R+4*m+i}, v{R+4*m+i}")
        for i in range(4): k(f"v_mul_f32 v{18+i}, -v{18+i}, v{14+i}")
        for m in range(ninstr):
            r = R + 4 * m
            for i in range(4): k(f"v_fma_f32 v{r+i}, v{r+i}, v{14+i}, v{18+i}")
            k(f"v_cvt_pk_bf16_f32 v{r}, v{r}, v{r+1}")
            k(f"v_cvt_pk_bf16_f32 v{r+1}, v{r+2}, v{r+3}")
            k(f"ds_write_b64 v{4+m}, v[{r}:{r+1}] offset:{ARING + j0*1024}")
        k("s_waitcnt lgkmcnt(0)")
        k("s_barrier")

    k("s_lshr_b32 s56, s71, 3")
    dequant_part(4, "s71", 16, "s62", 3, "s56")
    k(f"s_mul_i32 s52, s4, {27*10240}")
    k("s_mul_i32 s55, s62, 5120")
    k("s_add_u32 s52, s52, s55")
    k(f"s_add_u32 s52, s52, {AQ_OFF}")
    k("v_lshlrev_b32 v9, 4, v0")
    k("v_add_u32 v9, s52, v9")
    k("v_add_u32 v30, 4096, v9")
    if ARING: k(f"s_add_u32 s55, s55, {ARING}")
    k("s_mov_b32 s56, 0")
    dequant_finish(4, 3)
    def issueA():
        next_chunk()
        k("s_mul_i32 s58, s57, 10240")
        k("s_add_u32 m0, s55, s56")
        k("s_add_u32 s56, s56, 10240")
        for j in range(4): k(f"buffer_load_dwordx4 v9, s[44:47], s58 offen offset:{j*1024} sc1 lds")
        k("s_add_u32 m0, m0, 4096")
        k(f"s_cmp_eq_u32 s56, {NA*10240}")
        k(f"buffer_load_dwordx4 v30, s[44:47], s58 offen sc1 lds")
        k("s_cselect_b32 s56, 0, s56")
    if HOLD is not None: k("s_barrier")
    k("s_barrier")
    k("s_mov_b32 s65, 0")
    k.label("L_wv_a0")
    issueA()
    k("s_add_u32 s65, s65, 1")
    k(f"s_cmp_lt_u32 s65, {NA}")
    k("s_cbranch_scc1 L_wv_a0")
    k(f"s_waitcnt vmcnt({5*(NA-1)})")
    k("s_barrier")
    k.label("L_wv_a1")
    k(f"s_waitcnt vmcnt({5*(NA-2)})")
    k("s_barrier")
    issueA()
    k("s_add_u32 s65, s65, 1")
    k("s_cmp_lt_u32 s65, 27")
    k("s_cbranch_scc1 L_wv_a1")
    for r in range(NA - 2, -1, -1):
        k(f"s_waitcnt vmcnt({5*r})")
        k("s_barrier")
    k("s_endpgm")
    k.label("L_wv_bl")
    VB = 4
    k("s_and_b32 s62, s62, 1")
    k("v_lshrrev_b32 v24, 3, v0")
    k("v_and_b32 v25, 7, v0")
    k("v_mul_u32_u24 v26, 3456, v24")
    k("v_bfe_u32 v27, v0, 4, 1")
    k("v_lshlrev_b32 v27, 1, v27")
    k("v_xor_b32 v27, v25, v27")
    k("v_lshl_add_u32 v26, v27, 4, v26")
    k(f"s_mul_i32 s52, s62, {32*3456}")
    k("s_lshl_b32 s54, s5, 7")
    k("s_add_u32 s52, s52, s54")
    k(f"v_add_u32 v{VB}, s52, v26")
    k(f"v_xor_b32 v{VB+1}, 64, v{VB}")
    k(f"v_add_u32 v{VB+1}, {8*3456}, v{VB+1}")
    k(f"v_add_u32 v{VB+2}, {16*3456}, v{VB}")
    k(f"v_add_u32 v{VB+3}, {16*3456}, v{VB+1}")
    k("s_lshl_b32 s55, s62, 12")
    k(f"s_add_u32 s55, s55, {BRING}")
    k("s_mov_b32 s56, 0")
    k("s_mov_b32 s65, 0")
    k("s_waitcnt lgkmcnt(0)")
    srd(k, 32, 18, 1728 * 1728 * 2)
    def issueB():
        next_chunk()
        k(f"s_mul_i32 s58, s57, {64*3456}")
        k("s_add_u32 m0, s55, s56")
        k("s_add_u32 s56, s56, 8192")
        for n in range(4):
            k(f"buffer_load_dwordx4 v{VB+n}, s[32:35], s58 offen {vf} lds")
            if n < 3:
                k("s_add_u32 m0, m0, 1024")
                k("s_nop 0" if n < 2 else f"s_cmp_eq_u32 s56, {NB*8192}")
        k("s_cselect_b32 s56, 0, s56")
    k.label("L_wv_b0")
    issueB()
    k("s_add_u32 s65, s65, 1")
    k(f"s_cmp_lg_u32 s65, {B0}")
    k("s_cbranch_scc1 L_wv_b0n")
    k("s_barrier")
    k.label("L_wv_b0n")
    if HOLD is not None:
        k(f"s_cmp_lg_u32 s65, {HOLD}")
        k("s_cbranch_scc1 L_wv_b1n")
        k("s_barrier")
        k.label("L_wv_b1n")
    k(f"s_cmp_lt_u32 s65, {NB}")
    k("s_cbranch_scc1 L_wv_b0")
    k("s_barrier")
    k(f"s_waitcnt vmcnt({4*(NB-1)})")
    k("s_barrier")
    k.label("L_wv_b1")
    k(f"s_waitcnt vmcnt({4*(NB-2)})")
    k("s_barrier")
    issueB()
    k("s_add_u32 s65, s65, 1")
    k("s_cmp_lt_u32 s65, 27")
    k("s_cbranch_scc1 L_wv_b1")
    for r in range(NB - 2, -1, -1):
        k(f"s_waitcnt vmcnt({4*r})")
        k("s_barrier")
    k("s_endpgm")
    k.label("L_wv_cons")
    dequant_part(3, "s70", 12, "s62", 0, "s53")
    srd(k, 48, 22, 256)
    k("s_cmp_lg_u32 s2, 0")
    k("s_cbranch_scc1 L_wv_nz")
    k("s_cmp_lg_u32 s62, 1")
    k("s_cbranch_scc1 L_wv_nz")
    k("v_lshlrev_b32 v28, 8, v0")
    k(f"v_add_u32 v28, {SYNC_OFF}, v28")
    k("v_mov_b32 v29, 0")
    k("buffer_store_dword v29, v28, s[44:47], 0 offen sc1")
    k("v_mov_b32 v28, 1")
    k("s_waitcnt vmcnt(0)")
    k("s_mov_b64 exec, 1")
    k("buffer_store_dword v28, v29, s[48:51], 0 offen sc1")
    k("s_mov_b64 exec, -1")
    k.label("L_wv_nz")
    VAR = 48; VBR = 49; VAC = 51; VBC = 52; VO = 54; VRED = 55
    FR = 64
    ACC = 120
    k("s_and_b32 s60, s62, 1")
    k("s_lshr_b32 s61, s62, 1")
    k("s_mul_i32 s52, s61, 5120")
    if ARING: k(f"s_add_u32 s52, s52, {ARING}")
    k(f"v_lshl_add_u32 v{VAR}, v0, 4, s52")
    k("s_lshl_b32 s63, s60, 1")
    k("s_add_u32 s63, s63, s61")
    k("v_bfe_u32 v28, v0, 2, 2")
    k("v_lshl_add_u32 v28, v24, 3, v28")
    k("v_lshlrev_b32 v28, 7, v28")
    k("v_bfe_u32 v29, v0, 3, 2")
    k("v_xor_b32 v29, s63, v29")
    k("v_lshl_add_u32 v28, v29, 5, v28")
    k("v_and_b32 v29, 3, v0")
    k("v_lshl_add_u32 v28, v29, 3, v28")
    k("s_lshl_b32 s52, s61, 12")
    k(f"s_add_u32 s52, s52, {BRING}")
    k(f"v_add_u32 v{VBR}, s52, v28")
    k(f"v_xor_b32 v{VBR+1}, 32, v{VBR}")
    k("s_lshl_b32 s52, s5, 2")
    k("s_add_u32 s52, s52, s63")
    k(f"s_mul_hi_u32 s54, s52, {magic(7)}")
    k("s_mul_i32 s64, s54, 7")
    k("s_sub_u32 s52, s52, s64")
    k("s_mul_i32 s54, s54, 143360")
    k(f"s_add_u32 s54, s54, {WVF_OFF}")
    k("v_bfe_u32 v28, v0, 2, 1")
    k("v_lshlrev_b32 v28, 10, v28")
    k("v_bfe_u32 v29, v0, 3, 1")
    k("v_lshl_add_u32 v28, v29, 6, v28")
    k("v_and_b32 v29, 3, v0")
    k("v_lshl_add_u32 v28, v29, 4, v28")
    k("v_lshlrev_b32 v29, 4, v25")
    k("s_cmp_eq_u32 s52, 6")
    k("s_cselect_b64 vcc, -1, 0")
    k("s_and_b32 s64, s52, 6")
    k("s_lshl_b32 s64, s64, 10")
    k("s_and_b32 s52, s52, 1")
    k("s_lshl_b32 s52, s52, 7")
    k("s_add_u32 s54, s54, s64")
    k("s_add_u32 s54, s54, s52")
    k("v_cndmask_b32 v28, v28, v29, vcc")
    k("v_lshl_add_u32 v28, v24, 8, v28")
    k(f"v_add_u32 v{VO}, s54, v28")
    for j in range(4):
        k(f"s_add_u32 s52, s70, {j}" if j < 3 else "s_mov_b32 s52, s71")
        k(f"s_lshr_b32 s{72+j}, s52, 1")
        k(f"s_mul_i32 s{72+j}, s{72+j}, 7168")
        k("s_and_b32 s52, s52, 1")
        k("s_lshl_b32 s52, s52, 3")
        k(f"s_add_u32 s{72+j}, s{72+j}, s52")
    for i in range(40): k(f"v_mov_b32 v{ACC+i}, 0")
    dequant_finish(3, 0)
    stamp_mid(k, P, 2)
    k("s_cmp_lg_u32 s62, 0")
    k("s_cbranch_scc1 " + ("L_wv_pub_done" if HOLD is None else "L_wv_pub_other"))
    k("v_xor_b32 v28, v0, v24")
    k("v_lshlrev_b32 v28, 4, v28")
    k("v_xor_b32 v29, 64, v28")
    for s in range(2):
        for j in range(5):
            r = FR + (s * 5 + j) * 4
            k(f"ds_read_b128 v[{r}:{r+3}], v{28+s} offset:{ARING + s*5120 + j*1024}")
    k("v_mov_b32 v31, 0")
    k("buffer_load_dword v30, v31, s[48:51], 0 offen sc1")
    k("s_mul_i32 s52, s4, 27")
    k("s_add_u32 s52, s52, s5")
    k("s_mul_i32 s52, s52, 10240")
    k(f"s_add_u32 s52, s52, {AQ_OFF}")
    k("v_lshl_add_u32 v26, v0, 4, s52")
    k("s_movk_i32 s54, 0x1000")
    k("s_movk_i32 s55, 0x2000")
    for n in range(10):
        r = FR + n * 4
        k(f"s_waitcnt lgkmcnt({9-n})")
        so = ["0", "s54", "s55"][n // 4]
        k(f"buffer_store_dwordx4 v[{r}:{r+3}], v26, s[44:47], {so} offen offset:{(n%4)*1024} sc1")
    k("s_lshl_b32 s52, s4, 8")
    k(f"s_add_u32 s52, s52, {SYNC_OFF}")
    k("v_mov_b32 v27, s52")
    k("v_mov_b32 v26, 1")
    k("s_mov_b64 exec, 1")
    k("s_waitcnt vmcnt(0)")
    k("v_readfirstlane_b32 s52, v30")
    k("s_cmp_lg_u32 s52, 0")
    k("s_cbranch_scc1 L_wv_rdy_done")
    poll_loop(k, "L_wv_rdy", "buffer_load_dword v30, v31, s[48:51], 0 offen sc1", ["v_readfirstlane_b32 s52, v30", "s_cmp_lg_u32 s52, 0"])
    k("buffer_atomic_add v26, v27, s[44:47], 0 offen sc1")
    stamp_mid(k, P, 3)
    if HOLD is not None: k("s_barrier")
    poll_loop(k, "L_wv_cnt", "buffer_load_dword v30, v27, s[44:47], 0 offen sc1", ["v_readfirstlane_b32 s52, v30", "s_cmp_ge_u32 s52, 27"])
    k("s_mov_b64 exec, -1")
    if HOLD is not None:
        k("s_branch L_wv_pub_done")
        k.label("L_wv_pub_other")
        k("s_barrier")
    k.label("L_wv_pub_done")
    k("s_barrier")
    stamp_mid(k, P, 1)
    k("s_mov_b32 s56, 0"); k("s_mov_b32 s57, 0")
    def newstage():
        k(f"v_add_u32 v{VAC}, s56, v{VAR}")
        k(f"v_add_u32 v{VBC}, s57, v{VBR}")
        k(f"v_add_u32 v{VBC+1}, s57, v{VBR+1}")
        k("s_add_u32 s56, s56, 10240")
        k(f"s_cmp_eq_u32 s56, {NA*10240}")
        k("s_cselect_b32 s56, 0, s56")
        k("s_add_u32 s57, s57, 8192")
        k(f"s_cmp_eq_u32 s57, {NB*8192}")
        k("s_cselect_b32 s57, 0, s57")
    def reads(fb):
        f = FR + fb * 28
        out = []
        for u in range(2):
            for sec in range(2):
                out.append(f"ds_read_b64_tr_b16 v[{f+20+u*4+sec*2}:{f+21+u*4+sec*2}], v{VBC+u} offset:{sec*512}")
        for j in range(5):
            out.append(f"ds_read_b128 v[{f+j*4}:{f+j*4+3}], v{VAC} offset:{j*1024}")
        return out
    def mfmas(fb, fill):
        f = FR + fb * 28
        for j in range(5):
            for u in range(2):
                a = ACC + (u * 5 + j) * 4
                if fill: k(fill.pop(0))
                k(f"v_mfma_f32_16x16x32_bf16 v[{a}:{a+3}], v[{f+j*4}:{f+j*4+3}], v[{f+20+u*4}:{f+23+u*4}], v[{a}:{a+3}]")
    newstage()
    k("s_barrier")
    for x in reads(0): k(x)
    k("s_mov_b32 s65, 0")
    k.label("L_wv_cloop")
    for fb in range(2):
        newstage()
        if fb == 1:
            k("s_add_u32 s65, s65, 1")
        k("s_waitcnt lgkmcnt(0)")
        k("s_barrier")
        mfmas(fb, reads(fb ^ 1))
    k("s_cmp_lt_u32 s65, 13")
    k("s_cbranch_scc1 L_wv_cloop")
    free = [s for s in range(NA) if s != 26 % NA]
    red = None
    for s in free:
        if s + 1 in free: red = ARING + s * 10240; break
    k("s_mul_i32 s52, s62, 5120")
    k(f"s_add_u32 s52, s52, {red}")
    k(f"v_lshl_add_u32 v{VRED}, v0, 4, s52")
    k("s_xor_b32 s52, s62, 2")
    k("s_mul_i32 s52, s52, 5120")
    k(f"s_add_u32 s52, s52, {red}")
    k(f"v_lshl_add_u32 v{VRED+1}, v0, 4, s52")
    k("s_waitcnt lgkmcnt(0)")
    f = FR
    for u in (1, 0):
        for j in range(5):
            a = ACC + (u * 5 + j) * 4
            k(f"v_mfma_f32_16x16x32_bf16 v[{a}:{a+3}], v[{f+j*4}:{f+j*4+3}], v[{f+20+u*4}:{f+23+u*4}], v[{a}:{a+3}]")
    stamp_mid(k, P, 0)
    k("s_nop 2")
    for j in range(5):
        a = ACC + (5 + j) * 4
        k(f"ds_write_b128 v{VRED}, v[{a}:{a+3}] offset:{j*1024}")
    k("s_waitcnt lgkmcnt(0)")
    k("s_barrier")
    for j in range(5): k(f"ds_read_b128 v[{FR+28+j*4}:{FR+28+j*4+3}], v{VRED+1} offset:{j*1024}")
    for j in range(5):
        k(f"s_waitcnt lgkmcnt({4-j})")
        for i in range(4): k(f"v_add_f32 v{ACC+j*4+i}, v{ACC+j*4+i}, v{FR+28+j*4+i}")
        t = FR + j * 2 + (2 if j >= 3 else 0)
        k(f"v_cvt_pk_bf16_f32 v{t}, v{ACC+j*4}, v{ACC+j*4+1}")
        k(f"v_cvt_pk_bf16_f32 v{t+1}, v{ACC+j*4+2}, v{ACC+j*4+3}")
        if j < 3: k(f"buffer_store_dwordx2 v[{t}:{t+1}], v{VO}, s[44:47], s{72+j} offen {stf}")
        if j == 4: k(f"buffer_store_dwordx4 v[{FR+8}:{FR+11}], v{VO}, s[44:47], s75 offen {stf}")
    stamp_end(k, P, 0, 44, 32, 62)
    k("s_endpgm")

def xr_orders(P):
    mode = P.get("xorder", "stag")
    segs = [[0, 1, 2, 3], [4, 5, 6, 7], [8, 9]]
    out = []
    for c in range(4):
        if mode == "lock": o = list(range(10))
        elif mode == "lock1":
            sg = [[1, 2, 3, 4], [5, 6, 7, 8], [9]]
            o = [0, sg[0][c]]
            for si in range(3):
                oth = [sg[0][(c + j) % 4] for j in range(1, 4)] if si == 0 else [x for i, x in enumerate(sg[si]) if i != c]
                if si + 1 < 3 and c < len(sg[si + 1]): oth.insert(min(c, len(oth)), sg[si + 1][c])
                o += oth
        elif mode == "l6":
            o = [0, 1, 2, 3, 4, 5]; o.insert(2 + c, 6 + c); o += [6 + i for i in range(4) if i != c]
        elif mode == "l6h":
            h = c & 1
            o = [[0, 1, 2, 6, 3, 4, 8, 5, 7, 9], [0, 1, 2, 3, 7, 4, 5, 9, 6, 8]][h]
        elif mode == "s8":
            oth = [(c + j) % 4 for j in range(1, 4)]; oth.insert(min(c, 3), 4 + c)
            o = [c] + oth + [4 + i for i in range(4) if i != c] + [8, 9]
        elif mode == "s8b":
            oth = [(c + j) % 4 for j in range(1, 4)]; oth.insert([1, 2, 2, 3][c], 4 + c)
            o = [c] + oth + [4 + i for i in range(4) if i != c] + [8, 9]
        elif mode == "s4":
            o = [(c + j) % 4 for j in range(4)] + [4, 5, 6, 7, 8, 9]
        elif mode == "stagb":
            o = [[0, 1, 4, 2, 3, 5, 8, 6, 7, 9], [1, 2, 5, 3, 0, 4, 6, 9, 7, 8], [2, 3, 0, 6, 1, 4, 5, 7, 8, 9], [3, 0, 1, 7, 2, 4, 5, 6, 8, 9]][c]
        elif mode == "rot5":
            o = [(5 * (c & 1) + i) % 10 for i in range(10)]
        elif mode == "half":
            h = c & 1
            o = [[0, 1, 2, 4, 3, 6, 5, 8, 7, 9], [1, 0, 3, 2, 5, 4, 7, 6, 9, 8]][h]
        elif mode == "lock2":
            sg = [[2, 3, 4, 5], [6, 7, 8, 9]]
            o = [c & 1, sg[0][c], (c & 1) ^ 1]
            oth = [sg[0][(c + j) % 4] for j in range(1, 4)]
            oth.insert(min(c, 3), sg[1][c]); o += oth
            o += [x for i, x in enumerate(sg[1]) if i != c]
        else:
            div = {"stag": 1, "stag2": 2, "stag0": 100}[mode]
            o = [c]
            for si in range(3):
                if si == 0: oth = [(c + j) % 4 for j in range(1, 4)]
                else: oth = [x for x in segs[si] if (x & 3) != c]
                if si + 1 < 3 and c < len(segs[si + 1]):
                    oth.insert(min(c // div, len(oth)), segs[si + 1][c])
                o += oth
        assert sorted(o) == list(range(10))
        out.append(o)
    return out

def xr_role(k, P):
    xf = P.get("x_flags", ""); uf = P.get("u_flags", ""); stf = P.get("k1_stflags", "")
    k("s_and_b32 s62, s3, 3")
    k("s_cmp_ge_u32 s3, 4")
    k("s_cbranch_scc1 L_xr_cons")
    tabs = [sum(x << (4 * i) for i, x in enumerate(o)) for o in xr_orders(P)]
    k(f"s_mov_b32 s66, {hex(tabs[0] & 0xffffffff)}")
    k(f"s_mov_b32 s67, {hex(tabs[0] >> 32)}")
    for c in range(1, 4):
        k(f"s_cmp_eq_u32 s50, {c}")
        k(f"s_cselect_b32 s66, {hex(tabs[c] & 0xffffffff)}, s66")
        k(f"s_cselect_b32 s67, {hex(tabs[c] >> 32)}, s67")
    VX = 4; VU = 12
    k("v_lshrrev_b32 v28, 3, v0")
    k("v_and_b32 v29, 7, v0")
    k("v_lshrrev_b32 v30, 4, v0")
    k("v_xor_b32 v29, v29, v30")
    k("v_mul_u32_u24 v28, 1280, v28")
    k("v_lshl_add_u32 v28, v29, 4, v28")
    k("s_lshl_b32 s51, s4, 2")
    k("s_add_u32 s51, s51, s62")
    k(f"s_mul_i32 s52, s51, {64*1280}")
    k(f"v_add_u32 v{VX}, s52, v28")
    k(f"v_xor_b32 v{VX+1}, 64, v{VX}")
    k(f"v_add_u32 v{VX+1}, {8*1280}, v{VX+1}")
    for i in range(2, 8): k(f"v_add_u32 v{VX+i}, {16*1280}, v{VX+i-2}")
    k("v_and_b32 v29, 15, v0")
    k("v_lshlrev_b32 v31, 2, v30")
    k("v_xor_b32 v29, v29, v31")
    k("v_mul_u32_u24 v28, 1280, v30")
    k("v_lshl_add_u32 v28, v29, 4, v28")
    k(f"s_mul_i32 s52, s62, {16*1280}")
    k("s_lshl_b32 s53, s5, 8")
    k("s_add_u32 s52, s52, s53")
    k(f"v_add_u32 v{VU}, s52, v28")
    for i in range(1, 4): k(f"v_add_u32 v{VU+i}, {4*1280*i}, v{VU}")
    k("s_lshl_b32 s55, s62, 13")
    k("s_lshl_b32 s56, s62, 12")
    k("s_add_u32 s56, s56, 32768")
    k("s_mov_b32 s60, 0")
    k("s_mov_b32 s65, 0")
    k("s_waitcnt lgkmcnt(0)")
    srd(k, 28, 8, 2048 * 640 * 2)
    srd(k, 32, 16, 640 * 640 * 2)
    k.label("L_xr_lloop")
    k("s_and_b32 s57, s66, 15")
    k("s_lshr_b64 s[66:67], s[66:67], 4")
    k("s_add_u32 m0, s56, s60")
    k("s_lshl_b32 s58, s57, 7")
    k(f"s_mul_i32 s59, s57, {64*1280}")
    for i in range(4):
        k(f"buffer_load_dwordx4 v{VU+i}, s[32:35], s59 offen {uf} lds")
        k("s_add_u32 m0, m0, 1024" if i < 3 else "s_add_u32 m0, s55, s60")
        k("s_nop 0")
    for i in range(8):
        k(f"buffer_load_dwordx4 v{VX+i}, s[28:31], s58 offen {xf} lds")
        if i < 7:
            k("s_add_u32 m0, m0, 1024"); k("s_nop 0")
    k(f"s_add_u32 s60, s60, {XSTG}")
    k(f"s_cmp_eq_u32 s60, {3*XSTG}")
    k("s_cselect_b32 s60, 0, s60")
    k("s_add_u32 s65, s65, 1")
    k("s_cmp_eq_u32 s65, 1")
    k("s_cbranch_scc1 L_xr_lloop")
    k("s_waitcnt vmcnt(12)")
    k("s_barrier")
    k("s_cmp_lt_u32 s65, 10")
    k("s_cbranch_scc1 L_xr_lloop")
    k("s_waitcnt vmcnt(0)")
    k("s_barrier")
    k("s_endpgm")
    k.label("L_xr_cons")
    import gen3
    kk = K("tmp"); gen3.xr_role(kk, P)
    i0 = kk.lines.index("L_xr_cons:")
    k.lines += kk.lines[i0 + 1:]

def gen_k1(P):
    name = "quip_s1_kernel"
    k = K(name)
    k("s_cmp_ge_u32 s2, 256")
    k("s_cbranch_scc1 L_k1_end")
    k("s_load_dwordx16 s[8:23], s[0:1], 0")
    k("s_load_dwordx2 s[24:25], s[0:1], 64")
    stamp_begin(k, P)
    k("v_lshrrev_b32 v1, 6, v0")
    k("v_and_b32 v0, 63, v0")
    k("v_readfirstlane_b32 s3, v1")
    k("s_and_b32 s4, s2, 1")
    k("s_bfe_u32 s5, s2, 0x20001")
    k("s_lshr_b32 s6, s2, 3")
    k("s_and_b32 s50, s6, 3")
    k("s_lshr_b32 s51, s6, 2")
    k("s_lshl_b32 s4, s4, 2")
    k("s_add_u32 s4, s4, s50")
    k("s_lshl_b32 s5, s5, 3")
    k("s_add_u32 s5, s5, s51")
    k("s_cmp_ge_u32 s5, 27")
    k("s_cbranch_scc1 L_k1_xr")
    wv_role(k, P)
    k.label("L_k1_xr")
    k("s_sub_u32 s5, s5, 27")
    k("s_add_u32 s50, s50, s5")
    k("s_and_b32 s50, s50, 3")
    xr_role(k, P)
    k.label("L_k1_end")
    k("s_endpgm")
    return name, k.text(), desc(name, 208, 102, 208), (256, 512, 163840)

def kernels(P):
    return [gen_k1(P), G1.gen_k2(P)]
def gen(P):
    return assemble(kernels(P))
def is_wv(b, P):
    return ((b >> 1) & 3) * 8 + (b >> 5) < 27
def is_xr(b, P):
    return ~is_wv(b, P)

if __name__ == "__main__":
    import json
    P = json.loads(sys.argv[2]) if len(sys.argv) > 2 else {}
    open(sys.argv[1], "w").write(gen(P))
```

```python
import sys
from asmlib import *
from gen import magic, VM, stamp_begin, stamp_mid, stamp_end, STAMP_OFF
from gen4 import xr_orders
XRF_OFF = 0x1000000
WVF_OFF = 0x2000000
AQ_OFF = 0x3000000
SYNC_OFF = 0xC00000; SYNC2_OFF = 0xC40000; PROBE_OFF = 0xC80000
WS_BYTES = 0x5000000
TAGC = 0x5bd1e995
LCNT = 163840 - 64
NWV = {2: [32, 32, 32, 12], 4: [32, 32, 22, 22], 8: [27, 27, 27, 27]}
XSTG = 49152
SPIN_MAX = 1 << 20
FS = 8
KNAME = "standalone__weight_only_int_quip__prompt_kernel"

def poll_loop(k, name, load, cmp_lines, sleep=0, wait="vmcnt(0)"):
    k("s_mov_b32 s80, 0")
    k.label(name)
    if sleep: k(f"s_sleep {sleep}")
    k(load)
    k("s_add_u32 s80, s80, 1")
    k(f"s_cmp_ge_u32 s80, {SPIN_MAX}")
    k(f"s_cbranch_scc1 {name}_done")
    k(f"s_waitcnt {wait}")
    for l in cmp_lines: k(l)
    k(f"s_cbranch_scc0 {name}")
    k.label(f"{name}_done")

def lds_wait(k, name, n, sleep=0):
    poll_loop(k, name, "ds_read_b32 v30, v2", ["v_readfirstlane_b32 s52, v30", f"s_cmp_ge_u32 s52, {n}"], wait="lgkmcnt(0)", sleep=sleep)

def arrive(k):
    k("s_waitcnt vmcnt(0)")
    k("v_mov_b32 v7, 1")
    k("s_mov_b64 exec, 1")
    k("ds_add_u32 v2, v7")
    k("s_mov_b64 exec, -1")

DECODE = ["v_readlane_b32 s59, v30, 31", f"s_add_u32 s52, s59, {TAGC}", "v_subrev_u32 v30, s52, v30",
          "v_cmp_eq_u32 vcc, 1, v30", "s_mov_b32 s83, vcc_lo", "v_cmp_gt_u32 vcc, 2, v30", "s_mov_b32 s63, vcc_lo"]

def poll_sub(k, P):
    k.label("L_poll2")
    poll_loop(k, "L_poll2_l", "ds_read_b64 v[30:31], v2 offset:16",
              ["v_readfirstlane_b32 s83, v31", "v_readfirstlane_b32 s63, v30", "s_and_b32 s52, s63, s76", "s_cmp_eq_u32 s52, s76",
               "s_cbranch_scc1 L_poll_ret", "s_bitcmp1_b32 s63, 31"], wait="lgkmcnt(0)")
    k.label("L_poll")
    k("s_mov_b32 exec_lo, -1")
    k("s_mov_b32 exec_hi, 0")
    poll_loop(k, "L_poll_l", "v_mov_b32 v30, 0\nbuffer_atomic_or v30, v8, s[44:47], 0 offen sc0 sc1", DECODE + ["s_and_b32 s52, s63, s76", "s_cmp_eq_u32 s52, s76"])
    k("s_mov_b64 exec, -1")
    k.label("L_poll_ret")
    k("s_setpc_b64 s[78:79]")

uid = [0]
def ensure(k, sub="L_poll"):
    uid[0] += 1
    k("s_and_b32 s52, s63, s76")
    k("s_cmp_eq_u32 s52, s76")
    k(f"s_cbranch_scc1 L_ok{uid[0]}")
    k(f"s_call_b64 s[78:79], {sub}")
    k.label(f"L_ok{uid[0]}")

def gather(k, P, reg, addr):
    gm = P.get("gm", "sc1")
    if gm == "atom":
        k(f"v_mov_b32 {reg}, 0")
        k(f"buffer_atomic_or {reg}, {addr}, s[44:47], 0 offen offset:124 sc0 sc1")
    else:
        k(f"buffer_load_dword {reg}, {addr}, s[44:47], 0 offen offset:124 {gm}")

def push(k, P, data, addr, so):
    if P.get("wm") == "atom": k(f"buffer_atomic_swap {data}, {addr}, s[44:47], {so} offen sc1")
    else: k(f"buffer_store_dword {data}, {addr}, s[44:47], {so} offen sc1")

def bump(k):
    k("v_mov_b32 v30, 2")
    k("s_mov_b64 exec, 1")
    k("buffer_atomic_add v30, v8, s[44:47], 0 offen offset:124 sc1")
    k("s_mov_b64 exec, -1")

puid = [0]
def probe(k, P, reps=1):
    if "pol" in P: return
    puid[0] += 1
    k("s_lshr_b32 s52, s2, 4")
    k("s_lshl_b32 s52, s52, 14")
    k("s_and_b32 s54, s2, 15")
    k("s_lshl_b32 s54, s54, 9")
    k("s_add_u32 s52, s52, s54")
    k(f"s_add_u32 s52, s52, {PROBE_OFF}")
    k("s_add_u32 s84, s24, s52")
    k("s_addc_u32 s85, s25, 0")
    k("s_mov_b32 s54, 0")
    for i in range(reps):
        k(f"s_load_dword s100, s[84:85], {i*128}")
        k(f"s_load_dword s101, s[84:85], {8192 + i*128}")
        k("s_waitcnt lgkmcnt(1)")
        k(f"s_sleep {P.get('pg', 1)}")
        k("s_getreg_b32 s81, hwreg(HW_REG_IB_STS, 8, 4)")
        k("s_add_u32 s54, s54, s81")
        if i + 1 < reps: k("s_waitcnt lgkmcnt(0)")
    k(f"s_cmp_le_u32 s54, {reps // 2}")
    k("s_cselect_b32 s81, 2, 1")
    decide(k, P, "s81")

def decide(k, P, default):
    if "pol" in P:
        return
    k(f"v_mov_b32 v31, {default}")
    k("s_mov_b64 exec, 1")
    k("ds_cmpst_rtn_b32 v30, v2, v3, v31 offset:4")
    k("s_waitcnt lgkmcnt(0)")
    k("s_mov_b64 exec, -1")
    k("v_readfirstlane_b32 s82, v30")
    k("s_cmp_eq_u32 s82, 0")
    k(f"s_cselect_b32 s82, {default}, s82")
    k("s_sub_u32 s82, s82, 1")
    k("s_lshl_b32 s82, s82, 13")

def wv_role(k, P):
    NAD = 3; NB = P.get("NB", 11); TH = P.get("th", 4)
    ARING = 0; BRING = NAD * 20480; STG = BRING + NB * 8192
    RED = 124 * 1024
    assert STG + 10240 <= LCNT and NB % 2 == 1
    for i in (25, 26): assert not (BRING + (i % NB) * 8192 < RED + 20480 and RED < BRING + (i % NB + 1) * 8192)
    k("s_lshr_b32 s53, s4, 1")
    k("s_lshl_b32 s70, s53, 3")
    k("s_add_u32 s71, s70, 6")
    k("s_lshl_b32 s52, s53, 1")
    k("s_add_u32 s52, s52, 32")
    k("s_bitcmp1_b32 s4, 0")
    k("s_cselect_b32 s71, s52, s71")
    k("s_cselect_b32 s52, 3, 0")
    k("s_add_u32 s70, s70, s52")
    k(f"s_mul_i32 s68, s5, {P.get('on', 1)}")
    k(f"s_mul_i32 s52, s60, {P.get('oa', 7)}")
    k("s_add_u32 s68, s68, s52")
    k(f"s_mul_hi_u32 s52, s68, {magic(27)}")
    k("s_mul_i32 s52, s52, 27")
    k("s_sub_u32 s68, s68, s52")
    k("s_cmp_ge_u32 s3, 5")
    k("s_cbranch_scc1 L_wv_nodq")
    k("s_add_u32 s52, s70, s3")
    k("s_add_u32 s54, s71, s3")
    k("s_sub_u32 s54, s54, 3")
    k("s_cmp_ge_u32 s3, 3")
    k("s_cselect_b32 s52, s54, s52")
    k("v_lshrrev_b32 v24, 4, v0")
    k("v_and_b32 v25, 15, v0")
    k("v_mul_u32_u24 v26, 6912, v24")
    k("v_lshl_add_u32 v4, v25, 4, v26")
    k(f"s_mul_i32 s55, s52, {16*6912}")
    k("s_lshl_b32 s54, s68, 8")
    k("s_add_u32 s55, s55, s54")
    for m in range(1, 4): k(f"s_add_u32 s{55+m}, s55, {m*4*6912}")
    k("s_lshr_b32 s52, s52, 3")
    k("s_mul_i32 s52, s52, 3456")
    k("s_lshl_b32 s54, s68, 7")
    k("s_add_u32 s52, s52, s54")
    k("v_lshlrev_b32 v8, 3, v25")
    k("s_waitcnt lgkmcnt(0)")
    srd(k, 28, 10, 640 * 1728 * 4)
    R = 32
    for m in range(4): k(f"buffer_load_dwordx4 v[{R+4*m}:{R+4*m+3}], v4, s[28:31], s{55+m} offen")
    srd(k, 36, 12, 5 * 1728 * 2)
    srd(k, 40, 14, 5 * 1728 * 2)
    k("buffer_load_dwordx2 v[10:11], v8, s[36:39], s52 offen")
    k("buffer_load_dwordx2 v[12:13], v8, s[40:43], s52 offen")
    k("s_barrier")
    srd(k, 44, 24, WS_BYTES)
    k("v_lshrrev_b32 v27, 1, v25")
    k("v_lshlrev_b32 v26, 8, v27")
    k("v_and_b32 v28, 1, v25")
    k("v_lshl_add_u32 v26, v28, 3, v26")
    k("s_lshl_b32 s52, s3, 11")
    k(f"s_add_u32 s52, s52, {STG}")
    k("v_add_u32 v26, s52, v26")
    k("v_xor_b32 v27, v27, v24")
    k("v_lshl_add_u32 v4, v27, 4, v26")
    k("v_xor_b32 v5, 64, v4")
    k("v_xor_b32 v28, v0, v24")
    k("v_lshl_add_u32 v28, v28, 4, s52")
    k("v_xor_b32 v29, 64, v28")
    k("s_lshl_b32 s52, s4, 22")
    k("s_lshl_b32 s54, s68, 15")
    k("s_add_u32 s52, s52, s54")
    k("s_lshl_b32 s54, s3, 10")
    k("s_add_u32 s52, s52, s54")
    k(f"s_add_u32 s52, s52, {AQ_OFF}")
    k("s_mov_b32 s55, s52")
    k("v_lshlrev_b32 v9, 4, v0")
    k("s_waitcnt vmcnt(0)")
    for i in range(2):
        k(f"v_lshlrev_b32 v{14+2*i}, 16, v{10+i}"); k(f"v_and_b32 v{15+2*i}, 0xffff0000, v{10+i}")
        k(f"v_lshlrev_b32 v{18+2*i}, 16, v{12+i}"); k(f"v_and_b32 v{19+2*i}, 0xffff0000, v{12+i}")
    for i in range(4): k(f"v_mul_f32 v{18+i}, -v{18+i}, v{14+i}")
    for m in range(4):
        r = R + 4 * m
        for i in range(4): k(f"v_cvt_f32_i32 v{r+i}, v{r+i}")
        for i in range(4): k(f"v_fma_f32 v{r+i}, v{r+i}, v{14+i}, v{18+i}")
        k(f"v_cvt_pk_bf16_f32 v{r}, v{r}, v{r+1}")
        k(f"v_cvt_pk_bf16_f32 v{r+1}, v{r+2}, v{r+3}")
        k(f"ds_write_b64 v{4+(m&1)}, v[{r}:{r+1}] offset:{(m>>1)*128}")
    k("ds_read_b128 v[48:51], v28")
    k("ds_read_b128 v[52:55], v29 offset:1024")
    decide(k, P, 1)
    k("s_add_u32 s55, s55, s82")
    k("s_add_u32 s54, s55, 16384")
    k("s_waitcnt lgkmcnt(0)")
    k("buffer_store_dwordx4 v[48:51], v9, s[44:47], s55 offen sc1")
    k("buffer_store_dwordx4 v[52:55], v9, s[44:47], s54 offen sc1")
    arrive(k)
    k("s_cmp_lt_u32 s3, 4")
    k("s_cbranch_scc1 L_wv_cons")
    k("s_branch L_wv_ld")
    k.label("L_wv_nodq")
    k("s_waitcnt lgkmcnt(0)")
    k("s_barrier")
    k("s_cmp_lg_u32 s3, 5")
    k("s_cbranch_scc1 L_wv_npi")
    probe(k, P)
    k.label("L_wv_npi")
    srd(k, 44, 24, WS_BYTES)
    k.label("L_wv_ld")
    VB = 12
    k("s_and_b32 s62, s3, 1")
    k("s_bfe_u32 s61, s3, 0x10001")
    k("v_lshrrev_b32 v24, 3, v0")
    k("v_and_b32 v25, 7, v0")
    k("v_mul_u32_u24 v26, 3456, v24")
    k("v_bfe_u32 v27, v0, 4, 1")
    k("v_lshlrev_b32 v27, 1, v27")
    k("v_xor_b32 v27, v25, v27")
    k("v_lshl_add_u32 v26, v27, 4, v26")
    k(f"s_mul_i32 s52, s62, {32*3456}")
    k("s_lshl_b32 s54, s5, 7")
    k("s_add_u32 s52, s52, s54")
    k(f"v_add_u32 v{VB}, s52, v26")
    k(f"v_xor_b32 v{VB+1}, 64, v{VB}")
    k(f"v_add_u32 v{VB+1}, {8*3456}, v{VB+1}")
    k(f"v_add_u32 v{VB+2}, {16*3456}, v{VB}")
    k(f"v_add_u32 v{VB+3}, {16*3456}, v{VB+1}")
    k("s_lshl_b32 s66, s62, 12")
    k(f"s_add_u32 s66, s66, {BRING}")
    srd(k, 32, 18, 1728 * 1728 * 2)
    def fireB():
        for n in range(4):
            k(f"buffer_load_dwordx4 v{VB+n}, s[32:35], s58 offen lds")
            if n < 3:
                k("s_add_u32 m0, m0, 1024"); k("s_nop 0")
    k("s_cmp_eq_u32 s61, 0")
    k("s_cbranch_scc1 L_wv_nopre")
    k("s_mov_b32 s57, s68")
    k("s_mov_b32 s56, s66")
    k("s_mov_b32 s65, 0")
    def xprefetch(skip):
        XRX = P.get("xrx", 2)
        nw = NWV[XRX][3]; nmx = (32 - nw) // 5; H = 2 * nw
        xi = nmx * 4; per = xi + 10
        S0 = P["xpf"]; total = (P.get("xpe", 10) - S0) * per
        k(f"s_cmp_lt_u32 s7, {8 * (4 - XRX // 2)}")
        k(f"s_cbranch_scc1 {skip}")
        srd(k, 36, 8, 2048 * 640 * 2)
        srd(k, 40, 16, 640 * 640 * 2)
        k("s_lshr_b32 s52, s7, 3")
        k(f"s_sub_u32 s52, s52, {4 - XRX // 2}")
        k(f"s_mul_i32 s52, s52, {256 * nmx * 1280}")
        k("s_lshr_b32 s53, s4, 2")
        k(f"s_mul_i32 s53, s53, {1024 * 1280}")
        k("s_add_u32 s72, s52, s53")
        k("v_mul_u32_u24 v20, 1280, v0")
        k("v_lshlrev_b32 v21, 7, v0")
        k("s_lshl_b32 s73, s6, 1")
        k("s_add_u32 s73, s73, s62")
        k.label("L_wv_pf")
        k(f"s_mul_hi_u32 s52, s73, {magic(per)}")
        k(f"s_mul_i32 s53, s52, {per}")
        k("s_sub_u32 s53, s73, s53")
        k(f"s_add_u32 s52, s52, {S0}")
        k(f"s_cmp_ge_u32 s53, {xi}")
        k("s_cbranch_scc1 L_wv_pfu")
        k(f"s_mul_i32 s53, s53, {64*1280}")
        k("s_lshl_b32 s52, s52, 7")
        k("s_add_u32 s52, s52, s53")
        k("s_add_u32 s52, s52, s72")
        k("buffer_load_dword v201, v20, s[36:39], s52 offen")
        k("s_branch L_wv_pfn")
        k.label("L_wv_pfu")
        k("s_mul_i32 s52, s52, 10")
        k("s_add_u32 s52, s52, s53")
        k(f"s_sub_u32 s52, s52, {xi}")
        k("s_lshl_b32 s52, s52, 13")
        k("buffer_load_dword v201, v21, s[40:43], s52 offen")
        k.label("L_wv_pfn")
        k(f"s_add_u32 s73, s73, {H}")
        k(f"s_cmp_lt_u32 s73, {total}")
        k(f"s_waitcnt vmcnt({P.get('pth', 1)})")
        k("s_cbranch_scc1 L_wv_pf")
    if P.get("xpf") is not None and not P.get("xpa"): xprefetch("L_wv_pre")
    k.label("L_wv_pre")
    k("s_mov_b32 m0, s56")
    k(f"s_mul_i32 s58, s57, {64*3456}")
    fireB()
    k("s_add_u32 s57, s57, 1")
    k("s_cmp_eq_u32 s57, 27")
    k("s_cselect_b32 s57, 0, s57")
    k("s_add_u32 s56, s56, 8192")
    k("s_add_u32 s65, s65, 1")
    k(f"s_cmp_ge_u32 s65, {P.get('n1', 6)}")
    k("s_cbranch_scc1 L_wv_pre2")
    k(f"s_waitcnt vmcnt({TH})")
    k.label("L_wv_pre2")
    k(f"s_cmp_lt_u32 s65, {NB}")
    k("s_cbranch_scc1 L_wv_pre")
    if P.get("xpf") is not None and P.get("xpa"): xprefetch("L_wv_nopre")
    k.label("L_wv_nopre")
    k(f"s_mul_i32 s52, s4, {27 << FS}")
    k(f"s_add_u32 s52, s52, {SYNC_OFF}")
    k(f"v_lshl_add_u32 v6, v0, {FS}, s52")
    k(f"s_lshl_b32 s53, s5, {FS}")
    k("s_add_u32 s52, s52, s53")
    k("v_lshl_add_u32 v8, v0, 2, s52")
    k("s_lshl_b32 s52, s5, 2")
    k(f"s_mul_hi_u32 s72, s52, {magic(7)}")
    k("s_add_u32 s52, s52, 3")
    k(f"s_mul_hi_u32 s73, s52, {magic(7)}")
    k("s_cmp_eq_u32 s72, s73")
    k("s_cselect_b32 s74, 0xffff, -1")
    k("v_bfe_u32 v18, v0, 4, 1")
    k("v_add_u32 v18, s72, v18")
    k("v_and_b32 v16, 15, v0")
    k("v_lshl_add_u32 v16, v16, 4, v18")
    k(f"v_lshlrev_b32 v16, {FS}, v16")
    k(f"v_add_u32 v16, {SYNC2_OFF}, v16")
    k("v_mul_u32_u24 v18, 7, v18")
    k("v_lshrrev_b32 v18, 2, v18")
    k("v_sub_u32 v18, s5, v18")
    k("v_lshl_add_u32 v17, v18, 5, v16")
    k("s_lshl_b32 s75, s4, 2")
    k("s_cmp_lg_u32 s3, 5")
    k("s_cbranch_scc1 L_wv_go")
    k("s_lshl_b32 s53, s68, 2")
    k("s_mov_b64 exec, 0x7ffffff")
    gather(k, P, "v11", "v6")
    k("s_mov_b32 exec_lo, s74")
    gather(k, P, "v19", "v16")
    k("s_mov_b32 exec_lo, 0x7ffffff")
    k("s_waitcnt vmcnt(1)")
    k(f"v_add_u32 v11, {TAGC}, v11")
    k("s_lshr_b32 s52, s82, 13")
    k("v_add_u32 v11, s52, v11")
    lds_wait(k, "L_wv_own", 5)
    push(k, P, "v11", "v6", "s53")
    k("s_mov_b64 exec, -1")
    k.label("L_wv_go")
    k("s_lshl_b32 s52, s4, 22")
    k("s_lshl_b32 s55, s62, 14")
    k("s_add_u32 s52, s52, s55")
    k("s_mul_i32 s55, s62, 5120")
    k(f"s_add_u32 s52, s52, {AQ_OFF}")
    k("v_lshl_add_u32 v9, v0, 4, s52")
    k("v_add_u32 v10, 4096, v9")
    k("s_mul_i32 s52, s61, 10240")
    k("s_add_u32 s55, s55, s52")
    k("s_add_u32 s57, s68, s61")
    k("s_add_u32 s57, s57, 1")
    k("s_sub_u32 s52, s57, 27")
    k("s_cselect_b32 s57, s57, s52")
    k(f"s_add_u32 s67, s57, {NB-1}")
    k("s_sub_u32 s52, s67, 27")
    k("s_cselect_b32 s67, s67, s52")
    k("s_lshl_b32 s69, s61, 13")
    k("s_cmp_lg_u32 s3, 4")
    k("s_cbranch_scc1 L_wv_np")
    k(f"s_lshl_b64 s[76:77], 15, s57")
    k("s_lshr_b64 s[78:79], s[76:77], 27")
    k("s_or_b32 s76, s76, s78")
    k("s_and_b32 s76, s76, 0x7ffffff")
    if P.get("ps", 16): k(f"s_sleep {P.get('ps', 16)}")
    k("s_call_b64 s[78:79], L_poll")
    k("v_mov_b32 v30, s63")
    k("v_mov_b32 v31, s83")
    k("ds_write_b64 v2, v[30:31] offset:8")
    k("s_branch L_wv_np2")
    k.label("L_wv_np")
    poll_loop(k, "L_wv_lm", "ds_read_b64 v[30:31], v2 offset:8", ["v_readfirstlane_b32 s83, v31", "v_readfirstlane_b32 s63, v30", "s_cmp_lg_u32 s63, 0"], wait="lgkmcnt(0)", sleep=1)
    k.label("L_wv_np2")
    stamp_mid(k, P, 3)
    vm = VM()
    def prepA(D):
        k("s_lshl_b32 s76, 1, s57")
        ensure(k)
        k("s_lshl_b32 s64, s57, 15")
        k("s_bitcmp1_b32 s83, s57")
        k("s_cselect_b32 s52, 8192, 0")
        k("s_add_u32 s64, s64, s52")
        k("s_add_u32 s57, s57, 2")
        k("s_sub_u32 s52, s57, 27")
        k("s_cselect_b32 s57, s57, s52")
        k(f"s_add_u32 m0, s55, {ARING + (D % NAD)*20480}")
    def fireA(D):
        for j in range(4): k(f"buffer_load_dwordx4 v9, s[44:47], s64 offen offset:{j*1024} sc1 lds")
        k("s_add_u32 m0, m0, 4096")
        k("s_nop 0")
        k("buffer_load_dwordx4 v10, s[44:47], s64 offen sc1 lds")
        for _ in range(5): vm.issue(("A", D))
    def prepB():
        k(f"s_mul_i32 s58, s67, {64*3456}")
        k("s_add_u32 s67, s67, 2")
        k("s_sub_u32 s52, s67, 27")
        k("s_cselect_b32 s67, s67, s52")
        k("s_add_u32 s56, s66, s69")
        k("s_add_u32 s69, s69, 16384")
        k(f"s_sub_u32 s52, s69, {NB*8192}")
        k("s_cselect_b32 s69, s69, s52")
    na = 0; nb = (NB - 1) // 2
    for _ in range(2):
        prepA(na); k("s_nop 0"); fireA(na); na += 1
    for D in range(13):
        lim = D - 1 + NAD if D >= 1 else NAD - 1
        la = [x for x in range(na, min(12, lim) + 1)][:1]
        lb = [nb] if (D >= 1 and nb <= 12 and (D not in P.get("bskip", []) or nb - D <= 2)) else []
        if lb: prepB()
        if la: prepA(la[0])
        k(f"s_waitcnt vmcnt({vm.wait_for(lambda t: t[1] <= D)})")
        k("s_barrier")
        if la: fireA(la[0])
        if lb:
            k("s_mov_b32 m0, s56"); k("s_nop 0"); fireB()
            for _ in range(4): vm.issue(("B", nb))
            nb += 1
        na += len(la)
    assert na == 13 and nb >= 13
    k("s_cmp_lg_u32 s3, 4")
    k("s_cbranch_scc1 L_wv_nobump")
    bump(k)
    k.label("L_wv_nobump")
    if "pol" not in P:
        k("s_and_b32 s52, s63, 0x7ffffff")
        k("s_and_b32 s53, s83, s52")
        k("s_bcnt1_i32_b32 s52, s52")
        k("s_bcnt1_i32_b32 s53, s53")
        k("s_lshl_b32 s53, s53, 1")
        k("s_cmp_gt_u32 s53, s52")
        k("s_cselect_b32 s82, 8192, 0")
    k("s_mov_b32 s53, 9")
    k("s_branch L_c_ld")
    k.label("L_wv_cons")
    VAR = 48; VBR = 49; VAC = 51; VBC = 52; VO = 54; VRED = 55; VARS = 57
    FR = 64; ACC = 120
    k("s_and_b32 s60, s3, 1")
    k("s_lshr_b32 s61, s3, 1")
    k("s_mul_i32 s52, s61, 5120")
    k(f"v_lshl_add_u32 v{VAR}, v0, 4, s52")
    k("s_lshl_b32 s54, s61, 2")
    k("v_or_b32 v28, s54, v24")
    k("v_xor_b32 v28, v28, v0")
    k("s_lshl_b32 s52, s61, 10")
    k(f"s_add_u32 s52, s52, {STG}")
    k(f"v_lshl_add_u32 v{VARS}, v28, 4, s52")
    k("s_lshl_b32 s63, s60, 1")
    k("s_add_u32 s63, s63, s61")
    k("v_bfe_u32 v28, v0, 2, 2")
    k("v_lshl_add_u32 v28, v24, 3, v28")
    k("v_lshlrev_b32 v28, 7, v28")
    k("v_bfe_u32 v29, v0, 3, 2")
    k("v_xor_b32 v29, s63, v29")
    k("v_lshl_add_u32 v28, v29, 5, v28")
    k("v_and_b32 v29, 3, v0")
    k("v_lshl_add_u32 v28, v29, 3, v28")
    k("s_lshl_b32 s52, s61, 12")
    k(f"s_add_u32 s52, s52, {BRING}")
    k(f"v_add_u32 v{VBR}, s52, v28")
    k(f"v_xor_b32 v{VBR+1}, 32, v{VBR}")
    k("s_lshl_b32 s52, s5, 2")
    k("s_add_u32 s52, s52, s63")
    k(f"s_mul_hi_u32 s54, s52, {magic(7)}")
    k("s_mul_i32 s64, s54, 7")
    k("s_sub_u32 s52, s52, s64")
    k("s_mov_b32 s64, s54")
    k("s_lshr_b32 s54, s64, 2")
    k("s_lshl_b32 s54, s54, 22")
    k("s_and_b32 s81, s64, 3")
    k("s_lshl_b32 s81, s81, 19")
    k("s_add_u32 s54, s54, s81")
    k(f"s_add_u32 s54, s54, {WVF_OFF}")
    k("v_bfe_u32 v28, v0, 2, 1")
    k("v_lshlrev_b32 v28, 10, v28")
    k("v_bfe_u32 v29, v0, 3, 1")
    k("v_lshl_add_u32 v28, v29, 6, v28")
    k("v_and_b32 v29, 3, v0")
    k("v_lshl_add_u32 v28, v29, 4, v28")
    k("v_lshlrev_b32 v29, 4, v25")
    k("s_cmp_eq_u32 s52, 6")
    k("s_cselect_b64 vcc, -1, 0")
    k("s_and_b32 s64, s52, 6")
    k("s_lshl_b32 s64, s64, 10")
    k("s_and_b32 s52, s52, 1")
    k("s_lshl_b32 s52, s52, 7")
    k("s_add_u32 s54, s54, s64")
    k("s_add_u32 s54, s54, s52")
    k("v_cndmask_b32 v28, v28, v29, vcc")
    k("v_lshrrev_b32 v29, 1, v24")
    k("v_lshl_add_u32 v28, v29, 8, v28")
    k("v_add_u32 v28, s54, v28")
    for j in range(5):
        k(f"s_add_u32 s52, s70, {j}" if j < 3 else f"s_add_u32 s52, s71, {j-3}")
        k(f"s_lshr_b32 s{72+j}, s52, 1")
        k(f"s_lshl_b32 s{72+j}, s{72+j}, 14")
        if not P.get("dualW", 1):
            k("s_and_b32 s81, s52, 2")
            k("s_lshl_b32 s81, s81, 12")
            k(f"s_add_u32 s{72+j}, s{72+j}, s81")
        k("s_and_b32 s52, s52, 1")
        k("s_lshl_b32 s52, s52, 9")
        k(f"s_add_u32 s{72+j}, s{72+j}, s52")
    k("s_mov_b32 s77, 0x40000000")
    k("v_and_b32 v29, 1, v24")
    k("v_cmp_eq_u32 vcc, 1, v29")
    for g in range(3):
        k(f"v_mov_b32 v29, s{72+2*g}")
        k(f"v_mov_b32 v30, s{73+2*g}")
        k("v_cndmask_b32 v29, v29, v30, vcc")
        k(f"v_add_u32 v{58+g}, v28, v29")
    k("s_movk_i32 s72, 0x2000")
    if P.get("tlb", 1):
        k("s_mov_b64 exec, 1")
        k("buffer_load_dword v201, v58, s[44:47], 0 offen sc1")
        k("s_mov_b64 exec, -1")
    for i in range(40): k(f"v_mov_b32 v{ACC+i}, 0")
    k("s_mul_i32 s52, s3, 5120")
    k(f"s_add_u32 s52, s52, {RED}")
    k(f"v_lshl_add_u32 v{VRED}, v0, 4, s52")
    k("s_xor_b32 s52, s3, 2")
    k("s_mul_i32 s52, s52, 5120")
    k(f"s_add_u32 s52, s52, {RED}")
    k(f"v_lshl_add_u32 v{VRED+1}, v0, 4, s52")
    def reads(fb, va, aoff, astr, vb):
        f = FR + fb * 28
        out = [f"ds_read_b64_tr_b16 v[{f+20+u*4+sec*2}:{f+21+u*4+sec*2}], v{vb+u} offset:{sec*512}" for u in range(2) for sec in range(2)]
        return out + [f"ds_read_b128 v[{f+j*4}:{f+j*4+3}], v{va} offset:{aoff + j*astr}" for j in range(5)]
    def nextB():
        return [f"v_add_u32 v{VBC}, s57, v{VBR}", f"v_add_u32 v{VBC+1}, s57, v{VBR+1}", "s_add_u32 s57, s57, 8192",
                f"s_cmp_eq_u32 s57, {NB*8192}", "s_cselect_b32 s57, 0, s57"]
    def nextA():
        return [f"v_add_u32 v{VAC}, s56, v{VAR}", "s_add_u32 s56, s56, 20480", f"s_cmp_eq_u32 s56, {NAD*20480}", "s_cselect_b32 s56, 0, s56"]
    def mf(fb, j, u):
        f = FR + fb * 28; a = ACC + (u * 5 + j) * 4
        return f"v_mfma_f32_16x16x32_bf16 v[{a}:{a+3}], v[{f+j*4}:{f+j*4+3}], v[{f+20+u*4}:{f+23+u*4}], v[{a}:{a+3}]"
    def mfmas(fb, fill, waits):
        issued = 0
        for j in range(5):
            for u in range(2):
                for _ in range(2):
                    if fill:
                        x = fill.pop(0); k(x)
                        if x.startswith("ds_"): issued += 1
                if waits and u == 0: k(f"s_waitcnt lgkmcnt({4 - j + issued})")
                k(mf(fb, j, u))
        while fill: k(fill.pop(0))
    k("s_mov_b32 s56, 0"); k("s_mov_b32 s57, 8192")
    for x in nextA() + nextB(): k(x)
    k("s_mov_b32 s65, 0")
    k("s_barrier")
    for x in reads(1, VARS, 0, 2048, VBR): k(x)
    k("s_waitcnt lgkmcnt(0)")
    k("s_branch L_wv_cent")
    k.label("L_wv_cloop")
    k("s_waitcnt lgkmcnt(0)")
    k("s_barrier")
    k.label("L_wv_cent")
    mfmas(1, reads(0, VAC, ARING, 1024, VBC) + nextB(), False)
    mfmas(0, reads(1, VAC, ARING + 10240, 1024, VBC) + nextA() + nextB() + ["s_add_u32 s65, s65, 1"], True)
    k("s_cmp_lt_u32 s65, 13")
    k("s_cbranch_scc1 L_wv_cloop")
    k("s_waitcnt lgkmcnt(0)")
    for u in (1, 0):
        for j in range(5): k(mf(1, j, u))
    stamp_mid(k, P, 0)
    k("s_nop 2")
    for j in range(5):
        a = ACC + (5 + j) * 4
        k(f"ds_write_b128 v{VRED}, v[{a}:{a+3}] offset:{j*1024}")
    k("s_waitcnt lgkmcnt(0)")
    k("s_barrier")
    for j in range(5): k(f"ds_read_b128 v[{FR+28+j*4}:{FR+28+j*4+3}], v{VRED+1} offset:{j*1024}")
    for j in range(5):
        k(f"s_waitcnt lgkmcnt({4-j})")
        for i in range(4): k(f"v_add_f32 v{ACC+j*4+i}, v{ACC+j*4+i}, v{FR+28+j*4+i}")
        t = FR + j * 2
        k(f"v_cvt_pk_bf16_f32 v{t}, v{ACC+j*4}, v{ACC+j*4+1}")
        k(f"v_cvt_pk_bf16_f32 v{t+1}, v{ACC+j*4+2}, v{ACC+j*4+3}")
        if j & 1 or j == 4:
            t = FR + (j >> 1) * 4
            k("s_nop 1")
            k(f"v_permlane16_swap_b32 v{t}, v{t+2}")
            k(f"v_permlane16_swap_b32 v{t+1}, v{t+3}")
            if P.get("dualW", 1):
                k(f"buffer_store_dwordx4 v[{t}:{t+3}], v{58 + (j >> 1)}, s[44:47], 0 offen sc1")
                k(f"buffer_store_dwordx4 v[{t}:{t+3}], v{58 + (j >> 1)}, s[44:47], s72 offen sc1")
            else:
                k(f"buffer_store_dwordx4 v[{t}:{t+3}], v{58 + (j >> 1)}, s[44:47], 0 offen sc1")
    k("s_branch L_c_cons")

def xr_role(k, P):
    k("s_and_b32 s62, s3, 3")
    k("s_cmp_lt_u32 s3, 4")
    k("s_cbranch_scc1 L_xr_cons")
    tabs = [sum(x << (4 * i) for i, x in enumerate(o)) for o in xr_orders(P)]
    k(f"s_mov_b32 s66, {hex(tabs[0] & 0xffffffff)}")
    k(f"s_mov_b32 s67, {hex(tabs[0] >> 32)}")
    for c in range(1, 4):
        k(f"s_cmp_eq_u32 s50, {c}")
        k(f"s_cselect_b32 s66, {hex(tabs[c] & 0xffffffff)}, s66")
        k(f"s_cselect_b32 s67, {hex(tabs[c] >> 32)}, s67")
    VX = 4; VU = 12
    k("v_lshrrev_b32 v28, 3, v0")
    k("v_and_b32 v29, 7, v0")
    k("v_lshrrev_b32 v30, 4, v0")
    k("v_xor_b32 v29, v29, v30")
    k("v_mul_u32_u24 v28, 1280, v28")
    k("v_lshl_add_u32 v28, v29, 4, v28")
    k("s_lshl_b32 s51, s4, 2")
    k("s_add_u32 s51, s51, s62")
    k(f"s_mul_i32 s52, s51, {64*1280}")
    k(f"v_add_u32 v{VX}, s52, v28")
    k(f"v_xor_b32 v{VX+1}, 64, v{VX}")
    k(f"v_add_u32 v{VX+1}, {8*1280}, v{VX+1}")
    for i in range(2, 8): k(f"v_add_u32 v{VX+i}, {16*1280}, v{VX+i-2}")
    k("v_and_b32 v29, 15, v0")
    k("v_lshlrev_b32 v31, 1, v30")
    k("v_xor_b32 v29, v29, v31")
    k("v_mul_u32_u24 v28, 1280, v30")
    k("v_lshl_add_u32 v28, v29, 4, v28")
    k(f"s_mul_i32 s52, s62, {16*1280}")
    k("s_lshl_b32 s53, s5, 8")
    k("s_add_u32 s52, s52, s53")
    k(f"v_add_u32 v{VU}, s52, v28")
    k(f"v_add_u32 v{VU+1}, {4*1280}, v{VU}")
    k(f"v_xor_b32 v{VU+2}, 128, v{VU}")
    k(f"v_add_u32 v{VU+2}, {8*1280}, v{VU+2}")
    k(f"v_add_u32 v{VU+3}, {4*1280}, v{VU+2}")
    k("s_lshl_b32 s55, s62, 13")
    k("s_lshl_b32 s56, s62, 12")
    k("s_add_u32 s56, s56, 32768")
    k("s_mov_b32 s60, 0")
    k("s_mov_b32 s65, 0")
    k("s_waitcnt lgkmcnt(0)")
    srd(k, 28, 8, 2048 * 640 * 2)
    srd(k, 32, 16, 640 * 640 * 2)
    XL = P.get("XL", 7)
    k("s_barrier")
    stamp_mid(k, P, 2)
    k.label("L_xr_lloop")
    k("s_and_b32 s57, s66, 15")
    k("s_lshr_b64 s[66:67], s[66:67], 4")
    k("s_add_u32 m0, s56, s60")
    k("s_lshl_b32 s58, s57, 7")
    k(f"s_mul_i32 s59, s57, {64*1280}")
    for n in range(12):
        if n < 4: k(f"buffer_load_dwordx4 v{VU+n}, s[32:35], s59 offen lds")
        else: k(f"buffer_load_dwordx4 v{VX+n-4}, s[28:31], s58 offen lds")
        if n < 11:
            k("s_add_u32 m0, m0, 1024" if n != 3 else "s_add_u32 m0, s55, s60")
            if n + 1 == XL:
                k("s_cmp_lg_u32 s65, 1")
                k("s_cbranch_scc1 L_xr_ne")
                k(f"s_waitcnt vmcnt({XL})")
                stamp_mid(k, P, 3)
                k("s_barrier")
                k.label("L_xr_ne")
            else: k("s_nop 0")
    k(f"s_add_u32 s60, s60, {XSTG}")
    k(f"s_cmp_eq_u32 s60, {3*XSTG}")
    k("s_cselect_b32 s60, 0, s60")
    k("s_add_u32 s65, s65, 1")
    k("s_cmp_le_u32 s65, 2")
    k("s_cbranch_scc1 L_xr_lloop")
    k("s_waitcnt vmcnt(12)")
    k("s_barrier")
    k("s_cmp_lt_u32 s65, 10")
    k("s_cbranch_scc1 L_xr_lloop")
    k("s_waitcnt vmcnt(0)")
    k("s_barrier")
    srd(k, 44, 24, WS_BYTES)
    k("s_lshl_b32 s52, s4, 5")
    k("v_add_u32 v16, s52, v0")
    k(f"v_lshlrev_b32 v16, {FS}, v16")
    k(f"v_add_u32 v16, {SYNC2_OFF}, v16")
    k("v_mov_b32 v17, v16")
    k("s_lshl_b32 s75, s5, 2")
    k("s_add_u32 s75, s75, 96")
    k("s_mov_b32 s74, -1")
    k("s_mov_b32 s53, 4")
    decide(k, P, 1)
    k("s_cmp_lg_u32 s3, 5")
    k("s_cbranch_scc1 L_c_ld")
    k("s_mov_b32 exec_hi, 0")
    gather(k, P, "v19", "v16")
    k("s_mov_b64 exec, -1")
    k("s_lshr_b32 s52, s82, 13")
    k("s_waitcnt vmcnt(0)")
    k("v_add_u32 v19, s52, v19")
    k("s_branch L_c_ld")
    k.label("L_xr_cons")
    k("s_waitcnt lgkmcnt(0)")
    k("s_barrier")
    k("s_cmp_ge_u32 s3, 1")
    k("s_cbranch_scc1 L_xr_npr")
    probe(k, P, P.get("xreps", 1))
    k.label("L_xr_npr")
    VXR = 4; VUR = 6; VXC = 10; VUC = 12; VO2 = 16
    XACC = 128
    k("s_and_b32 s61, s62, 1")
    k("s_lshr_b32 s63, s62, 1")
    k("v_and_b32 v28, 15, v0")
    k("v_lshrrev_b32 v31, 4, v0")
    k("v_bfe_u32 v29, v0, 1, 3")
    k("v_xor_b32 v29, v29, v31")
    k("v_lshlrev_b32 v29, 4, v29")
    k("v_lshl_add_u32 v28, v28, 7, v29")
    k("s_lshl_b32 s52, s61, 14")
    k(f"v_add_u32 v{VXR}, s52, v28")
    k(f"v_xor_b32 v{VXR+1}, 64, v{VXR}")
    k("v_bfe_u32 v29, v0, 2, 2")
    k("v_lshl_add_u32 v28, v31, 3, v29")
    k("v_lshlrev_b32 v28, 8, v28")
    k("v_bfe_u32 v29, v0, 2, 3")
    k("s_lshl_b32 s52, s63, 2")
    k("v_xor_b32 v29, s52, v29")
    k("v_lshl_add_u32 v28, v29, 5, v28")
    k("v_and_b32 v29, 3, v0")
    k("v_lshl_add_u32 v28, v29, 3, v28")
    k(f"v_add_u32 v{VUR}, 32768, v28")
    for eb in range(1, 4): k(f"v_xor_b32 v{VUR+eb}, {32*eb}, v{VUR}")
    k("s_lshl_b32 s54, s4, 1")
    k("s_add_u32 s54, s54, s61")
    k("s_lshr_b32 s52, s54, 2")
    k("s_lshl_b32 s52, s52, 22")
    k("s_and_b32 s81, s54, 3")
    k("s_lshl_b32 s81, s81, 19")
    k("s_add_u32 s52, s52, s81")
    k(f"s_add_u32 s52, s52, {XRF_OFF}")
    k("s_lshl_b32 s53, s5, 1")
    k("s_add_u32 s53, s53, s63")
    k("s_lshl_b32 s53, s53, 15")
    k("s_add_u32 s52, s52, s53")
    k("v_and_b32 v28, 15, v0")
    k("v_bfe_u32 v29, v0, 4, 1")
    k("v_lshl_add_u32 v28, v29, 5, v28")
    k("v_lshrrev_b32 v29, 5, v0")
    k("v_lshl_add_u32 v28, v29, 4, v28")
    k(f"v_lshl_add_u32 v{VO2}, v28, 4, s52")
    k("s_mov_b32 s68, 4096"); k("s_mov_b32 s69, 16384"); k("s_mov_b32 s70, 20480")
    for i in range(128): k(f"v_mov_b32 v{XACC+i}, 0")
    k("s_waitcnt lgkmcnt(0)")
    srd(k, 44, 24, WS_BYTES)
    FB = [32, 80]
    def acc(eb, mb): return XACC + (mb * 4 + eb) * 4
    def ureads(ks, dst, va):
        return [f"ds_read_b64_tr_b16 v[{dst+eb*4+sec*2}:{dst+eb*4+sec*2+1}], v{va+eb} offset:{(32*ks + 4*sec)*256}" for eb in range(4) for sec in range(2)]
    def xr_reads(ks, buf):
        f = FB[buf]
        return ureads(ks, f + 32, VUC) + [f"ds_read_b128 v[{f+mb*4}:{f+mb*4+3}], v{VXC+ks} offset:{mb*2048}" for mb in range(8)]
    def newstage():
        return [f"v_add_u32 v{VXC+ks}, s64, v{VXR+ks}" for ks in range(2)] + [f"v_add_u32 v{VUC+eb}, s64, v{VUR+eb}" for eb in range(4)] + \
               [f"s_add_u32 s64, s64, {XSTG}", f"s_cmp_eq_u32 s64, {3*XSTG}", "s_cselect_b32 s64, 0, s64"]
    def mf(a, u, x): return f"v_mfma_f32_16x16x32_bf16 v[{a}:{a+3}], v[{u}:{u+3}], v[{x}:{x+3}], v[{a}:{a+3}]"
    def mfmas(buf, fill):
        f = FB[buf]
        for mb in range(8):
            for eb in range(4):
                k(mf(acc(eb, mb), f + 32 + eb * 4, f + mb * 4))
                if fill: k(fill.pop(0))
        assert not fill
    k("s_mov_b32 s64, 0")
    k("s_mov_b32 s65, 0")
    for x in newstage(): k(x)
    k("s_barrier")
    for x in xr_reads(0, 0): k(x)
    k.label("L_xr_cloop")
    k("s_waitcnt lgkmcnt(0)")
    mfmas(0, xr_reads(1, 1) + newstage() + ["s_add_u32 s65, s65, 1", "s_cmp_eq_u32 s65, 8"])
    k("s_waitcnt lgkmcnt(0)")
    k("s_barrier")
    k("s_cbranch_scc1 L_xr_tail")
    mfmas(1, xr_reads(0, 0))
    k("s_branch L_xr_cloop")
    k.label("L_xr_tail")
    decide(k, P, 1)
    k(f"v_add_u32 v{VO2}, s82, v{VO2}")
    UF = [32, 48, 64, 80]; XB = [20, 24, 96, 100, 104, 108, 112, 116]; OT = 120
    q = []
    def lds(s_, tag): k(s_); q.append(tag)
    def ur(t): return ureads(t & 1, UF[t], VUC if t < 2 else VUR)
    def xread(n):
        mb, t = n // 4, n % 4
        r = XB[n % 8]
        return f"ds_read_b128 v[{r}:{r+3}], v{(VXC if t < 2 else VXR) + (t & 1)} offset:{mb*2048}"
    pre = [(x, ("u", 0)) for x in ur(0)] + [(xread(0), ("x", 0))] + [(x, ("u", 1)) for x in ur(1)] + [(xread(1), ("x", 1))]
    f = FB[1]; n = 0
    for mb in range(8):
        for eb in range(4):
            k(mf(acc(eb, mb), f + 32 + eb * 4, f + mb * 4))
            if pre: lds(*pre.pop(0))
            n += 1
            if n == 20:
                k("s_barrier")
                pre = [(x, ("u", 2)) for x in ur(2)]
    assert not pre
    outq = []; osel = [0]
    def out_instrs(mb):
        r = []
        for p in range(2):
            t = OT + osel[0] * 4; osel[0] ^= 1
            a0 = acc(2 * p, mb); a1 = acc(2 * p + 1, mb)
            so = ["0", "s68", "s69", "s70"][2 * p + (mb >> 2)]
            r.append([f"v_cvt_pk_bf16_f32 v{t}, v{a0}, v{a0+1}", f"v_cvt_pk_bf16_f32 v{t+1}, v{a0+2}, v{a0+3}",
                      f"v_cvt_pk_bf16_f32 v{t+2}, v{a1}, v{a1+1}", f"v_cvt_pk_bf16_f32 v{t+3}, v{a1+2}, v{a1+3}",
                      "s_nop 1", f"v_permlane16_swap_b32 v{t}, v{t+2}", f"v_permlane16_swap_b32 v{t+1}, v{t+3}",
                      f"buffer_store_dwordx4 v[{t}:{t+3}], v{VO2}, s[44:47], {so} offen offset:{(mb & 3)*1024} sc1"])
        return r
    nx = 2
    for n in range(32):
        mb, t = n // 4, n % 4
        if n == 0:
            lds(xread(2), ("x", 2)); nx = 3
            for x in ur(3): lds(x, ("u", 3))
        while nx < 32 and nx <= n + 5: lds(xread(nx), ("x", nx)); nx += 1
        need = max(i for i, tg in enumerate(q) if tg == ("x", n) or (mb == 0 and tg == ("u", t)))
        k(f"s_waitcnt lgkmcnt({min(15, len(q) - 1 - need)})")
        o = outq.pop(0) if (t >= 2 and outq) else []
        for eb in range(4):
            k(mf(acc(eb, mb), UF[t] + eb * 4, XB[n % 8]))
            if o: k(o.pop(0))
        while o: k(o.pop(0))
        if t == 3: outq = out_instrs(mb)
    stamp_mid(k, P, 0)
    k("s_nop 7")
    while outq:
        for x in outq.pop(0): k(x)
    k("s_barrier")

def mtmask(t):
    m = 0
    for eb in range(4 * t, 4 * t + 4):
        g, r = eb >> 3, eb & 7
        if g == 4: mt = 2 * (r >> 1) + 1
        else: mt = 2 * g + (1 if 3 <= r < 6 else 0)
        m |= 1 << mt
    return m

def c_ids(k):
    k("s_and_b32 s52, s2, 7")
    k("s_lshr_b32 s54, s2, 3")
    k("s_lshr_b32 s4, s52, 1")
    k("s_lshl_b32 s4, s4, 2")
    k("s_and_b32 s55, s54, 3")
    k("s_add_u32 s4, s4, s55")
    k("s_and_b32 s5, s52, 1")
    k("s_lshl_b32 s5, s5, 3")
    k("s_lshr_b32 s54, s54, 2")
    k("s_add_u32 s5, s5, s54")

def phase_c(k, P):
    NX = P.get("NX", 4); NW = P.get("NW", 4)
    XR = 0; WR = NX * 16384; STG = WR + NW * 14336
    assert STG + 30720 <= LCNT and STG <= 124 * 1024 and 144 * 1024 <= STG + 30720
    order = P.get("corder", list(range(10)))
    k.label("L_c_cons")
    arrive(k)
    k.label("L_c_cons2")
    stamp_mid(k, P, 1)
    c_ids(k)
    VXR = 4; VWR = 5; VXC = 6; VWC = 7; VEW = 8; VER = 9; VST = 10
    ACC = 24; FR = 80; VRD = 152
    k("s_lshl_b32 s52, s3, 11")
    k(f"v_lshl_add_u32 v{VXR}, v0, 4, s52")
    k(f"v_lshlrev_b32 v{VWR}, 4, v0")
    k(f"v_add_u32 v{VWR}, {WR}, v{VWR}")
    for i in range(56): k(f"v_mov_b32 v{ACC+i}, 0")
    k("s_mul_i32 s52, s3, 7680")
    k(f"s_add_u32 s52, s52, {STG}")
    k("v_and_b32 v18, 15, v0")
    k("v_mul_u32_u24 v18, 240, v18")
    k("v_lshrrev_b32 v19, 4, v0")
    k("v_lshl_add_u32 v20, v19, 4, v18")
    k(f"v_add_u32 v{VEW}, s52, v20")
    k("v_lshl_add_u32 v20, v19, 3, v18")
    k(f"v_add_u32 v{VER}, s52, v20")
    k(f"s_mov_b32 s53, {magic(14)}")
    k("s_lshl_b32 s54, s4, 2")
    k("s_add_u32 s54, s54, s3")
    k(f"s_mul_i32 s54, s54, {32*3456}")
    k("s_mul_i32 s55, s5, 224")
    k("s_add_u32 s54, s54, s55")
    k("s_sub_u32 s55, 3456, s55")
    k("v_mov_b32 v23, 0x7fffffff")
    for i in range(7):
        k(f"v_add_u32 v18, {64*i}, v0")
        k("v_mul_hi_u32 v19, v18, s53")
        k("v_mul_u32_u24 v20, 14, v19")
        k("v_sub_u32 v18, v18, v20")
        k("v_lshlrev_b32 v18, 4, v18")
        k("v_cmp_gt_u32 vcc, s55, v18")
        k("v_mul_u32_u24 v20, 240, v19")
        k(f"v_add3_u32 v{VRD+i}, v20, v18, s52")
        k("v_mul_u32_u24 v20, 3456, v19")
        k(f"v_add3_u32 v{VST+i}, v20, v18, s54")
        k(f"v_cndmask_b32 v{VST+i}, v23, v{VST+i}, vcc")
    srd(k, 28, 20, 2048 * 1728 * 2)
    k("s_mov_b32 s56, 0"); k("s_mov_b32 s57, 0")
    def newstage():
        return [f"v_add_u32 v{VXC}, s56, v{VXR}", f"v_add_u32 v{VWC}, s57, v{VWR}"]
    def advance():
        return ["s_add_u32 s56, s56, 16384", f"s_cmp_eq_u32 s56, {NX*16384}",
                "s_cselect_b32 s56, 0, s56", "s_add_u32 s57, s57, 14336", f"s_cmp_eq_u32 s57, {NW*14336}", "s_cselect_b32 s57, 0, s57"]
    def reads(ks):
        f = FR + ks * 36
        out = [f"ds_read_b128 v[{f+28+u*4}:{f+31+u*4}], v{VXC} offset:{XR + u*1024 + ks*8192}" for u in range(0 if P.get("ab_noxr") else 2)]
        return out + [f"ds_read_b128 v[{f+b*4}:{f+b*4+3}], v{VWC} offset:{ks*7168 + b*1024}" for b in range(7)]
    RLX = P.get("rlx", 1)
    def mfmas(ks, fill, waits):
        f = FR + ks * 36; issued = 0
        rd = [x for x in fill if x.startswith("ds_")]; ot = [x for x in fill if not x.startswith("ds_")]
        slots = P.get("rs", [0, 1, 2, 4, 5, 7, 8, 10, 11]) if RLX else list(range(9))
        last = None
        for b in range(7):
            for u in range(2):
                i = 2 * b + u
                if waits and u == 0:
                    n = min(15, 6 - b + issued)
                    if not (RLX and b >= 1 and b != P.get("wb", 3) and rd is not None and len(fill)):
                        k(f"s_waitcnt lgkmcnt({n if not (RLX and len(fill)) else (7 - P.get('wb', 3) if b == 0 else issued)})")
                a = ACC + (u * 7 + b) * 4
                k(f"v_mfma_f32_16x16x32_bf16 v[{a}:{a+3}], v[{f+b*4}:{f+b*4+3}], v[{f+28+u*4}:{f+31+u*4}], v[{a}:{a+3}]")
                if rd and i in slots:
                    k(rd.pop(0)); issued += 1
                elif ot and (not ot[0].startswith("v_add") or not rd):
                    k(ot.pop(0))
                    if ot and not rd: k(ot.pop(0))
        assert not rd
        while ot: k(ot.pop(0))
    for x in newstage() + advance(): k(x)
    k("s_mov_b32 s65, 0")
    if P.get("cp", 1):
        k("s_cmp_lg_u32 s3, 0")
        k("s_cbranch_scc1 L_c_nopoll")
        k("s_mul_i32 s52, s5, 7")
        k("s_add_u32 s54, s52, 6")
        k("s_lshr_b32 s52, s52, 2")
        k("s_lshr_b32 s54, s54, 2")
        k("s_min_u32 s54, s54, 26")
        k("s_sub_u32 s52, s54, s52")
        k("s_mov_b32 s66, 1")
        k("s_cmp_ge_u32 s52, 1")
        k("s_cselect_b32 s66, 0x101, s66")
        k("s_cmp_ge_u32 s52, 2")
        k("s_cselect_b32 s66, 0x10101, s66")
        w0 = 0
        for i in range(P.get("W0", 4)): w0 |= mtmask(order[i])
        x0 = 0
        for i in range(P["X0"]): x0 |= 1 << (24 + order[i] // 2)
        k(f"s_mul_i32 s76, s66, {w0}")
        k(f"s_or_b32 s76, s76, {x0}")
        k("s_lshl_b32 s52, s4, 4")
        k("s_add_u32 s52, s52, s5")
        k(f"s_lshl_b32 s52, s52, {FS}")
        k(f"s_add_u32 s52, s52, {SYNC2_OFF}")
        k("v_lshl_add_u32 v160, v0, 2, s52")
        k("s_mov_b32 exec_hi, 0")
        one = ["v_mov_b32 v161, 0", "buffer_atomic_or v161, v160, s[44:47], 0 offen sc0 sc1"]
        dec = [x.replace("v30", "v161") for x in DECODE]
        pub = ["v_mov_b32 v162, s63", "v_mov_b32 v163, s83", "ds_write_b64 v2, v[162:163] offset:16"]
        poll_loop(k, "L_c_pl", "\n".join(one), dec + pub + ["s_and_b32 s52, s63, s76", "s_cmp_eq_u32 s52, s76"])
        for _ in range(P.get("xp", 1)):
            for x in one + ["s_waitcnt vmcnt(0)"] + dec: k(x)
        k("s_bitset1_b32 s63, 31")
        for x in pub: k(x)
        k("s_mov_b64 exec, -1")
        k.label("L_c_nopoll")
    k("s_barrier")
    stamp_mid(k, P, 2)
    for x in reads(0): k(x)
    k.label("L_c_cloop")
    mfmas(0, reads(1) + ["s_add_u32 s65, s65, 1", "s_cmp_eq_u32 s65, 10"] + newstage(), True)
    k("s_cbranch_scc1 L_c_cdone")
    if not RLX: k("s_waitcnt lgkmcnt(0)")
    k("s_barrier")
    mfmas(1, reads(0) + advance(), bool(RLX))
    k("s_branch L_c_cloop")
    k.label("L_c_cdone")
    mfmas(1, [], True)
    stamp_mid(k, P, 3)
    k("s_nop 4")
    for p in range(4):
        for u in range(2):
            t = FR + (p * 2 + u) * 4
            a0 = ACC + (u * 7 + 2 * p) * 4; a1 = a0 + 4
            k(f"v_cvt_pk_bf16_f32 v{t}, v{a0}, v{a0+1}")
            k(f"v_cvt_pk_bf16_f32 v{t+1}, v{a0+2}, v{a0+3}")
            if p < 3:
                k(f"v_cvt_pk_bf16_f32 v{t+2}, v{a1}, v{a1+1}")
                k(f"v_cvt_pk_bf16_f32 v{t+3}, v{a1+2}, v{a1+3}")
                k(f"ds_write_b128 v{VEW}, v[{t}:{t+3}] offset:{u*16*240 + p*64}")
            else:
                k(f"ds_write_b64 v{VER}, v[{t}:{t+1}] offset:{u*16*240 + 192}")
    for i in range(7): k(f"ds_read_b128 v[{ACC+i*4}:{ACC+i*4+3}], v{VRD+i}")
    for i in range(7):
        k(f"s_waitcnt lgkmcnt({6-i})")
        k(f"buffer_store_dwordx4 v[{ACC+i*4}:{ACC+i*4+3}], v{VST+i}, s[28:31], 0 offen {P.get('k2_stflags', '')}")
    stamp_end(k, P, 0, 44, 112, 3)
    k("s_endpgm")
    k.label("L_c_ld")
    c_ids(k)
    k("s_and_b32 s62, s3, 1")
    k("s_lshl_b32 s52, s4, 4")
    k("s_add_u32 s52, s52, s5")
    k(f"s_lshl_b32 s52, s52, {FS}")
    k(f"s_add_u32 s52, s52, {SYNC2_OFF}")
    k("v_lshl_add_u32 v8, v0, 2, s52")
    k("s_mov_b32 s63, 0")
    k("s_cmp_ge_u32 s3, 6")
    k("s_cbranch_scc1 L_c_xl")
    k("s_mul_i32 s52, s5, 7")
    k("s_add_u32 s54, s52, 6")
    k("s_lshr_b32 s52, s52, 2")
    k("s_lshr_b32 s54, s54, 2")
    k("s_min_u32 s54, s54, 26")
    k("s_sub_u32 s52, s54, s52")
    k("s_mov_b32 s66, 1")
    k("s_cmp_ge_u32 s52, 1")
    k("s_cselect_b32 s66, 0x101, s66")
    k("s_cmp_ge_u32 s52, 2")
    k("s_cselect_b32 s66, 0x10101, s66")
    k("s_lshr_b32 s52, s5, 2")
    k("s_lshl_b32 s52, s52, 22")
    k("s_and_b32 s81, s5, 3")
    k("s_lshl_b32 s81, s81, 19")
    k("s_add_u32 s52, s52, s81")
    k(f"s_add_u32 s52, s52, {WVF_OFF}")
    k("s_lshl_b32 s55, s62, 14")
    k("s_add_u32 s52, s52, s55")
    if P.get("dualW", 1): k("s_add_u32 s52, s52, s82")
    else:
        k("s_lshl_b32 s55, s62, 13")
        k("s_add_u32 s52, s52, s55")
    k("s_mul_i32 s55, s62, 7168")
    k("v_lshl_add_u32 v4, v0, 4, s52")
    k("v_add_u32 v5, 4096, v4")
    k("v_mov_b32 v6, v4")
    k("s_cmp_lg_u32 s5, 15")
    k("s_cbranch_scc1 L_c_nt15")
    k("v_mov_b32 v5, 0x7fffffff")
    k("v_and_b32 v7, 8, v0")
    k("v_cmp_eq_u32 vcc, 0, v7")
    k("s_nop 1")
    k("v_cndmask_b32 v6, v5, v4, vcc")
    k.label("L_c_nt15")
    k(f"s_add_u32 s55, s55, {WR}")
    k("s_barrier")
    k("s_cmp_lg_u32 s3, 5")
    k("s_cbranch_scc1 L_c_nopush")
    k("s_cmp_eq_u32 s74, 0")
    k("s_cbranch_scc1 L_c_nopush")
    k("s_waitcnt vmcnt(0)")
    k(f"v_add_u32 v19, {TAGC}, v19")
    k("s_mov_b32 exec_lo, s74")
    k("s_mov_b32 exec_hi, 0")
    lds_wait(k, "L_c_own", "s53")
    push(k, P, "v19", "v17", "s75")
    k("s_mov_b64 exec, -1")
    stamp_mid(k, P, 0)
    k("s_branch L_c_pushed")
    k.label("L_c_nopush")
    lds_wait(k, "L_c_own4", "s53", sleep=1)
    k.label("L_c_pushed")
    if P.get("ps2", 8): k(f"s_sleep {P.get('ps2', 8)}")
    def run(name, N, per, prep, fire, init, fin=None):
        vm = VM(); ni = 0
        def both(i):
            prep(i); k("s_nop 0"); fire(i)
            for _ in range(per): vm.issue(i)
        for _ in range(init): both(ni); ni += 1
        stamp_mid(k, P, 1)
        for b in range(10):
            lim = min(9, max(N - 1, b - 1 - P.get("rlx", 1) + N))
            todo = list(range(ni, lim + 1))[:1]
            if todo: prep(todo[0])
            k(f"s_waitcnt vmcnt({vm.wait_for(lambda t: t <= b)})")
            k("s_barrier")
            if todo:
                fire(todo[0])
                for _ in range(per): vm.issue(todo[0])
                ni += 1
        assert ni == 10
        if fin: fin()
        if P.get("stamp"):
            k("s_cmp_eq_u32 s3, 5")
            k("s_cselect_b32 s99, s82, s99")
            k("s_and_b32 s62, s3, 3")
            stamp_end(k, P, 2, 44, 32, 62)
        k("s_endpgm")
    def prepW(i):
        k(f"s_mul_i32 s76, s66, {mtmask(order[i])}")
        ensure(k, "L_poll2" if P.get("cp", 1) else "L_poll")
        k(f"s_mov_b32 s58, {order[i]*32768}")
        k(f"s_add_u32 m0, s55, {(i % NW)*14336}")
    def fireW(i):
        if P.get("ab_nowd"): return
        for j in range(4): k(f"buffer_load_dwordx4 v{4 if j < 2 else 6}, s[44:47], s58 offen offset:{j*1024} sc1 lds")
        k("s_add_u32 m0, m0, 4096")
        k("s_nop 0")
        for j in range(3): k(f"buffer_load_dwordx4 v5, s[44:47], s58 offen offset:{j*1024} sc1 lds")
    def finW():
        k("s_cmp_lg_u32 s3, 4")
        k("s_cbranch_scc1 L_c_nobump")
        bump(k)
        k.label("L_c_nobump")
    run("L_c_w", NW, 7, prepW, fireW, P.get("W0", 4), finW)
    k.label("L_c_xl")
    k("s_lshr_b32 s52, s4, 2")
    k("s_lshl_b32 s52, s52, 22")
    k("s_and_b32 s81, s4, 3")
    k("s_lshl_b32 s81, s81, 19")
    k("s_add_u32 s52, s52, s81")
    k(f"s_add_u32 s52, s52, {XRF_OFF}")
    k("s_lshl_b32 s55, s62, 14")
    k("s_add_u32 s52, s52, s55")
    k("v_lshl_add_u32 v4, v0, 4, s52")
    k("v_add_u32 v5, 4096, v4")
    k("s_lshl_b32 s55, s62, 13")
    k("s_barrier")
    if P.get("xhold", 1): lds_wait(k, "L_c_xh", "s53", sleep=1)
    def prepX(i):
        if i == 0 or order[i] // 2 != order[i - 1] // 2:
            k(f"s_mov_b32 s76, {1 << (24 + order[i] // 2)}")
            ensure(k, "L_poll2" if P.get("cp", 1) else "L_poll")
        k(f"s_bitcmp1_b32 s83, {24 + order[i] // 2}")
        k("s_cselect_b32 s58, 8192, 0")
        k(f"s_add_u32 s58, s58, {order[i]*32768}")
        k(f"s_add_u32 m0, s55, {XR + (i % NX)*16384}")
    def fireX(i):
        if P.get("ab_noxd"): return
        for j in range(4): k(f"buffer_load_dwordx4 v4, s[44:47], s58 offen offset:{j*1024} sc1 lds")
        k("s_add_u32 m0, m0, 4096")
        k("s_nop 0")
        for j in range(4): k(f"buffer_load_dwordx4 v5, s[44:47], s58 offen offset:{j*1024} sc1 lds")
    run("L_c_x", NX, 8, prepX, fireX, P.get("X0", NX))

def gen(P):
    uid[0] = 0
    P = dict(P)
    for kk_, v in (("tlb", 0), ("X0", 2), ("xfirst", 0), ("pm", "atom"), ("wm", "atom"), ("ps", 0), ("ps2", 0)): P.setdefault(kk_, v)

    k = K(KNAME)
    k("s_cmp_ge_u32 s2, 256")
    k("s_cbranch_scc1 L_end")
    k("s_load_dwordx16 s[8:23], s[0:1], 0")
    k("s_load_dwordx2 s[24:25], s[0:1], 64")
    stamp_begin(k, P)
    k("s_getpc_b64 s[40:41]")
    k.label("L_pc0")
    k("v_subrev_u32 v4, 504, v0")
    k("v_cmp_gt_u32 vcc, 8, v4")
    k("s_and_saveexec_b64 s[44:45], vcc")
    k("s_cbranch_execz L_noipf")
    k("s_and_b32 s41, s41, 0xffff")
    k("s_mov_b32 s42, L_end - L_pc0")
    k("s_mov_b32 s43, 0x00020000")
    k("s_and_b32 s46, s2, 0xf8")
    k("v_add_lshl_u32 v4, s46, v4, 7")
    k("buffer_load_dword v200, v4, s[40:43], 0 offen")
    k.label("L_noipf")
    k("s_mov_b64 exec, -1")
    k("v_lshrrev_b32 v1, 6, v0")
    k(f"v_mov_b32 v2, {LCNT}")
    k("v_mov_b32 v3, 0")
    k("v_readfirstlane_b32 s3, v1")
    k("ds_write2_b32 v2, v3, v3 offset0:0 offset1:1")
    k("ds_write2_b32 v2, v3, v3 offset0:2 offset1:3")
    k("ds_write2_b32 v2, v3, v3 offset0:4 offset1:5")
    k("v_and_b32 v0, 63, v0")
    k("s_bfe_u32 s4, s2, 0x10002")
    k(f"s_xor_b32 s82, s4, {P.get('pol', 0)}")
    k("s_lshl_b32 s82, s82, 13")
    k("s_and_b32 s5, s2, 3")
    k("s_lshr_b32 s6, s2, 3")
    nwv = NWV[P.get("xrx", 2)]
    base = [sum(nwv[:j]) for j in range(4)]
    xbase = [sum(32 - n for n in nwv[:j]) for j in range(4)]
    pk = lambda v: hex(sum(x << (8 * j) for j, x in enumerate(v)))
    k("s_lshl_b32 s7, s5, 3")
    k(f"s_lshr_b32 s52, {pk(nwv)}, s7")
    k("s_and_b32 s52, s52, 0xff")
    k(f"s_lshr_b32 s53, {pk(base)}, s7")
    k("s_and_b32 s53, s53, 0xff")
    kx = K("x")
    kx(f"s_lshr_b32 s53, {pk(xbase)}, s7")
    kx("s_and_b32 s53, s53, 0xff")
    kx("s_sub_u32 s6, s6, s52")
    kx("s_add_u32 s6, s6, s53")
    kx(f"s_mul_hi_u32 s60, s6, {magic(5)}")
    kx("s_mul_i32 s5, s60, 5")
    kx("s_sub_u32 s5, s6, s5")
    kx("s_lshl_b32 s4, s4, 2")
    kx("s_add_u32 s4, s4, s60")
    kx("s_add_u32 s50, s60, s5")
    kx("s_and_b32 s50, s50, 3")
    xr_role(kx, P)
    i0 = kx.lines.index("L_xr_cons:")
    k("s_cmp_ge_u32 s6, s52")
    if P.get("xfirst", 1):
        k("s_cbranch_scc0 L_wv")
        k.lines += kx.lines[:i0]
        k.label("L_wv")
    else:
        k("s_cbranch_scc1 L_xr")
    k("s_add_u32 s53, s53, s6")
    k("s_and_b32 s60, s53, 3")
    k("s_lshl_b32 s4, s4, 2")
    k("s_add_u32 s4, s4, s60")
    k("s_lshr_b32 s5, s53, 2")
    wv_role(k, P)
    poll_sub(k, P)
    if not P.get("xfirst", 1):
        k.label("L_xr")
        k.lines += kx.lines[:i0]
    k.lines += kx.lines[i0:]
    phase_c(k, P)
    return finish(k)

def finish(k):
    k.label("L_end")
    k("s_endpgm")
    src = "; QuIP weight-only int4 layer: y = (x@U) @ (dequant(qw)@V), one fused launch (generated by dev/gen9.py)\n"
    src += "; @launch grid=(256,1,1) block=(512,1,1) lds=163840\n" + HEADER + k.text()
    src += '.section .rodata,"a"\n' + desc(KNAME, 256, 102, 256)
    return src

def is_wv(b, P):
    import numpy as np
    return (b >> 3) < np.array(NWV[P.get("xrx", 2)])[b & 3]
def is_xr(b, P):
    return ~is_wv(b, P)

if __name__ == "__main__":
    import json
    P = json.loads(sys.argv[2]) if len(sys.argv) > 2 else {}
    open(sys.argv[1], "w").write(gen(P))
```

```python
import sys
from asmlib import *
from gen import magic, VM, stamp_begin, stamp_mid, stamp_end, STAMP_OFF
from gen4 import xr_orders
XRF_OFF = 0x1000000
WVF_OFF = 0x2000000
AQ_OFF = 0x3000000
SYNC_OFF = 0xC00000; SYNC2_OFF = 0xC40000; PROBE_OFF = 0xC80000
WS_BYTES = 0x5000000
TAGC = 0x5bd1e995
LCNT = 163840 - 64
NWV = {2: [32, 32, 32, 12], 4: [32, 32, 22, 22], 8: [27, 27, 27, 27]}
XSTG = 49152
SPIN_MAX = 1 << 20
FS = 8
KNAME = "standalone__weight_only_int_quip__prompt_kernel"

def poll_loop(k, name, load, cmp_lines, sleep=0, wait="vmcnt(0)"):
    k("s_mov_b32 s80, 0")
    k.label(name)
    if sleep: k(f"s_sleep {sleep}")
    k(load)
    k("s_add_u32 s80, s80, 1")
    k(f"s_cmp_ge_u32 s80, {SPIN_MAX}")
    k(f"s_cbranch_scc1 {name}_done")
    k(f"s_waitcnt {wait}")
    for l in cmp_lines: k(l)
    k(f"s_cbranch_scc0 {name}")
    k.label(f"{name}_done")

def lds_wait(k, name, n, sleep=0):
    poll_loop(k, name, "ds_read_b32 v30, v2", ["v_readfirstlane_b32 s52, v30", f"s_cmp_ge_u32 s52, {n}"], wait="lgkmcnt(0)", sleep=sleep)

def arrive(k):
    k("s_waitcnt vmcnt(0)")
    k("v_mov_b32 v7, 1")
    k("s_mov_b64 exec, 1")
    k("ds_add_u32 v2, v7")
    k("s_mov_b64 exec, -1")

DECODE = ["v_readlane_b32 s59, v30, 31", f"s_add_u32 s52, s59, {TAGC}", "v_subrev_u32 v30, s52, v30",
          "v_cmp_eq_u32 vcc, 1, v30", "s_mov_b32 s83, vcc_lo", "v_cmp_gt_u32 vcc, 2, v30", "s_mov_b32 s63, vcc_lo"]

def poll_sub(k, P):
    k.label("L_poll2")
    poll_loop(k, "L_poll2_l", "ds_read_b64 v[30:31], v2 offset:16",
              ["v_readfirstlane_b32 s83, v31", "v_readfirstlane_b32 s63, v30", "s_and_b32 s52, s63, s76", "s_cmp_eq_u32 s52, s76",
               "s_cbranch_scc1 L_poll_ret", "s_bitcmp1_b32 s63, 31"], wait="lgkmcnt(0)")
    k.label("L_poll")
    k("s_mov_b32 exec_lo, -1")
    k("s_mov_b32 exec_hi, 0")
    poll_loop(k, "L_poll_l", "v_mov_b32 v30, 0\nbuffer_atomic_or v30, v8, s[44:47], 0 offen sc0 sc1", DECODE + ["s_and_b32 s52, s63, s76", "s_cmp_eq_u32 s52, s76"])
    k("s_mov_b64 exec, -1")
    k.label("L_poll_ret")
    k("s_setpc_b64 s[78:79]")

uid = [0]
def ensure(k, sub="L_poll"):
    uid[0] += 1
    k("s_and_b32 s52, s63, s76")
    k("s_cmp_eq_u32 s52, s76")
    k(f"s_cbranch_scc1 L_ok{uid[0]}")
    k(f"s_call_b64 s[78:79], {sub}")
    k.label(f"L_ok{uid[0]}")

def gather(k, P, reg, addr):
    gm = P.get("gm", "sc1")
    if gm == "atom":
        k(f"v_mov_b32 {reg}, 0")
        k(f"buffer_atomic_or {reg}, {addr}, s[44:47], 0 offen offset:124 sc0 sc1")
    else:
        k(f"buffer_load_dword {reg}, {addr}, s[44:47], 0 offen offset:124 {gm}")

def push(k, P, data, addr, so):
    if P.get("wm") == "atom": k(f"buffer_atomic_swap {data}, {addr}, s[44:47], {so} offen sc1")
    else: k(f"buffer_store_dword {data}, {addr}, s[44:47], {so} offen sc1")

def bump(k):
    k("v_mov_b32 v30, 2")
    k("s_mov_b64 exec, 1")
    k("buffer_atomic_add v30, v8, s[44:47], 0 offen offset:124 sc1")
    k("s_mov_b64 exec, -1")

puid = [0]
def probe(k, P, reps=1, mid=()):
    if "pol" in P:
        for x in ["s_waitcnt lgkmcnt(0)"] + list(mid): k(x)
        return
    puid[0] += 1
    k("s_lshr_b32 s52, s2, 4")
    k("s_lshl_b32 s52, s52, 14")
    k("s_and_b32 s54, s2, 15")
    k("s_lshl_b32 s54, s54, 9")
    k("s_add_u32 s52, s52, s54")
    k(f"s_add_u32 s52, s52, {PROBE_OFF}")
    k("s_waitcnt lgkmcnt(0)")
    k("s_add_u32 s84, s24, s52")
    k("s_addc_u32 s85, s25, 0")
    k("s_mov_b32 s54, 0")
    for i in range(reps):
        k(f"s_load_dword s100, s[84:85], {i*128}")
        k(f"s_load_dword s101, s[84:85], {8192 + i*128}")
        if i == 0:
            for x in mid: k(x)
        k("s_waitcnt lgkmcnt(1)")
        k(f"s_sleep {P.get('pg', 1)}")
        k("s_getreg_b32 s81, hwreg(HW_REG_IB_STS, 8, 4)")
        k("s_add_u32 s54, s54, s81")
        if i + 1 < reps: k("s_waitcnt lgkmcnt(0)")
    k(f"s_cmp_le_u32 s54, {reps // 2}")
    k("s_cselect_b32 s81, 2, 1")
    decide(k, P, "s81")

def decide(k, P, default):
    if "pol" in P:
        return
    k(f"v_mov_b32 v31, {default}")
    k("s_mov_b64 exec, 1")
    k("ds_cmpst_rtn_b32 v30, v2, v3, v31 offset:4")
    k("s_waitcnt lgkmcnt(0)")
    k("s_mov_b64 exec, -1")
    k("v_readfirstlane_b32 s82, v30")
    k("s_cmp_eq_u32 s82, 0")
    k(f"s_cselect_b32 s82, {default}, s82")
    k("s_sub_u32 s82, s82, 1")
    k("s_lshl_b32 s82, s82, 13")

def wv_role(k, P):
    NAD = 3; NB = P.get("NB", 11); TH = P.get("th", 4)
    ARING = 0; BRING = NAD * 20480; STG = BRING + NB * 8192
    RED = 124 * 1024
    assert STG + 10240 <= LCNT and NB % 2 == 1
    for i in (25, 26): assert not (BRING + (i % NB) * 8192 < RED + 20480 and RED < BRING + (i % NB + 1) * 8192)
    k("s_cmp_lg_u32 s3, 5")
    k("s_cbranch_scc1 L_wv_n5")
    probe(k, P, mid=["s_barrier"])
    k.label("L_wv_n5")
    k("s_lshr_b32 s53, s4, 1")
    k("s_lshl_b32 s70, s53, 3")
    k("s_add_u32 s71, s70, 6")
    k("s_lshl_b32 s52, s53, 1")
    k("s_add_u32 s52, s52, 32")
    k("s_bitcmp1_b32 s4, 0")
    k("s_cselect_b32 s71, s52, s71")
    k("s_cselect_b32 s52, 3, 0")
    k("s_add_u32 s70, s70, s52")
    k(f"s_mul_i32 s68, s5, {P.get('on', 1)}")
    k(f"s_mul_i32 s52, s60, {P.get('oa', 7)}")
    k("s_add_u32 s68, s68, s52")
    k(f"s_mul_hi_u32 s52, s68, {magic(27)}")
    k("s_mul_i32 s52, s52, 27")
    k("s_sub_u32 s68, s68, s52")
    k("s_cmp_ge_u32 s3, 5")
    k("s_cbranch_scc1 L_wv_nodq")
    k("s_add_u32 s52, s70, s3")
    k("s_add_u32 s54, s71, s3")
    k("s_sub_u32 s54, s54, 3")
    k("s_cmp_ge_u32 s3, 3")
    k("s_cselect_b32 s52, s54, s52")
    k("v_lshrrev_b32 v24, 4, v0")
    k("v_and_b32 v25, 15, v0")
    k("v_mul_u32_u24 v26, 6912, v24")
    k("v_lshl_add_u32 v4, v25, 4, v26")
    k(f"s_mul_i32 s55, s52, {16*6912}")
    k("s_lshl_b32 s54, s68, 8")
    k("s_add_u32 s55, s55, s54")
    for m in range(1, 4): k(f"s_add_u32 s{55+m}, s55, {m*4*6912}")
    k("s_lshr_b32 s52, s52, 3")
    k("s_mul_i32 s52, s52, 3456")
    k("s_lshl_b32 s54, s68, 7")
    k("s_add_u32 s52, s52, s54")
    k("v_lshlrev_b32 v8, 3, v25")
    k("s_waitcnt lgkmcnt(0)")
    srd(k, 28, 10, 640 * 1728 * 4)
    R = 32
    for m in range(4): k(f"buffer_load_dwordx4 v[{R+4*m}:{R+4*m+3}], v4, s[28:31], s{55+m} offen")
    srd(k, 36, 12, 5 * 1728 * 2)
    srd(k, 40, 14, 5 * 1728 * 2)
    k("buffer_load_dwordx2 v[10:11], v8, s[36:39], s52 offen")
    k("buffer_load_dwordx2 v[12:13], v8, s[40:43], s52 offen")
    k("s_barrier")
    srd(k, 44, 24, WS_BYTES)
    k("v_lshrrev_b32 v27, 1, v25")
    k("v_lshlrev_b32 v26, 8, v27")
    k("v_and_b32 v28, 1, v25")
    k("v_lshl_add_u32 v26, v28, 3, v26")
    k("s_lshl_b32 s52, s3, 11")
    k(f"s_add_u32 s52, s52, {STG}")
    k("v_add_u32 v26, s52, v26")
    k("v_xor_b32 v27, v27, v24")
    k("v_lshl_add_u32 v4, v27, 4, v26")
    k("v_xor_b32 v5, 64, v4")
    k("v_xor_b32 v28, v0, v24")
    k("v_lshl_add_u32 v28, v28, 4, s52")
    k("v_xor_b32 v29, 64, v28")
    k("s_lshl_b32 s52, s4, 22")
    k("s_lshl_b32 s54, s68, 15")
    k("s_add_u32 s52, s52, s54")
    k("s_lshl_b32 s54, s3, 10")
    k("s_add_u32 s52, s52, s54")
    k(f"s_add_u32 s52, s52, {AQ_OFF}")
    k("s_mov_b32 s55, s52")
    k("v_lshlrev_b32 v9, 4, v0")
    k("s_waitcnt vmcnt(0)")
    for i in range(2):
        k(f"v_lshlrev_b32 v{14+2*i}, 16, v{10+i}"); k(f"v_and_b32 v{15+2*i}, 0xffff0000, v{10+i}")
        k(f"v_lshlrev_b32 v{18+2*i}, 16, v{12+i}"); k(f"v_and_b32 v{19+2*i}, 0xffff0000, v{12+i}")
    for i in range(4): k(f"v_mul_f32 v{18+i}, -v{18+i}, v{14+i}")
    for m in range(4):
        r = R + 4 * m
        for i in range(4): k(f"v_cvt_f32_i32 v{r+i}, v{r+i}")
        for i in range(4): k(f"v_fma_f32 v{r+i}, v{r+i}, v{14+i}, v{18+i}")
        k(f"v_cvt_pk_bf16_f32 v{r}, v{r}, v{r+1}")
        k(f"v_cvt_pk_bf16_f32 v{r+1}, v{r+2}, v{r+3}")
        k(f"ds_write_b64 v{4+(m&1)}, v[{r}:{r+1}] offset:{(m>>1)*128}")
    k("ds_read_b128 v[48:51], v28")
    k("ds_read_b128 v[52:55], v29 offset:1024")
    k("s_and_b32 s81, s68, 1")
    k("s_add_u32 s81, s81, 1")
    decide(k, P, "s81")
    k("s_add_u32 s55, s55, s82")
    k("s_add_u32 s54, s55, 16384")
    k("s_waitcnt lgkmcnt(0)")
    k("buffer_store_dwordx4 v[48:51], v9, s[44:47], s55 offen sc1")
    k("buffer_store_dwordx4 v[52:55], v9, s[44:47], s54 offen sc1")
    arrive(k)
    k("s_cmp_lt_u32 s3, 4")
    k("s_cbranch_scc1 L_wv_cons")
    k("s_branch L_wv_ld")
    k.label("L_wv_nodq")
    k("s_cmp_eq_u32 s3, 5")
    k("s_cbranch_scc1 L_wv_npi")
    k("s_waitcnt lgkmcnt(0)")
    k("s_barrier")
    k.label("L_wv_npi")
    srd(k, 44, 24, WS_BYTES)
    k.label("L_wv_ld")
    VB = 12
    k("s_and_b32 s62, s3, 1")
    k("s_bfe_u32 s61, s3, 0x10001")
    k("v_lshrrev_b32 v24, 3, v0")
    k("v_and_b32 v25, 7, v0")
    k("v_mul_u32_u24 v26, 3456, v24")
    k("v_bfe_u32 v27, v0, 4, 1")
    k("v_lshlrev_b32 v27, 1, v27")
    k("v_xor_b32 v27, v25, v27")
    k("v_lshl_add_u32 v26, v27, 4, v26")
    k(f"s_mul_i32 s52, s62, {32*3456}")
    k("s_lshl_b32 s54, s5, 7")
    k("s_add_u32 s52, s52, s54")
    k(f"v_add_u32 v{VB}, s52, v26")
    k(f"v_xor_b32 v{VB+1}, 64, v{VB}")
    k(f"v_add_u32 v{VB+1}, {8*3456}, v{VB+1}")
    k(f"v_add_u32 v{VB+2}, {16*3456}, v{VB}")
    k(f"v_add_u32 v{VB+3}, {16*3456}, v{VB+1}")
    k("s_lshl_b32 s66, s62, 12")
    k(f"s_add_u32 s66, s66, {BRING}")
    srd(k, 32, 18, 1728 * 1728 * 2)
    def fireB():
        for n in range(4):
            k(f"buffer_load_dwordx4 v{VB+n}, s[32:35], s58 offen lds")
            if n < 3:
                k("s_add_u32 m0, m0, 1024"); k("s_nop 0")
    k("s_cmp_eq_u32 s61, 0")
    k("s_cbranch_scc1 L_wv_nopre")
    k("s_mov_b32 s57, s68")
    k("s_mov_b32 s56, s66")
    k("s_mov_b32 s65, 0")
    def xprefetch(skip):
        XRX = P.get("xrx", 2)
        nw = NWV[XRX][3]; nmx = (32 - nw) // 5; H = 2 * nw
        xi = nmx * 4; per = xi + 10
        S0 = P["xpf"]; total = (P.get("xpe", 10) - S0) * per
        k(f"s_cmp_lt_u32 s7, {8 * (4 - XRX // 2)}")
        k(f"s_cbranch_scc1 {skip}")
        srd(k, 36, 8, 2048 * 640 * 2)
        srd(k, 40, 16, 640 * 640 * 2)
        k("s_lshr_b32 s52, s7, 3")
        k(f"s_sub_u32 s52, s52, {4 - XRX // 2}")
        k(f"s_mul_i32 s52, s52, {256 * nmx * 1280}")
        k("s_lshr_b32 s53, s4, 2")
        k(f"s_mul_i32 s53, s53, {1024 * 1280}")
        k("s_add_u32 s72, s52, s53")
        k("v_mul_u32_u24 v20, 1280, v0")
        k("v_lshlrev_b32 v21, 7, v0")
        k("s_lshl_b32 s73, s6, 1")
        k("s_add_u32 s73, s73, s62")
        k.label("L_wv_pf")
        k(f"s_mul_hi_u32 s52, s73, {magic(per)}")
        k(f"s_mul_i32 s53, s52, {per}")
        k("s_sub_u32 s53, s73, s53")
        k(f"s_add_u32 s52, s52, {S0}")
        k(f"s_cmp_ge_u32 s53, {xi}")
        k("s_cbranch_scc1 L_wv_pfu")
        k(f"s_mul_i32 s53, s53, {64*1280}")
        k("s_lshl_b32 s52, s52, 7")
        k("s_add_u32 s52, s52, s53")
        k("s_add_u32 s52, s52, s72")
        k("buffer_load_dword v201, v20, s[36:39], s52 offen")
        k("s_branch L_wv_pfn")
        k.label("L_wv_pfu")
        k("s_mul_i32 s52, s52, 10")
        k("s_add_u32 s52, s52, s53")
        k(f"s_sub_u32 s52, s52, {xi}")
        k("s_lshl_b32 s52, s52, 13")
        k("buffer_load_dword v201, v21, s[40:43], s52 offen")
        k.label("L_wv_pfn")
        k(f"s_add_u32 s73, s73, {H}")
        k(f"s_cmp_lt_u32 s73, {total}")
        k(f"s_waitcnt vmcnt({P.get('pth', 1)})")
        k("s_cbranch_scc1 L_wv_pf")
    if P.get("xpf") is not None and not P.get("xpa"): xprefetch("L_wv_pre")
    k.label("L_wv_pre")
    k("s_mov_b32 m0, s56")
    k(f"s_mul_i32 s58, s57, {64*3456}")
    fireB()
    k("s_add_u32 s57, s57, 1")
    k("s_cmp_eq_u32 s57, 27")
    k("s_cselect_b32 s57, 0, s57")
    k("s_add_u32 s56, s56, 8192")
    k("s_add_u32 s65, s65, 1")
    k(f"s_cmp_ge_u32 s65, {P.get('n1', 6)}")
    k("s_cbranch_scc1 L_wv_pre2")
    k(f"s_waitcnt vmcnt({TH})")
    k.label("L_wv_pre2")
    k(f"s_cmp_lt_u32 s65, {NB}")
    k("s_cbranch_scc1 L_wv_pre")
    if P.get("xpf") is not None and P.get("xpa"): xprefetch("L_wv_nopre")
    k.label("L_wv_nopre")
    k(f"s_mul_i32 s52, s4, {27 << FS}")
    k(f"s_add_u32 s52, s52, {SYNC_OFF}")
    k(f"v_lshl_add_u32 v6, v0, {FS}, s52")
    k(f"s_lshl_b32 s53, s5, {FS}")
    k("s_add_u32 s52, s52, s53")
    k("v_lshl_add_u32 v8, v0, 2, s52")
    k("s_lshl_b32 s52, s5, 2")
    k(f"s_mul_hi_u32 s72, s52, {magic(7)}")
    k("s_add_u32 s52, s52, 3")
    k(f"s_mul_hi_u32 s73, s52, {magic(7)}")
    k("s_cmp_eq_u32 s72, s73")
    k("s_cselect_b32 s74, 0xffff, -1")
    k("v_bfe_u32 v18, v0, 4, 1")
    k("v_add_u32 v18, s72, v18")
    k("v_and_b32 v16, 15, v0")
    k("v_lshl_add_u32 v16, v16, 4, v18")
    k(f"v_lshlrev_b32 v16, {FS}, v16")
    k(f"v_add_u32 v16, {SYNC2_OFF}, v16")
    k("v_mul_u32_u24 v18, 7, v18")
    k("v_lshrrev_b32 v18, 2, v18")
    k("v_sub_u32 v18, s5, v18")
    k("v_lshl_add_u32 v17, v18, 5, v16")
    k("s_lshl_b32 s75, s4, 2")
    k("s_cmp_lg_u32 s3, 5")
    k("s_cbranch_scc1 L_wv_go")
    k("s_lshl_b32 s53, s68, 2")
    k("s_mov_b64 exec, 0x7ffffff")
    gather(k, P, "v11", "v6")
    k("s_mov_b32 exec_lo, s74")
    gather(k, P, "v19", "v16")
    k("s_mov_b32 exec_lo, 0x7ffffff")
    k("s_waitcnt vmcnt(1)")
    k(f"v_add_u32 v11, {TAGC}, v11")
    k("s_lshr_b32 s52, s82, 13")
    if P.get("stamp"): k("s_mov_b32 s98, s82")
    k("v_add_u32 v11, s52, v11")
    lds_wait(k, "L_wv_own", 5)
    push(k, P, "v11", "v6", "s53")
    k("s_mov_b64 exec, -1")
    k.label("L_wv_go")
    k("s_lshl_b32 s52, s4, 22")
    k("s_lshl_b32 s55, s62, 14")
    k("s_add_u32 s52, s52, s55")
    k("s_mul_i32 s55, s62, 5120")
    k(f"s_add_u32 s52, s52, {AQ_OFF}")
    k("v_lshl_add_u32 v9, v0, 4, s52")
    k("v_add_u32 v10, 4096, v9")
    k("s_mul_i32 s52, s61, 10240")
    k("s_add_u32 s55, s55, s52")
    k("s_add_u32 s57, s68, s61")
    k("s_add_u32 s57, s57, 1")
    k("s_sub_u32 s52, s57, 27")
    k("s_cselect_b32 s57, s57, s52")
    k(f"s_add_u32 s67, s57, {NB-1}")
    k("s_sub_u32 s52, s67, 27")
    k("s_cselect_b32 s67, s67, s52")
    k("s_lshl_b32 s69, s61, 13")
    k("s_cmp_lg_u32 s3, 4")
    k("s_cbranch_scc1 L_wv_np")
    k(f"s_lshl_b64 s[76:77], 15, s57")
    k("s_lshr_b64 s[78:79], s[76:77], 27")
    k("s_or_b32 s76, s76, s78")
    k("s_and_b32 s76, s76, 0x7ffffff")
    if P.get("ps", 16): k(f"s_sleep {P.get('ps', 16)}")
    k("s_call_b64 s[78:79], L_poll")
    k("v_mov_b32 v30, s63")
    k("v_mov_b32 v31, s83")
    k("ds_write_b64 v2, v[30:31] offset:8")
    k("s_branch L_wv_np2")
    k.label("L_wv_np")
    poll_loop(k, "L_wv_lm", "ds_read_b64 v[30:31], v2 offset:8", ["v_readfirstlane_b32 s83, v31", "v_readfirstlane_b32 s63, v30", "s_cmp_lg_u32 s63, 0"], wait="lgkmcnt(0)", sleep=1)
    k.label("L_wv_np2")
    stamp_mid(k, P, 3)
    vm = VM()
    def prepA(D):
        k("s_lshl_b32 s76, 1, s57")
        ensure(k)
        k("s_lshl_b32 s64, s57, 15")
        k("s_bitcmp1_b32 s83, s57")
        k("s_cselect_b32 s52, 8192, 0")
        k("s_add_u32 s64, s64, s52")
        k("s_add_u32 s57, s57, 2")
        k("s_sub_u32 s52, s57, 27")
        k("s_cselect_b32 s57, s57, s52")
        k(f"s_add_u32 m0, s55, {ARING + (D % NAD)*20480}")
    def fireA(D):
        for j in range(4): k(f"buffer_load_dwordx4 v9, s[44:47], s64 offen offset:{j*1024} sc1 lds")
        k("s_add_u32 m0, m0, 4096")
        k("s_nop 0")
        k("buffer_load_dwordx4 v10, s[44:47], s64 offen sc1 lds")
        for _ in range(5): vm.issue(("A", D))
    def prepB():
        k(f"s_mul_i32 s58, s67, {64*3456}")
        k("s_add_u32 s67, s67, 2")
        k("s_sub_u32 s52, s67, 27")
        k("s_cselect_b32 s67, s67, s52")
        k("s_add_u32 s56, s66, s69")
        k("s_add_u32 s69, s69, 16384")
        k(f"s_sub_u32 s52, s69, {NB*8192}")
        k("s_cselect_b32 s69, s69, s52")
    na = 0; nb = (NB - 1) // 2
    for _ in range(2):
        prepA(na); k("s_nop 0"); fireA(na); na += 1
    for D in range(13):
        lim = D - 1 + NAD if D >= 1 else NAD - 1
        la = [x for x in range(na, min(12, lim) + 1)][:1]
        lb = [nb] if (D >= 1 and nb <= 12 and (D not in P.get("bskip", []) or nb - D <= 2)) else []
        if lb: prepB()
        if la: prepA(la[0])
        k(f"s_waitcnt vmcnt({vm.wait_for(lambda t: t[1] <= D)})")
        k("s_barrier")
        if la: fireA(la[0])
        if lb:
            k("s_mov_b32 m0, s56"); k("s_nop 0"); fireB()
            for _ in range(4): vm.issue(("B", nb))
            nb += 1
        na += len(la)
    assert na == 13 and nb >= 13
    k("s_cmp_lg_u32 s3, 4")
    k("s_cbranch_scc1 L_wv_nobump")
    bump(k)
    k.label("L_wv_nobump")
    if "pol" not in P:
        k("s_and_b32 s52, s63, 0x7ffffff")
        k("s_and_b32 s53, s83, s52")
        k("s_bcnt1_i32_b32 s52, s52")
        k("s_bcnt1_i32_b32 s53, s53")
        k("s_lshl_b32 s53, s53, 1")
        k("s_cmp_gt_u32 s53, s52")
        k("s_cselect_b32 s82, 8192, 0")
    k("s_mov_b32 s53, 9")
    k("s_branch L_c_ld")
    k.label("L_wv_cons")
    VAR = 48; VBR = 49; VAC = 51; VBC = 52; VO = 54; VRED = 55; VARS = 57
    FR = 64; ACC = 120
    k("s_and_b32 s60, s3, 1")
    k("s_lshr_b32 s61, s3, 1")
    k("s_mul_i32 s52, s61, 5120")
    k(f"v_lshl_add_u32 v{VAR}, v0, 4, s52")
    k("s_lshl_b32 s54, s61, 2")
    k("v_or_b32 v28, s54, v24")
    k("v_xor_b32 v28, v28, v0")
    k("s_lshl_b32 s52, s61, 10")
    k(f"s_add_u32 s52, s52, {STG}")
    k(f"v_lshl_add_u32 v{VARS}, v28, 4, s52")
    k("s_lshl_b32 s63, s60, 1")
    k("s_add_u32 s63, s63, s61")
    k("v_bfe_u32 v28, v0, 2, 2")
    k("v_lshl_add_u32 v28, v24, 3, v28")
    k("v_lshlrev_b32 v28, 7, v28")
    k("v_bfe_u32 v29, v0, 3, 2")
    k("v_xor_b32 v29, s63, v29")
    k("v_lshl_add_u32 v28, v29, 5, v28")
    k("v_and_b32 v29, 3, v0")
    k("v_lshl_add_u32 v28, v29, 3, v28")
    k("s_lshl_b32 s52, s61, 12")
    k(f"s_add_u32 s52, s52, {BRING}")
    k(f"v_add_u32 v{VBR}, s52, v28")
    k(f"v_xor_b32 v{VBR+1}, 32, v{VBR}")
    k("s_lshl_b32 s52, s5, 2")
    k("s_add_u32 s52, s52, s63")
    k(f"s_mul_hi_u32 s54, s52, {magic(7)}")
    k("s_mul_i32 s64, s54, 7")
    k("s_sub_u32 s52, s52, s64")
    k("s_mov_b32 s64, s54")
    k("s_lshr_b32 s54, s64, 2")
    k("s_lshl_b32 s54, s54, 22")
    k("s_and_b32 s81, s64, 3")
    k("s_lshl_b32 s81, s81, 19")
    k("s_add_u32 s54, s54, s81")
    k(f"s_add_u32 s54, s54, {WVF_OFF}")
    k("v_bfe_u32 v28, v0, 2, 1")
    k("v_lshlrev_b32 v28, 10, v28")
    k("v_bfe_u32 v29, v0, 3, 1")
    k("v_lshl_add_u32 v28, v29, 6, v28")
    k("v_and_b32 v29, 3, v0")
    k("v_lshl_add_u32 v28, v29, 4, v28")
    k("v_lshlrev_b32 v29, 4, v25")
    k("s_cmp_eq_u32 s52, 6")
    k("s_cselect_b64 vcc, -1, 0")
    k("s_and_b32 s64, s52, 6")
    k("s_lshl_b32 s64, s64, 10")
    k("s_and_b32 s52, s52, 1")
    k("s_lshl_b32 s52, s52, 7")
    k("s_add_u32 s54, s54, s64")
    k("s_add_u32 s54, s54, s52")
    k("v_cndmask_b32 v28, v28, v29, vcc")
    k("v_lshrrev_b32 v29, 1, v24")
    k("v_lshl_add_u32 v28, v29, 8, v28")
    k("v_add_u32 v28, s54, v28")
    for j in range(5):
        k(f"s_add_u32 s52, s70, {j}" if j < 3 else f"s_add_u32 s52, s71, {j-3}")
        k(f"s_lshr_b32 s{72+j}, s52, 1")
        k(f"s_lshl_b32 s{72+j}, s{72+j}, 14")
        if not P.get("dualW", 1):
            k("s_and_b32 s81, s52, 2")
            k("s_lshl_b32 s81, s81, 12")
            k(f"s_add_u32 s{72+j}, s{72+j}, s81")
        k("s_and_b32 s52, s52, 1")
        k("s_lshl_b32 s52, s52, 9")
        k(f"s_add_u32 s{72+j}, s{72+j}, s52")
    k("s_mov_b32 s77, 0x40000000")
    k("v_and_b32 v29, 1, v24")
    k("v_cmp_eq_u32 vcc, 1, v29")
    for g in range(3):
        k(f"v_mov_b32 v29, s{72+2*g}")
        k(f"v_mov_b32 v30, s{73+2*g}")
        k("v_cndmask_b32 v29, v29, v30, vcc")
        k(f"v_add_u32 v{58+g}, v28, v29")
    k("s_movk_i32 s72, 0x2000")
    if P.get("tlb", 1):
        k("s_mov_b64 exec, 1")
        k("buffer_load_dword v201, v58, s[44:47], 0 offen sc1")
        k("s_mov_b64 exec, -1")
    for i in range(40): k(f"v_mov_b32 v{ACC+i}, 0")
    k("s_mul_i32 s52, s3, 5120")
    k(f"s_add_u32 s52, s52, {RED}")
    k(f"v_lshl_add_u32 v{VRED}, v0, 4, s52")
    k("s_xor_b32 s52, s3, 2")
    k("s_mul_i32 s52, s52, 5120")
    k(f"s_add_u32 s52, s52, {RED}")
    k(f"v_lshl_add_u32 v{VRED+1}, v0, 4, s52")
    def reads(fb, va, aoff, astr, vb):
        f = FR + fb * 28
        out = [f"ds_read_b64_tr_b16 v[{f+20+u*4+sec*2}:{f+21+u*4+sec*2}], v{vb+u} offset:{sec*512}" for u in range(2) for sec in range(2)]
        return out + [f"ds_read_b128 v[{f+j*4}:{f+j*4+3}], v{va} offset:{aoff + j*astr}" for j in range(5)]
    def nextB():
        return [f"v_add_u32 v{VBC}, s57, v{VBR}", f"v_add_u32 v{VBC+1}, s57, v{VBR+1}", "s_add_u32 s57, s57, 8192",
                f"s_cmp_eq_u32 s57, {NB*8192}", "s_cselect_b32 s57, 0, s57"]
    def nextA():
        return [f"v_add_u32 v{VAC}, s56, v{VAR}", "s_add_u32 s56, s56, 20480", f"s_cmp_eq_u32 s56, {NAD*20480}", "s_cselect_b32 s56, 0, s56"]
    def mf(fb, j, u):
        f = FR + fb * 28; a = ACC + (u * 5 + j) * 4
        return f"v_mfma_f32_16x16x32_bf16 v[{a}:{a+3}], v[{f+j*4}:{f+j*4+3}], v[{f+20+u*4}:{f+23+u*4}], v[{a}:{a+3}]"
    def mfmas(fb, fill, waits):
        issued = 0
        for j in range(5):
            for u in range(2):
                for _ in range(2):
                    if fill:
                        x = fill.pop(0); k(x)
                        if x.startswith("ds_"): issued += 1
                if waits and u == 0: k(f"s_waitcnt lgkmcnt({4 - j + issued})")
                k(mf(fb, j, u))
        while fill: k(fill.pop(0))
    k("s_mov_b32 s56, 0"); k("s_mov_b32 s57, 8192")
    for x in nextA() + nextB(): k(x)
    k("s_mov_b32 s65, 0")
    k("s_barrier")
    for x in reads(1, VARS, 0, 2048, VBR): k(x)
    k("s_waitcnt lgkmcnt(0)")
    k("s_branch L_wv_cent")
    k.label("L_wv_cloop")
    k("s_waitcnt lgkmcnt(0)")
    k("s_barrier")
    k.label("L_wv_cent")
    mfmas(1, reads(0, VAC, ARING, 1024, VBC) + nextB(), False)
    mfmas(0, reads(1, VAC, ARING + 10240, 1024, VBC) + nextA() + nextB() + ["s_add_u32 s65, s65, 1"], True)
    k("s_cmp_lt_u32 s65, 13")
    k("s_cbranch_scc1 L_wv_cloop")
    k("s_waitcnt lgkmcnt(0)")
    for u in (1, 0):
        for j in range(5): k(mf(1, j, u))
    stamp_mid(k, P, 0)
    k("s_nop 2")
    for j in range(5):
        a = ACC + (5 + j) * 4
        k(f"ds_write_b128 v{VRED}, v[{a}:{a+3}] offset:{j*1024}")
    k("s_waitcnt lgkmcnt(0)")
    k("s_barrier")
    for j in range(5): k(f"ds_read_b128 v[{FR+28+j*4}:{FR+28+j*4+3}], v{VRED+1} offset:{j*1024}")
    for j in range(5):
        k(f"s_waitcnt lgkmcnt({4-j})")
        for i in range(4): k(f"v_add_f32 v{ACC+j*4+i}, v{ACC+j*4+i}, v{FR+28+j*4+i}")
        t = FR + j * 2
        k(f"v_cvt_pk_bf16_f32 v{t}, v{ACC+j*4}, v{ACC+j*4+1}")
        k(f"v_cvt_pk_bf16_f32 v{t+1}, v{ACC+j*4+2}, v{ACC+j*4+3}")
        if j & 1 or j == 4:
            t = FR + (j >> 1) * 4
            k("s_nop 1")
            k(f"v_permlane16_swap_b32 v{t}, v{t+2}")
            k(f"v_permlane16_swap_b32 v{t+1}, v{t+3}")
            if P.get("dualW", 1):
                k(f"buffer_store_dwordx4 v[{t}:{t+3}], v{58 + (j >> 1)}, s[44:47], 0 offen sc1")
                k(f"buffer_store_dwordx4 v[{t}:{t+3}], v{58 + (j >> 1)}, s[44:47], s72 offen sc1")
            else:
                k(f"buffer_store_dwordx4 v[{t}:{t+3}], v{58 + (j >> 1)}, s[44:47], 0 offen sc1")
    k("s_branch L_c_cons")

def xr_role(k, P):
    k("s_and_b32 s62, s3, 3")
    k("s_cmp_lt_u32 s3, 4")
    k("s_cbranch_scc1 L_xr_cons")
    tabs = [sum(x << (4 * i) for i, x in enumerate(o)) for o in xr_orders(P)]
    k(f"s_mov_b32 s66, {hex(tabs[0] & 0xffffffff)}")
    k(f"s_mov_b32 s67, {hex(tabs[0] >> 32)}")
    for c in range(1, 4):
        k(f"s_cmp_eq_u32 s50, {c}")
        k(f"s_cselect_b32 s66, {hex(tabs[c] & 0xffffffff)}, s66")
        k(f"s_cselect_b32 s67, {hex(tabs[c] >> 32)}, s67")
    VX = 4; VU = 12
    k("v_lshrrev_b32 v28, 3, v0")
    k("v_and_b32 v29, 7, v0")
    k("v_lshrrev_b32 v30, 4, v0")
    k("v_xor_b32 v29, v29, v30")
    k("v_mul_u32_u24 v28, 1280, v28")
    k("v_lshl_add_u32 v28, v29, 4, v28")
    k("s_lshl_b32 s51, s4, 2")
    k("s_add_u32 s51, s51, s62")
    k(f"s_mul_i32 s52, s51, {64*1280}")
    k(f"v_add_u32 v{VX}, s52, v28")
    k(f"v_xor_b32 v{VX+1}, 64, v{VX}")
    k(f"v_add_u32 v{VX+1}, {8*1280}, v{VX+1}")
    for i in range(2, 8): k(f"v_add_u32 v{VX+i}, {16*1280}, v{VX+i-2}")
    k("v_and_b32 v29, 15, v0")
    k("v_lshlrev_b32 v31, 1, v30")
    k("v_xor_b32 v29, v29, v31")
    k("v_mul_u32_u24 v28, 1280, v30")
    k("v_lshl_add_u32 v28, v29, 4, v28")
    k(f"s_mul_i32 s52, s62, {16*1280}")
    k("s_lshl_b32 s53, s5, 8")
    k("s_add_u32 s52, s52, s53")
    k(f"v_add_u32 v{VU}, s52, v28")
    k(f"v_add_u32 v{VU+1}, {4*1280}, v{VU}")
    k(f"v_xor_b32 v{VU+2}, 128, v{VU}")
    k(f"v_add_u32 v{VU+2}, {8*1280}, v{VU+2}")
    k(f"v_add_u32 v{VU+3}, {4*1280}, v{VU+2}")
    k("s_lshl_b32 s55, s62, 13")
    k("s_lshl_b32 s56, s62, 12")
    k("s_add_u32 s56, s56, 32768")
    k("s_mov_b32 s60, 0")
    k("s_mov_b32 s65, 0")
    k("s_waitcnt lgkmcnt(0)")
    srd(k, 28, 8, 2048 * 640 * 2)
    srd(k, 32, 16, 640 * 640 * 2)
    XL = P.get("XL", 7)
    k("s_barrier")
    stamp_mid(k, P, 2)
    k.label("L_xr_lloop")
    k("s_and_b32 s57, s66, 15")
    k("s_lshr_b64 s[66:67], s[66:67], 4")
    k("s_add_u32 m0, s56, s60")
    k("s_lshl_b32 s58, s57, 7")
    k(f"s_mul_i32 s59, s57, {64*1280}")
    for n in range(12):
        if n < 4: k(f"buffer_load_dwordx4 v{VU+n}, s[32:35], s59 offen lds")
        else: k(f"buffer_load_dwordx4 v{VX+n-4}, s[28:31], s58 offen lds")
        if n < 11:
            k("s_add_u32 m0, m0, 1024" if n != 3 else "s_add_u32 m0, s55, s60")
            if n + 1 == XL:
                k("s_cmp_lg_u32 s65, 1")
                k("s_cbranch_scc1 L_xr_ne")
                k(f"s_waitcnt vmcnt({XL})")
                stamp_mid(k, P, 3)
                k("s_barrier")
                k.label("L_xr_ne")
            else: k("s_nop 0")
    k(f"s_add_u32 s60, s60, {XSTG}")
    k(f"s_cmp_eq_u32 s60, {3*XSTG}")
    k("s_cselect_b32 s60, 0, s60")
    k("s_add_u32 s65, s65, 1")
    k("s_cmp_le_u32 s65, 2")
    k("s_cbranch_scc1 L_xr_lloop")
    k("s_waitcnt vmcnt(12)")
    k("s_barrier")
    k("s_cmp_lt_u32 s65, 10")
    k("s_cbranch_scc1 L_xr_lloop")
    k("s_waitcnt vmcnt(0)")
    k("s_barrier")
    srd(k, 44, 24, WS_BYTES)
    k("s_lshl_b32 s52, s4, 5")
    k("v_add_u32 v16, s52, v0")
    k(f"v_lshlrev_b32 v16, {FS}, v16")
    k(f"v_add_u32 v16, {SYNC2_OFF}, v16")
    k("v_mov_b32 v17, v16")
    k("s_lshl_b32 s75, s5, 2")
    k("s_add_u32 s75, s75, 96")
    k("s_mov_b32 s74, -1")
    k("s_mov_b32 s53, 4")
    decide(k, P, 1)
    k("s_cmp_lg_u32 s3, 5")
    k("s_cbranch_scc1 L_c_ld")
    k("s_mov_b32 exec_hi, 0")
    gather(k, P, "v19", "v16")
    k("s_mov_b64 exec, -1")
    k("s_lshr_b32 s52, s82, 13")
    k("s_waitcnt vmcnt(0)")
    k("v_add_u32 v19, s52, v19")
    k("s_branch L_c_ld")
    k.label("L_xr_cons")
    k("s_waitcnt lgkmcnt(0)")
    k("s_barrier")
    k("s_cmp_ge_u32 s3, 1")
    k("s_cbranch_scc1 L_xr_npr")
    probe(k, P, P.get("xreps", 1))
    k.label("L_xr_npr")
    VXR = 4; VUR = 6; VXC = 10; VUC = 12; VO2 = 16
    XACC = 128
    k("s_and_b32 s61, s62, 1")
    k("s_lshr_b32 s63, s62, 1")
    k("v_and_b32 v28, 15, v0")
    k("v_lshrrev_b32 v31, 4, v0")
    k("v_bfe_u32 v29, v0, 1, 3")
    k("v_xor_b32 v29, v29, v31")
    k("v_lshlrev_b32 v29, 4, v29")
    k("v_lshl_add_u32 v28, v28, 7, v29")
    k("s_lshl_b32 s52, s61, 14")
    k(f"v_add_u32 v{VXR}, s52, v28")
    k(f"v_xor_b32 v{VXR+1}, 64, v{VXR}")
    k("v_bfe_u32 v29, v0, 2, 2")
    k("v_lshl_add_u32 v28, v31, 3, v29")
    k("v_lshlrev_b32 v28, 8, v28")
    k("v_bfe_u32 v29, v0, 2, 3")
    k("s_lshl_b32 s52, s63, 2")
    k("v_xor_b32 v29, s52, v29")
    k("v_lshl_add_u32 v28, v29, 5, v28")
    k("v_and_b32 v29, 3, v0")
    k("v_lshl_add_u32 v28, v29, 3, v28")
    k(f"v_add_u32 v{VUR}, 32768, v28")
    for eb in range(1, 4): k(f"v_xor_b32 v{VUR+eb}, {32*eb}, v{VUR}")
    k("s_lshl_b32 s54, s4, 1")
    k("s_add_u32 s54, s54, s61")
    k("s_lshr_b32 s52, s54, 2")
    k("s_lshl_b32 s52, s52, 22")
    k("s_and_b32 s81, s54, 3")
    k("s_lshl_b32 s81, s81, 19")
    k("s_add_u32 s52, s52, s81")
    k(f"s_add_u32 s52, s52, {XRF_OFF}")
    k("s_lshl_b32 s53, s5, 1")
    k("s_add_u32 s53, s53, s63")
    k("s_lshl_b32 s53, s53, 15")
    k("s_add_u32 s52, s52, s53")
    k("v_and_b32 v28, 15, v0")
    k("v_bfe_u32 v29, v0, 4, 1")
    k("v_lshl_add_u32 v28, v29, 5, v28")
    k("v_lshrrev_b32 v29, 5, v0")
    k("v_lshl_add_u32 v28, v29, 4, v28")
    k(f"v_lshl_add_u32 v{VO2}, v28, 4, s52")
    k("s_mov_b32 s68, 4096"); k("s_mov_b32 s69, 16384"); k("s_mov_b32 s70, 20480")
    for i in range(128): k(f"v_mov_b32 v{XACC+i}, 0")
    k("s_waitcnt lgkmcnt(0)")
    srd(k, 44, 24, WS_BYTES)
    FB = [32, 80]
    def acc(eb, mb): return XACC + (mb * 4 + eb) * 4
    def ureads(ks, dst, va):
        return [f"ds_read_b64_tr_b16 v[{dst+eb*4+sec*2}:{dst+eb*4+sec*2+1}], v{va+eb} offset:{(32*ks + 4*sec)*256}" for eb in range(4) for sec in range(2)]
    def xr_reads(ks, buf):
        f = FB[buf]
        return ureads(ks, f + 32, VUC) + [f"ds_read_b128 v[{f+mb*4}:{f+mb*4+3}], v{VXC+ks} offset:{mb*2048}" for mb in range(8)]
    def newstage():
        return [f"v_add_u32 v{VXC+ks}, s64, v{VXR+ks}" for ks in range(2)] + [f"v_add_u32 v{VUC+eb}, s64, v{VUR+eb}" for eb in range(4)] + \
               [f"s_add_u32 s64, s64, {XSTG}", f"s_cmp_eq_u32 s64, {3*XSTG}", "s_cselect_b32 s64, 0, s64"]
    def mf(a, u, x): return f"v_mfma_f32_16x16x32_bf16 v[{a}:{a+3}], v[{u}:{u+3}], v[{x}:{x+3}], v[{a}:{a+3}]"
    def mfmas(buf, fill):
        f = FB[buf]
        for mb in range(8):
            for eb in range(4):
                k(mf(acc(eb, mb), f + 32 + eb * 4, f + mb * 4))
                if fill: k(fill.pop(0))
        assert not fill
    k("s_mov_b32 s64, 0")
    k("s_mov_b32 s65, 0")
    for x in newstage(): k(x)
    k("s_barrier")
    for x in xr_reads(0, 0): k(x)
    k.label("L_xr_cloop")
    k("s_waitcnt lgkmcnt(0)")
    mfmas(0, xr_reads(1, 1) + newstage() + ["s_add_u32 s65, s65, 1", "s_cmp_eq_u32 s65, 8"])
    k("s_waitcnt lgkmcnt(0)")
    k("s_barrier")
    k("s_cbranch_scc1 L_xr_tail")
    mfmas(1, xr_reads(0, 0))
    k("s_branch L_xr_cloop")
    k.label("L_xr_tail")
    decide(k, P, 1)
    k(f"v_add_u32 v{VO2}, s82, v{VO2}")
    UF = [32, 48, 64, 80]; XB = [20, 24, 96, 100, 104, 108, 112, 116]; OT = 120
    q = []
    def lds(s_, tag): k(s_); q.append(tag)
    def ur(t): return ureads(t & 1, UF[t], VUC if t < 2 else VUR)
    def xread(n):
        mb, t = n // 4, n % 4
        r = XB[n % 8]
        return f"ds_read_b128 v[{r}:{r+3}], v{(VXC if t < 2 else VXR) + (t & 1)} offset:{mb*2048}"
    pre = [(x, ("u", 0)) for x in ur(0)] + [(xread(0), ("x", 0))] + [(x, ("u", 1)) for x in ur(1)] + [(xread(1), ("x", 1))]
    f = FB[1]; n = 0
    for mb in range(8):
        for eb in range(4):
            k(mf(acc(eb, mb), f + 32 + eb * 4, f + mb * 4))
            if pre: lds(*pre.pop(0))
            n += 1
            if n == 20:
                k("s_barrier")
                pre = [(x, ("u", 2)) for x in ur(2)]
    assert not pre
    outq = []; osel = [0]
    def out_instrs(mb):
        r = []
        for p in range(2):
            t = OT + osel[0] * 4; osel[0] ^= 1
            a0 = acc(2 * p, mb); a1 = acc(2 * p + 1, mb)
            so = ["0", "s68", "s69", "s70"][2 * p + (mb >> 2)]
            r.append([f"v_cvt_pk_bf16_f32 v{t}, v{a0}, v{a0+1}", f"v_cvt_pk_bf16_f32 v{t+1}, v{a0+2}, v{a0+3}",
                      f"v_cvt_pk_bf16_f32 v{t+2}, v{a1}, v{a1+1}", f"v_cvt_pk_bf16_f32 v{t+3}, v{a1+2}, v{a1+3}",
                      "s_nop 1", f"v_permlane16_swap_b32 v{t}, v{t+2}", f"v_permlane16_swap_b32 v{t+1}, v{t+3}",
                      f"buffer_store_dwordx4 v[{t}:{t+3}], v{VO2}, s[44:47], {so} offen offset:{(mb & 3)*1024} sc1"])
        return r
    nx = 2
    for n in range(32):
        mb, t = n // 4, n % 4
        if n == 0:
            lds(xread(2), ("x", 2)); nx = 3
            for x in ur(3): lds(x, ("u", 3))
        while nx < 32 and nx <= n + 5: lds(xread(nx), ("x", nx)); nx += 1
        need = max(i for i, tg in enumerate(q) if tg == ("x", n) or (mb == 0 and tg == ("u", t)))
        k(f"s_waitcnt lgkmcnt({min(15, len(q) - 1 - need)})")
        o = outq.pop(0) if (t >= 2 and outq) else []
        for eb in range(4):
            k(mf(acc(eb, mb), UF[t] + eb * 4, XB[n % 8]))
            if o: k(o.pop(0))
        while o: k(o.pop(0))
        if t == 3: outq = out_instrs(mb)
    stamp_mid(k, P, 0)
    k("s_nop 7")
    while outq:
        for x in outq.pop(0): k(x)
    k("s_barrier")

def mtmask(t):
    m = 0
    for eb in range(4 * t, 4 * t + 4):
        g, r = eb >> 3, eb & 7
        if g == 4: mt = 2 * (r >> 1) + 1
        else: mt = 2 * g + (1 if 3 <= r < 6 else 0)
        m |= 1 << mt
    return m

def c_ids(k):
    k("s_and_b32 s52, s2, 7")
    k("s_lshr_b32 s54, s2, 3")
    k("s_lshr_b32 s4, s52, 1")
    k("s_lshl_b32 s4, s4, 2")
    k("s_and_b32 s55, s54, 3")
    k("s_add_u32 s4, s4, s55")
    k("s_and_b32 s5, s52, 1")
    k("s_lshl_b32 s5, s5, 3")
    k("s_lshr_b32 s54, s54, 2")
    k("s_add_u32 s5, s5, s54")

def phase_c(k, P):
    NX = P.get("NX", 4); NW = P.get("NW", 4)
    XR = 0; WR = NX * 16384; STG = WR + NW * 14336
    assert STG + 30720 <= LCNT and STG <= 124 * 1024 and 144 * 1024 <= STG + 30720
    order = P.get("corder", list(range(10)))
    k.label("L_c_cons")
    arrive(k)
    k.label("L_c_cons2")
    stamp_mid(k, P, 1)
    c_ids(k)
    VXR = 4; VWR = 5; VXC = 6; VWC = 7; VEW = 8; VER = 9; VST = 10
    ACC = 24; FR = 80; VRD = 152
    k("s_lshl_b32 s52, s3, 11")
    k(f"v_lshl_add_u32 v{VXR}, v0, 4, s52")
    k(f"v_lshlrev_b32 v{VWR}, 4, v0")
    k(f"v_add_u32 v{VWR}, {WR}, v{VWR}")
    for i in range(56): k(f"v_mov_b32 v{ACC+i}, 0")
    k("s_mul_i32 s52, s3, 7680")
    k(f"s_add_u32 s52, s52, {STG}")
    k("v_and_b32 v18, 15, v0")
    k("v_mul_u32_u24 v18, 240, v18")
    k("v_lshrrev_b32 v19, 4, v0")
    k("v_lshl_add_u32 v20, v19, 4, v18")
    k(f"v_add_u32 v{VEW}, s52, v20")
    k("v_lshl_add_u32 v20, v19, 3, v18")
    k(f"v_add_u32 v{VER}, s52, v20")
    k(f"s_mov_b32 s53, {magic(14)}")
    k("s_lshl_b32 s54, s4, 2")
    k("s_add_u32 s54, s54, s3")
    k(f"s_mul_i32 s54, s54, {32*3456}")
    k("s_mul_i32 s55, s5, 224")
    k("s_add_u32 s54, s54, s55")
    k("s_sub_u32 s55, 3456, s55")
    k("v_mov_b32 v23, 0x7fffffff")
    for i in range(7):
        k(f"v_add_u32 v18, {64*i}, v0")
        k("v_mul_hi_u32 v19, v18, s53")
        k("v_mul_u32_u24 v20, 14, v19")
        k("v_sub_u32 v18, v18, v20")
        k("v_lshlrev_b32 v18, 4, v18")
        k("v_cmp_gt_u32 vcc, s55, v18")
        k("v_mul_u32_u24 v20, 240, v19")
        k(f"v_add3_u32 v{VRD+i}, v20, v18, s52")
        k("v_mul_u32_u24 v20, 3456, v19")
        k(f"v_add3_u32 v{VST+i}, v20, v18, s54")
        k(f"v_cndmask_b32 v{VST+i}, v23, v{VST+i}, vcc")
    srd(k, 28, 20, 2048 * 1728 * 2)
    k("s_mov_b32 s56, 0"); k("s_mov_b32 s57, 0")
    def newstage():
        return [f"v_add_u32 v{VXC}, s56, v{VXR}", f"v_add_u32 v{VWC}, s57, v{VWR}"]
    def advance():
        return ["s_add_u32 s56, s56, 16384", f"s_cmp_eq_u32 s56, {NX*16384}",
                "s_cselect_b32 s56, 0, s56", "s_add_u32 s57, s57, 14336", f"s_cmp_eq_u32 s57, {NW*14336}", "s_cselect_b32 s57, 0, s57"]
    def reads(ks):
        f = FR + ks * 36
        out = [f"ds_read_b128 v[{f+28+u*4}:{f+31+u*4}], v{VXC} offset:{XR + u*1024 + ks*8192}" for u in range(0 if P.get("ab_noxr") else 2)]
        return out + [f"ds_read_b128 v[{f+b*4}:{f+b*4+3}], v{VWC} offset:{ks*7168 + b*1024}" for b in range(7)]
    RLX = P.get("rlx", 1)
    def mfmas(ks, fill, waits):
        f = FR + ks * 36; issued = 0
        rd = [x for x in fill if x.startswith("ds_")]; ot = [x for x in fill if not x.startswith("ds_")]
        slots = P.get("rs", [0, 1, 2, 4, 5, 7, 8, 10, 11]) if RLX else list(range(9))
        last = None
        for b in range(7):
            for u in range(2):
                i = 2 * b + u
                if waits and u == 0:
                    n = min(15, 6 - b + issued)
                    if not (RLX and b >= 1 and b != P.get("wb", 3) and rd is not None and len(fill)):
                        k(f"s_waitcnt lgkmcnt({n if not (RLX and len(fill)) else (7 - P.get('wb', 3) if b == 0 else issued)})")
                a = ACC + (u * 7 + b) * 4
                k(f"v_mfma_f32_16x16x32_bf16 v[{a}:{a+3}], v[{f+b*4}:{f+b*4+3}], v[{f+28+u*4}:{f+31+u*4}], v[{a}:{a+3}]")
                if rd and i in slots:
                    k(rd.pop(0)); issued += 1
                elif ot and (not ot[0].startswith("v_add") or not rd):
                    k(ot.pop(0))
                    if ot and not rd: k(ot.pop(0))
        assert not rd
        while ot: k(ot.pop(0))
    for x in newstage() + advance(): k(x)
    k("s_mov_b32 s65, 0")
    if P.get("cp", 1):
        k("s_cmp_lg_u32 s3, 0")
        k("s_cbranch_scc1 L_c_nopoll")
        k("s_mul_i32 s52, s5, 7")
        k("s_add_u32 s54, s52, 6")
        k("s_lshr_b32 s52, s52, 2")
        k("s_lshr_b32 s54, s54, 2")
        k("s_min_u32 s54, s54, 26")
        k("s_sub_u32 s52, s54, s52")
        k("s_mov_b32 s66, 1")
        k("s_cmp_ge_u32 s52, 1")
        k("s_cselect_b32 s66, 0x101, s66")
        k("s_cmp_ge_u32 s52, 2")
        k("s_cselect_b32 s66, 0x10101, s66")
        w0 = 0
        for i in range(P.get("W0", 4)): w0 |= mtmask(order[i])
        x0 = 0
        for i in range(P["X0"]): x0 |= 1 << (24 + order[i] // 2)
        k(f"s_mul_i32 s76, s66, {w0}")
        k(f"s_or_b32 s76, s76, {x0}")
        k("s_lshl_b32 s52, s4, 4")
        k("s_add_u32 s52, s52, s5")
        k(f"s_lshl_b32 s52, s52, {FS}")
        k(f"s_add_u32 s52, s52, {SYNC2_OFF}")
        k("v_lshl_add_u32 v160, v0, 2, s52")
        k("s_mov_b32 exec_hi, 0")
        one = ["v_mov_b32 v161, 0", "buffer_atomic_or v161, v160, s[44:47], 0 offen sc0 sc1"]
        dec = [x.replace("v30", "v161") for x in DECODE]
        pub = ["v_mov_b32 v162, s63", "v_mov_b32 v163, s83", "ds_write_b64 v2, v[162:163] offset:16"]
        poll_loop(k, "L_c_pl", "\n".join(one), dec + pub + ["s_and_b32 s52, s63, s76", "s_cmp_eq_u32 s52, s76"])
        for _ in range(P.get("xp", 1)):
            for x in one + ["s_waitcnt vmcnt(0)"] + dec: k(x)
        k("s_bitset1_b32 s63, 31")
        for x in pub: k(x)
        k("s_mov_b64 exec, -1")
        k.label("L_c_nopoll")
    k("s_barrier")
    stamp_mid(k, P, 2)
    for x in reads(0): k(x)
    k.label("L_c_cloop")
    mfmas(0, reads(1) + ["s_add_u32 s65, s65, 1", "s_cmp_eq_u32 s65, 10"] + newstage(), True)
    k("s_cbranch_scc1 L_c_cdone")
    if not RLX: k("s_waitcnt lgkmcnt(0)")
    k("s_barrier")
    mfmas(1, reads(0) + advance(), bool(RLX))
    k("s_branch L_c_cloop")
    k.label("L_c_cdone")
    mfmas(1, [], True)
    stamp_mid(k, P, 3)
    k("s_nop 4")
    for p in range(4):
        for u in range(2):
            t = FR + (p * 2 + u) * 4
            a0 = ACC + (u * 7 + 2 * p) * 4; a1 = a0 + 4
            k(f"v_cvt_pk_bf16_f32 v{t}, v{a0}, v{a0+1}")
            k(f"v_cvt_pk_bf16_f32 v{t+1}, v{a0+2}, v{a0+3}")
            if p < 3:
                k(f"v_cvt_pk_bf16_f32 v{t+2}, v{a1}, v{a1+1}")
                k(f"v_cvt_pk_bf16_f32 v{t+3}, v{a1+2}, v{a1+3}")
                k(f"ds_write_b128 v{VEW}, v[{t}:{t+3}] offset:{u*16*240 + p*64}")
            else:
                k(f"ds_write_b64 v{VER}, v[{t}:{t+1}] offset:{u*16*240 + 192}")
    for i in range(7): k(f"ds_read_b128 v[{ACC+i*4}:{ACC+i*4+3}], v{VRD+i}")
    for i in range(7):
        k(f"s_waitcnt lgkmcnt({6-i})")
        k(f"buffer_store_dwordx4 v[{ACC+i*4}:{ACC+i*4+3}], v{VST+i}, s[28:31], 0 offen {P.get('k2_stflags', '')}")
    stamp_end(k, P, 0, 44, 112, 3)
    k("s_endpgm")
    k.label("L_c_ld")
    c_ids(k)
    k("s_and_b32 s62, s3, 1")
    k("s_lshl_b32 s52, s4, 4")
    k("s_add_u32 s52, s52, s5")
    k(f"s_lshl_b32 s52, s52, {FS}")
    k(f"s_add_u32 s52, s52, {SYNC2_OFF}")
    k("v_lshl_add_u32 v8, v0, 2, s52")
    k("s_mov_b32 s63, 0")
    k("s_cmp_ge_u32 s3, 6")
    k("s_cbranch_scc1 L_c_xl")
    k("s_mul_i32 s52, s5, 7")
    k("s_add_u32 s54, s52, 6")
    k("s_lshr_b32 s52, s52, 2")
    k("s_lshr_b32 s54, s54, 2")
    k("s_min_u32 s54, s54, 26")
    k("s_sub_u32 s52, s54, s52")
    k("s_mov_b32 s66, 1")
    k("s_cmp_ge_u32 s52, 1")
    k("s_cselect_b32 s66, 0x101, s66")
    k("s_cmp_ge_u32 s52, 2")
    k("s_cselect_b32 s66, 0x10101, s66")
    k("s_lshr_b32 s52, s5, 2")
    k("s_lshl_b32 s52, s52, 22")
    k("s_and_b32 s81, s5, 3")
    k("s_lshl_b32 s81, s81, 19")
    k("s_add_u32 s52, s52, s81")
    k(f"s_add_u32 s52, s52, {WVF_OFF}")
    k("s_lshl_b32 s55, s62, 14")
    k("s_add_u32 s52, s52, s55")
    if P.get("dualW", 1): k("s_add_u32 s52, s52, s82")
    else:
        k("s_lshl_b32 s55, s62, 13")
        k("s_add_u32 s52, s52, s55")
    k("s_mul_i32 s55, s62, 7168")
    k("v_lshl_add_u32 v4, v0, 4, s52")
    k("v_add_u32 v5, 4096, v4")
    k("v_mov_b32 v6, v4")
    k("s_cmp_lg_u32 s5, 15")
    k("s_cbranch_scc1 L_c_nt15")
    k("v_mov_b32 v5, 0x7fffffff")
    k("v_and_b32 v7, 8, v0")
    k("v_cmp_eq_u32 vcc, 0, v7")
    k("s_nop 1")
    k("v_cndmask_b32 v6, v5, v4, vcc")
    k.label("L_c_nt15")
    k(f"s_add_u32 s55, s55, {WR}")
    k("s_barrier")
    k("s_cmp_lg_u32 s3, 5")
    k("s_cbranch_scc1 L_c_nopush")
    k("s_cmp_eq_u32 s74, 0")
    k("s_cbranch_scc1 L_c_nopush")
    k("s_waitcnt vmcnt(0)")
    k(f"v_add_u32 v19, {TAGC}, v19")
    k("s_mov_b32 exec_lo, s74")
    k("s_mov_b32 exec_hi, 0")
    lds_wait(k, "L_c_own", "s53")
    push(k, P, "v19", "v17", "s75")
    k("s_mov_b64 exec, -1")
    stamp_mid(k, P, 0)
    k("s_branch L_c_pushed")
    k.label("L_c_nopush")
    lds_wait(k, "L_c_own4", "s53", sleep=1)
    k.label("L_c_pushed")
    if P.get("ps2", 8): k(f"s_sleep {P.get('ps2', 8)}")
    def run(name, N, per, prep, fire, init, fin=None):
        vm = VM(); ni = 0
        def both(i):
            prep(i); k("s_nop 0"); fire(i)
            for _ in range(per): vm.issue(i)
        for _ in range(init): both(ni); ni += 1
        stamp_mid(k, P, 1)
        for b in range(10):
            lim = min(9, max(N - 1, b - 1 - P.get("rlx", 1) + N))
            todo = list(range(ni, lim + 1))[:1]
            if todo: prep(todo[0])
            k(f"s_waitcnt vmcnt({vm.wait_for(lambda t: t <= b)})")
            k("s_barrier")
            if todo:
                fire(todo[0])
                for _ in range(per): vm.issue(todo[0])
                ni += 1
        assert ni == 10
        if fin: fin()
        if P.get("stamp"):
            k("s_cmp_eq_u32 s3, 5")
            k("s_cselect_b32 s99, s82, s99")
            k("s_and_b32 s62, s3, 3")
            stamp_end(k, P, 2, 44, 32, 62)
        k("s_endpgm")
    def prepW(i):
        k(f"s_mul_i32 s76, s66, {mtmask(order[i])}")
        ensure(k, "L_poll2" if P.get("cp", 1) else "L_poll")
        k(f"s_mov_b32 s58, {order[i]*32768}")
        k(f"s_add_u32 m0, s55, {(i % NW)*14336}")
    def fireW(i):
        if P.get("ab_nowd"): return
        for j in range(4): k(f"buffer_load_dwordx4 v{4 if j < 2 else 6}, s[44:47], s58 offen offset:{j*1024} sc1 lds")
        k("s_add_u32 m0, m0, 4096")
        k("s_nop 0")
        for j in range(3): k(f"buffer_load_dwordx4 v5, s[44:47], s58 offen offset:{j*1024} sc1 lds")
    def finW():
        k("s_cmp_lg_u32 s3, 4")
        k("s_cbranch_scc1 L_c_nobump")
        bump(k)
        k.label("L_c_nobump")
    run("L_c_w", NW, 7, prepW, fireW, P.get("W0", 4), finW)
    k.label("L_c_xl")
    k("s_lshr_b32 s52, s4, 2")
    k("s_lshl_b32 s52, s52, 22")
    k("s_and_b32 s81, s4, 3")
    k("s_lshl_b32 s81, s81, 19")
    k("s_add_u32 s52, s52, s81")
    k(f"s_add_u32 s52, s52, {XRF_OFF}")
    k("s_lshl_b32 s55, s62, 14")
    k("s_add_u32 s52, s52, s55")
    k("v_lshl_add_u32 v4, v0, 4, s52")
    k("v_add_u32 v5, 4096, v4")
    k("s_lshl_b32 s55, s62, 13")
    k("s_barrier")
    if P.get("xhold", 1): lds_wait(k, "L_c_xh", "s53", sleep=1)
    def prepX(i):
        if i == 0 or order[i] // 2 != order[i - 1] // 2:
            k(f"s_mov_b32 s76, {1 << (24 + order[i] // 2)}")
            ensure(k, "L_poll2" if P.get("cp", 1) else "L_poll")
        k(f"s_bitcmp1_b32 s83, {24 + order[i] // 2}")
        k("s_cselect_b32 s58, 8192, 0")
        k(f"s_add_u32 s58, s58, {order[i]*32768}")
        k(f"s_add_u32 m0, s55, {XR + (i % NX)*16384}")
    def fireX(i):
        if P.get("ab_noxd"): return
        for j in range(4): k(f"buffer_load_dwordx4 v4, s[44:47], s58 offen offset:{j*1024} sc1 lds")
        k("s_add_u32 m0, m0, 4096")
        k("s_nop 0")
        for j in range(4): k(f"buffer_load_dwordx4 v5, s[44:47], s58 offen offset:{j*1024} sc1 lds")
    run("L_c_x", NX, 8, prepX, fireX, P.get("X0", NX))

def gen(P):
    uid[0] = 0
    P = dict(P)
    for kk_, v in (("tlb", 0), ("X0", 2), ("xfirst", 0), ("pm", "atom"), ("wm", "atom"), ("ps", 0), ("ps2", 0), ("cp", 0), ("W0", 2)): P.setdefault(kk_, v)

    k = K(KNAME)
    k("s_cmp_ge_u32 s2, 256")
    k("s_cbranch_scc1 L_end")
    k("s_load_dwordx16 s[8:23], s[0:1], 0")
    k("s_load_dwordx2 s[24:25], s[0:1], 64")
    stamp_begin(k, P)
    k("s_getpc_b64 s[40:41]")
    k.label("L_pc0")
    k("v_subrev_u32 v4, 504, v0")
    k("v_cmp_gt_u32 vcc, 8, v4")
    k("s_and_saveexec_b64 s[44:45], vcc")
    k("s_cbranch_execz L_noipf")
    k("s_and_b32 s41, s41, 0xffff")
    k("s_mov_b32 s42, L_end - L_pc0")
    k("s_mov_b32 s43, 0x00020000")
    k("s_and_b32 s46, s2, 0xf8")
    k("v_add_lshl_u32 v4, s46, v4, 7")
    k("buffer_load_dword v200, v4, s[40:43], 0 offen")
    k.label("L_noipf")
    k("s_mov_b64 exec, -1")
    k("v_lshrrev_b32 v1, 6, v0")
    k(f"v_mov_b32 v2, {LCNT}")
    k("v_mov_b32 v3, 0")
    k("v_readfirstlane_b32 s3, v1")
    k("ds_write2_b32 v2, v3, v3 offset0:0 offset1:1")
    k("ds_write2_b32 v2, v3, v3 offset0:2 offset1:3")
    k("ds_write2_b32 v2, v3, v3 offset0:4 offset1:5")
    k("v_and_b32 v0, 63, v0")
    k("s_bfe_u32 s4, s2, 0x10002")
    k("s_bfe_u32 s82, s2, 0x10005" if P.get("pol") == "alt" else f"s_xor_b32 s82, s4, {P.get('pol', 0)}")
    k("s_lshl_b32 s82, s82, 13")
    k("s_and_b32 s5, s2, 3")
    k("s_lshr_b32 s6, s2, 3")
    nwv = NWV[P.get("xrx", 2)]
    base = [sum(nwv[:j]) for j in range(4)]
    xbase = [sum(32 - n for n in nwv[:j]) for j in range(4)]
    pk = lambda v: hex(sum(x << (8 * j) for j, x in enumerate(v)))
    k("s_lshl_b32 s7, s5, 3")
    k(f"s_lshr_b32 s52, {pk(nwv)}, s7")
    k("s_and_b32 s52, s52, 0xff")
    k(f"s_lshr_b32 s53, {pk(base)}, s7")
    k("s_and_b32 s53, s53, 0xff")
    kx = K("x")
    kx(f"s_lshr_b32 s53, {pk(xbase)}, s7")
    kx("s_and_b32 s53, s53, 0xff")
    kx("s_sub_u32 s6, s6, s52")
    kx("s_add_u32 s6, s6, s53")
    kx(f"s_mul_hi_u32 s60, s6, {magic(5)}")
    kx("s_mul_i32 s5, s60, 5")
    kx("s_sub_u32 s5, s6, s5")
    kx("s_lshl_b32 s4, s4, 2")
    kx("s_add_u32 s4, s4, s60")
    kx("s_add_u32 s50, s60, s5")
    kx("s_and_b32 s50, s50, 3")
    xr_role(kx, P)
    i0 = kx.lines.index("L_xr_cons:")
    k("s_cmp_ge_u32 s6, s52")
    if P.get("xfirst", 1):
        k("s_cbranch_scc0 L_wv")
        k.lines += kx.lines[:i0]
        k.label("L_wv")
    else:
        k("s_cbranch_scc1 L_xr")
    k("s_add_u32 s53, s53, s6")
    k("s_and_b32 s60, s53, 3")
    k("s_lshl_b32 s4, s4, 2")
    k("s_add_u32 s4, s4, s60")
    k("s_lshr_b32 s5, s53, 2")
    wv_role(k, P)
    poll_sub(k, P)
    if not P.get("xfirst", 1):
        k.label("L_xr")
        k.lines += kx.lines[:i0]
    k.lines += kx.lines[i0:]
    phase_c(k, P)
    return finish(k)

def finish(k):
    k.label("L_end")
    k("s_endpgm")
    src = "; QuIP weight-only int4 layer: y = (x@U) @ (dequant(qw)@V), one fused launch (generated by dev/gen9.py)\n"
    src += "; @launch grid=(256,1,1) block=(512,1,1) lds=163840\n" + HEADER + k.text()
    src += '.section .rodata,"a"\n' + desc(KNAME, 256, 102, 256)
    return src

def is_wv(b, P):
    import numpy as np
    return (b >> 3) < np.array(NWV[P.get("xrx", 2)])[b & 3]
def is_xr(b, P):
    return ~is_wv(b, P)

if __name__ == "__main__":
    import json
    P = json.loads(sys.argv[2]) if len(sys.argv) > 2 else {}
    open(sys.argv[1], "w").write(gen(P))
```

```python
import sys
from asmlib import *
from gen import magic, VM, stamp_begin, stamp_mid, stamp_end, STAMP_OFF
from gen4 import xr_orders
XRF_OFF = 0x1000000
WVF_OFF = 0x2000000
AQ_OFF = 0x3000000
SYNC_OFF = 0xC00000; SYNC2_OFF = 0xC40000; PROBE_OFF = 0xC80000
WS_BYTES = 0x5000000
TAGC = 0x5bd1e995
LCNT = 163840 - 64
NWV = {2: [32, 32, 32, 12], 4: [32, 32, 22, 22], 8: [27, 27, 27, 27]}
XSTG = 49152
SPIN_MAX = 1 << 20
FS = 8
KNAME = "standalone__weight_only_int_quip__prompt_kernel"

def poll_loop(k, name, load, cmp_lines, sleep=0, wait="vmcnt(0)"):
    k("s_mov_b32 s80, 0")
    k.label(name)
    if sleep: k(f"s_sleep {sleep}")
    k(load)
    k("s_add_u32 s80, s80, 1")
    k(f"s_cmp_ge_u32 s80, {SPIN_MAX}")
    k(f"s_cbranch_scc1 {name}_done")
    k(f"s_waitcnt {wait}")
    for l in cmp_lines: k(l)
    k(f"s_cbranch_scc0 {name}")
    k.label(f"{name}_done")

def lds_wait(k, name, n, sleep=0):
    poll_loop(k, name, "ds_read_b32 v30, v2", ["v_readfirstlane_b32 s52, v30", f"s_cmp_ge_u32 s52, {n}"], wait="lgkmcnt(0)", sleep=sleep)

def arrive(k):
    k("s_waitcnt vmcnt(0)")
    k("v_mov_b32 v7, 1")
    k("s_mov_b64 exec, 1")
    k("ds_add_u32 v2, v7")
    k("s_mov_b64 exec, -1")

DECODE = ["v_readlane_b32 s59, v30, 31", f"s_add_u32 s52, s59, {TAGC}", "v_subrev_u32 v30, s52, v30",
          "v_cmp_eq_u32 vcc, 1, v30", "s_mov_b32 s83, vcc_lo", "v_cmp_gt_u32 vcc, 2, v30", "s_mov_b32 s63, vcc_lo"]

def poll_sub(k, P):
    k.label("L_poll2")
    poll_loop(k, "L_poll2_l", "ds_read_b64 v[30:31], v2 offset:16",
              ["v_readfirstlane_b32 s83, v31", "v_readfirstlane_b32 s63, v30", "s_and_b32 s52, s63, s76", "s_cmp_eq_u32 s52, s76",
               "s_cbranch_scc1 L_poll_ret", "s_bitcmp1_b32 s63, 31"], wait="lgkmcnt(0)")
    k.label("L_poll")
    k("s_mov_b32 exec_lo, -1")
    k("s_mov_b32 exec_hi, 0")
    poll_loop(k, "L_poll_l", "v_mov_b32 v30, 0\nbuffer_atomic_or v30, v8, s[44:47], 0 offen sc0 sc1", DECODE + ["s_and_b32 s52, s63, s76", "s_cmp_eq_u32 s52, s76"])
    k("s_mov_b64 exec, -1")
    k.label("L_poll_ret")
    k("s_setpc_b64 s[78:79]")

uid = [0]
def ensure(k, sub="L_poll"):
    uid[0] += 1
    k("s_and_b32 s52, s63, s76")
    k("s_cmp_eq_u32 s52, s76")
    k(f"s_cbranch_scc1 L_ok{uid[0]}")
    k(f"s_call_b64 s[78:79], {sub}")
    k.label(f"L_ok{uid[0]}")

def gather(k, P, reg, addr):
    gm = P.get("gm", "sc1")
    if gm == "atom":
        k(f"v_mov_b32 {reg}, 0")
        k(f"buffer_atomic_or {reg}, {addr}, s[44:47], 0 offen offset:124 sc0 sc1")
    else:
        k(f"buffer_load_dword {reg}, {addr}, s[44:47], 0 offen offset:124 {gm}")

def push(k, P, data, addr, so):
    if P.get("wm") == "atom": k(f"buffer_atomic_swap {data}, {addr}, s[44:47], {so} offen sc1")
    else: k(f"buffer_store_dword {data}, {addr}, s[44:47], {so} offen sc1")

def bump(k):
    k("v_mov_b32 v30, 2")
    k("s_mov_b64 exec, 1")
    k("buffer_atomic_add v30, v8, s[44:47], 0 offen offset:124 sc1")
    k("s_mov_b64 exec, -1")

puid = [0]
def probe(k, P, addr, reps=1, mid=()):
    if "pol" in P:
        for x in ["s_waitcnt lgkmcnt(0)"] + list(mid): k(x)
        return
    puid[0] += 1
    for x in addr: k(x)
    k("s_waitcnt lgkmcnt(0)")
    k("s_add_u32 s84, s24, s52")
    k("s_addc_u32 s85, s25, 0")
    k("s_mov_b32 s54, 0")
    for i in range(reps):
        k(f"s_load_dword s100, s[84:85], {i*128}")
        k(f"s_load_dword s101, s[84:85], {8192 + i*128}")
        if i == 0:
            for x in mid: k(x)
        k("s_waitcnt lgkmcnt(1)")
        k(f"s_sleep {P.get('pg', 1)}")
        k("s_getreg_b32 s81, hwreg(HW_REG_IB_STS, 8, 4)")
        k("s_add_u32 s54, s54, s81")
        if i + 1 < reps: k("s_waitcnt lgkmcnt(0)")
    k(f"s_cmp_le_u32 s54, {reps // 2}")
    k("s_cselect_b32 s81, 2, 1")
    decide(k, P, "s81")

def decide(k, P, default):
    if "pol" in P:
        return
    k(f"v_mov_b32 v31, {default}")
    k("s_mov_b64 exec, 1")
    k("ds_cmpst_rtn_b32 v30, v2, v3, v31 offset:4")
    k("s_waitcnt lgkmcnt(0)")
    k("s_mov_b64 exec, -1")
    k("v_readfirstlane_b32 s82, v30")
    k("s_cmp_eq_u32 s82, 0")
    k(f"s_cselect_b32 s82, {default}, s82")
    k("s_sub_u32 s82, s82, 1")
    k("s_lshl_b32 s82, s82, 13")

def wv_role(k, P):
    NAD = 3; NB = P.get("NB", 11); TH = P.get("th", 4)
    ARING = 0; BRING = NAD * 20480; STG = BRING + NB * 8192
    RED = 124 * 1024
    assert STG + 10240 <= LCNT and NB % 2 == 1
    for i in (25, 26): assert not (BRING + (i % NB) * 8192 < RED + 20480 and RED < BRING + (i % NB + 1) * 8192)
    k("s_cmp_lg_u32 s3, 5")
    k("s_cbranch_scc1 L_wv_n5")
    probe(k, P, ["s_lshl_b32 s52, s4, 22", "s_lshl_b32 s54, s5, 8", "s_add_u32 s52, s52, s54", f"s_add_u32 s52, s52, {AQ_OFF + 0x100000}"], mid=["s_barrier"])
    k.label("L_wv_n5")
    k("s_lshr_b32 s53, s4, 1")
    k("s_lshl_b32 s70, s53, 3")
    k("s_add_u32 s71, s70, 6")
    k("s_lshl_b32 s52, s53, 1")
    k("s_add_u32 s52, s52, 32")
    k("s_bitcmp1_b32 s4, 0")
    k("s_cselect_b32 s71, s52, s71")
    k("s_cselect_b32 s52, 3, 0")
    k("s_add_u32 s70, s70, s52")
    k(f"s_mul_i32 s68, s5, {P.get('on', 1)}")
    k(f"s_mul_i32 s52, s60, {P.get('oa', 7)}")
    k("s_add_u32 s68, s68, s52")
    k(f"s_mul_hi_u32 s52, s68, {magic(27)}")
    k("s_mul_i32 s52, s52, 27")
    k("s_sub_u32 s68, s68, s52")
    k("s_cmp_ge_u32 s3, 5")
    k("s_cbranch_scc1 L_wv_nodq")
    k("s_add_u32 s52, s70, s3")
    k("s_add_u32 s54, s71, s3")
    k("s_sub_u32 s54, s54, 3")
    k("s_cmp_ge_u32 s3, 3")
    k("s_cselect_b32 s52, s54, s52")
    k("v_lshrrev_b32 v24, 4, v0")
    k("v_and_b32 v25, 15, v0")
    k("v_mul_u32_u24 v26, 6912, v24")
    k("v_lshl_add_u32 v4, v25, 4, v26")
    k(f"s_mul_i32 s55, s52, {16*6912}")
    k("s_lshl_b32 s54, s68, 8")
    k("s_add_u32 s55, s55, s54")
    for m in range(1, 4): k(f"s_add_u32 s{55+m}, s55, {m*4*6912}")
    k("s_lshr_b32 s52, s52, 3")
    k("s_mul_i32 s52, s52, 3456")
    k("s_lshl_b32 s54, s68, 7")
    k("s_add_u32 s52, s52, s54")
    k("v_lshlrev_b32 v8, 3, v25")
    k("s_waitcnt lgkmcnt(0)")
    srd(k, 28, 10, 640 * 1728 * 4)
    R = 32
    for m in range(4): k(f"buffer_load_dwordx4 v[{R+4*m}:{R+4*m+3}], v4, s[28:31], s{55+m} offen")
    srd(k, 36, 12, 5 * 1728 * 2)
    srd(k, 40, 14, 5 * 1728 * 2)
    k("buffer_load_dwordx2 v[10:11], v8, s[36:39], s52 offen")
    k("buffer_load_dwordx2 v[12:13], v8, s[40:43], s52 offen")
    k("s_barrier")
    srd(k, 44, 24, WS_BYTES)
    k("v_lshrrev_b32 v27, 1, v25")
    k("v_lshlrev_b32 v26, 8, v27")
    k("v_and_b32 v28, 1, v25")
    k("v_lshl_add_u32 v26, v28, 3, v26")
    k("s_lshl_b32 s52, s3, 11")
    k(f"s_add_u32 s52, s52, {STG}")
    k("v_add_u32 v26, s52, v26")
    k("v_xor_b32 v27, v27, v24")
    k("v_lshl_add_u32 v4, v27, 4, v26")
    k("v_xor_b32 v5, 64, v4")
    k("v_xor_b32 v28, v0, v24")
    k("v_lshl_add_u32 v28, v28, 4, s52")
    k("v_xor_b32 v29, 64, v28")
    k("s_lshl_b32 s52, s4, 22")
    k("s_lshl_b32 s54, s68, 15")
    k("s_add_u32 s52, s52, s54")
    k("s_lshl_b32 s54, s3, 10")
    k("s_add_u32 s52, s52, s54")
    k(f"s_add_u32 s52, s52, {AQ_OFF}")
    k("s_mov_b32 s55, s52")
    k("v_lshlrev_b32 v9, 4, v0")
    k("s_waitcnt vmcnt(0)")
    for i in range(2):
        k(f"v_lshlrev_b32 v{14+2*i}, 16, v{10+i}"); k(f"v_and_b32 v{15+2*i}, 0xffff0000, v{10+i}")
        k(f"v_lshlrev_b32 v{18+2*i}, 16, v{12+i}"); k(f"v_and_b32 v{19+2*i}, 0xffff0000, v{12+i}")
    for i in range(4): k(f"v_mul_f32 v{18+i}, -v{18+i}, v{14+i}")
    for m in range(4):
        r = R + 4 * m
        for i in range(4): k(f"v_cvt_f32_i32 v{r+i}, v{r+i}")
        for i in range(4): k(f"v_fma_f32 v{r+i}, v{r+i}, v{14+i}, v{18+i}")
        k(f"v_cvt_pk_bf16_f32 v{r}, v{r}, v{r+1}")
        k(f"v_cvt_pk_bf16_f32 v{r+1}, v{r+2}, v{r+3}")
        k(f"ds_write_b64 v{4+(m&1)}, v[{r}:{r+1}] offset:{(m>>1)*128}")
    k("ds_read_b128 v[48:51], v28")
    k("ds_read_b128 v[52:55], v29 offset:1024")
    k("s_and_b32 s81, s68, 1")
    k("s_add_u32 s81, s81, 1")
    decide(k, P, "s81")
    k("s_add_u32 s55, s55, s82")
    k("s_add_u32 s54, s55, 16384")
    k("s_waitcnt lgkmcnt(0)")
    k("buffer_store_dwordx4 v[48:51], v9, s[44:47], s55 offen sc1")
    k("buffer_store_dwordx4 v[52:55], v9, s[44:47], s54 offen sc1")
    arrive(k)
    k("s_cmp_lt_u32 s3, 4")
    k("s_cbranch_scc1 L_wv_cons")
    k("s_branch L_wv_ld")
    k.label("L_wv_nodq")
    k("s_cmp_eq_u32 s3, 5")
    k("s_cbranch_scc1 L_wv_npi")
    k("s_waitcnt lgkmcnt(0)")
    k("s_barrier")
    k.label("L_wv_npi")
    srd(k, 44, 24, WS_BYTES)
    k.label("L_wv_ld")
    VB = 12
    k("s_and_b32 s62, s3, 1")
    k("s_bfe_u32 s61, s3, 0x10001")
    k("v_lshrrev_b32 v24, 3, v0")
    k("v_and_b32 v25, 7, v0")
    k("v_mul_u32_u24 v26, 3456, v24")
    k("v_bfe_u32 v27, v0, 4, 1")
    k("v_lshlrev_b32 v27, 1, v27")
    k("v_xor_b32 v27, v25, v27")
    k("v_lshl_add_u32 v26, v27, 4, v26")
    k(f"s_mul_i32 s52, s62, {32*3456}")
    k("s_lshl_b32 s54, s5, 7")
    k("s_add_u32 s52, s52, s54")
    k(f"v_add_u32 v{VB}, s52, v26")
    k(f"v_xor_b32 v{VB+1}, 64, v{VB}")
    k(f"v_add_u32 v{VB+1}, {8*3456}, v{VB+1}")
    k(f"v_add_u32 v{VB+2}, {16*3456}, v{VB}")
    k(f"v_add_u32 v{VB+3}, {16*3456}, v{VB+1}")
    k("s_lshl_b32 s66, s62, 12")
    k(f"s_add_u32 s66, s66, {BRING}")
    srd(k, 32, 18, 1728 * 1728 * 2)
    def fireB():
        for n in range(4):
            k(f"buffer_load_dwordx4 v{VB+n}, s[32:35], s58 offen lds")
            if n < 3:
                k("s_add_u32 m0, m0, 1024"); k("s_nop 0")
    k("s_cmp_eq_u32 s61, 0")
    k("s_cbranch_scc1 L_wv_nopre")
    k("s_mov_b32 s57, s68")
    k("s_mov_b32 s56, s66")
    k("s_mov_b32 s65, 0")
    def xprefetch(skip):
        XRX = P.get("xrx", 2)
        nw = NWV[XRX][3]; nmx = (32 - nw) // 5; H = 2 * nw
        xi = nmx * 4; per = xi + 10
        S0 = P["xpf"]; total = (P.get("xpe", 10) - S0) * per
        k(f"s_cmp_lt_u32 s7, {8 * (4 - XRX // 2)}")
        k(f"s_cbranch_scc1 {skip}")
        srd(k, 36, 8, 2048 * 640 * 2)
        srd(k, 40, 16, 640 * 640 * 2)
        k("s_lshr_b32 s52, s7, 3")
        k(f"s_sub_u32 s52, s52, {4 - XRX // 2}")
        k(f"s_mul_i32 s52, s52, {256 * nmx * 1280}")
        k("s_lshr_b32 s53, s4, 2")
        k(f"s_mul_i32 s53, s53, {1024 * 1280}")
        k("s_add_u32 s72, s52, s53")
        k("v_mul_u32_u24 v20, 1280, v0")
        k("v_lshlrev_b32 v21, 7, v0")
        k("s_lshl_b32 s73, s6, 1")
        k("s_add_u32 s73, s73, s62")
        k.label("L_wv_pf")
        k(f"s_mul_hi_u32 s52, s73, {magic(per)}")
        k(f"s_mul_i32 s53, s52, {per}")
        k("s_sub_u32 s53, s73, s53")
        k(f"s_add_u32 s52, s52, {S0}")
        k(f"s_cmp_ge_u32 s53, {xi}")
        k("s_cbranch_scc1 L_wv_pfu")
        k(f"s_mul_i32 s53, s53, {64*1280}")
        k("s_lshl_b32 s52, s52, 7")
        k("s_add_u32 s52, s52, s53")
        k("s_add_u32 s52, s52, s72")
        k("buffer_load_dword v201, v20, s[36:39], s52 offen")
        k("s_branch L_wv_pfn")
        k.label("L_wv_pfu")
        k("s_mul_i32 s52, s52, 10")
        k("s_add_u32 s52, s52, s53")
        k(f"s_sub_u32 s52, s52, {xi}")
        k("s_lshl_b32 s52, s52, 13")
        k("buffer_load_dword v201, v21, s[40:43], s52 offen")
        k.label("L_wv_pfn")
        k(f"s_add_u32 s73, s73, {H}")
        k(f"s_cmp_lt_u32 s73, {total}")
        k(f"s_waitcnt vmcnt({P.get('pth', 1)})")
        k("s_cbranch_scc1 L_wv_pf")
    if P.get("xpf") is not None and not P.get("xpa"): xprefetch("L_wv_pre")
    k.label("L_wv_pre")
    k("s_mov_b32 m0, s56")
    k(f"s_mul_i32 s58, s57, {64*3456}")
    fireB()
    k("s_add_u32 s57, s57, 1")
    k("s_cmp_eq_u32 s57, 27")
    k("s_cselect_b32 s57, 0, s57")
    k("s_add_u32 s56, s56, 8192")
    k("s_add_u32 s65, s65, 1")
    k(f"s_cmp_ge_u32 s65, {P.get('n1', 6)}")
    k("s_cbranch_scc1 L_wv_pre2")
    k(f"s_waitcnt vmcnt({TH})")
    k.label("L_wv_pre2")
    k(f"s_cmp_lt_u32 s65, {NB}")
    k("s_cbranch_scc1 L_wv_pre")
    if P.get("xpf") is not None and P.get("xpa"): xprefetch("L_wv_nopre")
    k.label("L_wv_nopre")
    k(f"s_mul_i32 s52, s4, {27 << FS}")
    k(f"s_add_u32 s52, s52, {SYNC_OFF}")
    k(f"v_lshl_add_u32 v6, v0, {FS}, s52")
    k(f"s_lshl_b32 s53, s5, {FS}")
    k("s_add_u32 s52, s52, s53")
    k("v_lshl_add_u32 v8, v0, 2, s52")
    k("s_lshl_b32 s52, s5, 2")
    k(f"s_mul_hi_u32 s72, s52, {magic(7)}")
    k("s_add_u32 s52, s52, 3")
    k(f"s_mul_hi_u32 s73, s52, {magic(7)}")
    k("s_cmp_eq_u32 s72, s73")
    k("s_cselect_b32 s74, 0xffff, -1")
    k("v_bfe_u32 v18, v0, 4, 1")
    k("v_add_u32 v18, s72, v18")
    k("v_and_b32 v16, 15, v0")
    k("v_lshl_add_u32 v16, v16, 4, v18")
    k(f"v_lshlrev_b32 v16, {FS}, v16")
    k(f"v_add_u32 v16, {SYNC2_OFF}, v16")
    k("v_mul_u32_u24 v18, 7, v18")
    k("v_lshrrev_b32 v18, 2, v18")
    k("v_sub_u32 v18, s5, v18")
    k("v_lshl_add_u32 v17, v18, 5, v16")
    k("s_lshl_b32 s75, s4, 2")
    k("s_cmp_lg_u32 s3, 5")
    k("s_cbranch_scc1 L_wv_go")
    k("s_lshl_b32 s53, s68, 2")
    k("s_mov_b64 exec, 0x7ffffff")
    gather(k, P, "v11", "v6")
    k("s_mov_b32 exec_lo, s74")
    gather(k, P, "v19", "v16")
    k("s_mov_b32 exec_lo, 0x7ffffff")
    k("s_waitcnt vmcnt(1)")
    k(f"v_add_u32 v11, {TAGC}, v11")
    k("s_lshr_b32 s52, s82, 13")
    if P.get("stamp"): k("s_mov_b32 s98, s82")
    k("v_add_u32 v11, s52, v11")
    lds_wait(k, "L_wv_own", 5)
    push(k, P, "v11", "v6", "s53")
    k("s_mov_b64 exec, -1")
    k.label("L_wv_go")
    k("s_lshl_b32 s52, s4, 22")
    k("s_lshl_b32 s55, s62, 14")
    k("s_add_u32 s52, s52, s55")
    k("s_mul_i32 s55, s62, 5120")
    k(f"s_add_u32 s52, s52, {AQ_OFF}")
    k("v_lshl_add_u32 v9, v0, 4, s52")
    k("v_add_u32 v10, 4096, v9")
    k("s_mul_i32 s52, s61, 10240")
    k("s_add_u32 s55, s55, s52")
    k("s_add_u32 s57, s68, s61")
    k("s_add_u32 s57, s57, 1")
    k("s_sub_u32 s52, s57, 27")
    k("s_cselect_b32 s57, s57, s52")
    k(f"s_add_u32 s67, s57, {NB-1}")
    k("s_sub_u32 s52, s67, 27")
    k("s_cselect_b32 s67, s67, s52")
    k("s_lshl_b32 s69, s61, 13")
    k("s_cmp_lg_u32 s3, 4")
    k("s_cbranch_scc1 L_wv_np")
    k(f"s_lshl_b64 s[76:77], 15, s57")
    k("s_lshr_b64 s[78:79], s[76:77], 27")
    k("s_or_b32 s76, s76, s78")
    k("s_and_b32 s76, s76, 0x7ffffff")
    if P.get("ps", 16): k(f"s_sleep {P.get('ps', 16)}")
    k("s_call_b64 s[78:79], L_poll")
    k("v_mov_b32 v30, s63")
    k("v_mov_b32 v31, s83")
    k("ds_write_b64 v2, v[30:31] offset:8")
    k("s_branch L_wv_np2")
    k.label("L_wv_np")
    poll_loop(k, "L_wv_lm", "ds_read_b64 v[30:31], v2 offset:8", ["v_readfirstlane_b32 s83, v31", "v_readfirstlane_b32 s63, v30", "s_cmp_lg_u32 s63, 0"], wait="lgkmcnt(0)", sleep=1)
    k.label("L_wv_np2")
    stamp_mid(k, P, 3)
    vm = VM()
    def prepA(D):
        k("s_lshl_b32 s76, 1, s57")
        ensure(k)
        k("s_lshl_b32 s64, s57, 15")
        k("s_bitcmp1_b32 s83, s57")
        k("s_cselect_b32 s52, 8192, 0")
        k("s_add_u32 s64, s64, s52")
        k("s_add_u32 s57, s57, 2")
        k("s_sub_u32 s52, s57, 27")
        k("s_cselect_b32 s57, s57, s52")
        k(f"s_add_u32 m0, s55, {ARING + (D % NAD)*20480}")
    def fireA(D):
        for j in range(4): k(f"buffer_load_dwordx4 v9, s[44:47], s64 offen offset:{j*1024} sc1 lds")
        k("s_add_u32 m0, m0, 4096")
        k("s_nop 0")
        k("buffer_load_dwordx4 v10, s[44:47], s64 offen sc1 lds")
        for _ in range(5): vm.issue(("A", D))
    def prepB():
        k(f"s_mul_i32 s58, s67, {64*3456}")
        k("s_add_u32 s67, s67, 2")
        k("s_sub_u32 s52, s67, 27")
        k("s_cselect_b32 s67, s67, s52")
        k("s_add_u32 s56, s66, s69")
        k("s_add_u32 s69, s69, 16384")
        k(f"s_sub_u32 s52, s69, {NB*8192}")
        k("s_cselect_b32 s69, s69, s52")
    na = 0; nb = (NB - 1) // 2
    for _ in range(2):
        prepA(na); k("s_nop 0"); fireA(na); na += 1
    for D in range(13):
        lim = D - 1 + NAD if D >= 1 else NAD - 1
        la = [x for x in range(na, min(12, lim) + 1)][:1]
        lb = [nb] if (D >= 1 and nb <= 12 and (D not in P.get("bskip", []) or nb - D <= 2)) else []
        if lb: prepB()
        if la: prepA(la[0])
        k(f"s_waitcnt vmcnt({vm.wait_for(lambda t: t[1] <= D)})")
        k("s_barrier")
        if la: fireA(la[0])
        if lb:
            k("s_mov_b32 m0, s56"); k("s_nop 0"); fireB()
            for _ in range(4): vm.issue(("B", nb))
            nb += 1
        na += len(la)
    assert na == 13 and nb >= 13
    k("s_cmp_lg_u32 s3, 4")
    k("s_cbranch_scc1 L_wv_nobump")
    bump(k)
    k.label("L_wv_nobump")
    if "pol" not in P:
        k("s_and_b32 s52, s63, 0x7ffffff")
        k("s_and_b32 s53, s83, s52")
        k("s_bcnt1_i32_b32 s52, s52")
        k("s_bcnt1_i32_b32 s53, s53")
        k("s_lshl_b32 s53, s53, 1")
        k("s_cmp_gt_u32 s53, s52")
        k("s_cselect_b32 s82, 8192, 0")
    k("s_mov_b32 s53, 9")
    k("s_branch L_c_ld")
    k.label("L_wv_cons")
    VAR = 48; VBR = 49; VAC = 51; VBC = 52; VO = 54; VRED = 55; VARS = 57
    FR = 64; ACC = 120
    k("s_and_b32 s60, s3, 1")
    k("s_lshr_b32 s61, s3, 1")
    k("s_mul_i32 s52, s61, 5120")
    k(f"v_lshl_add_u32 v{VAR}, v0, 4, s52")
    k("s_lshl_b32 s54, s61, 2")
    k("v_or_b32 v28, s54, v24")
    k("v_xor_b32 v28, v28, v0")
    k("s_lshl_b32 s52, s61, 10")
    k(f"s_add_u32 s52, s52, {STG}")
    k(f"v_lshl_add_u32 v{VARS}, v28, 4, s52")
    k("s_lshl_b32 s63, s60, 1")
    k("s_add_u32 s63, s63, s61")
    k("v_bfe_u32 v28, v0, 2, 2")
    k("v_lshl_add_u32 v28, v24, 3, v28")
    k("v_lshlrev_b32 v28, 7, v28")
    k("v_bfe_u32 v29, v0, 3, 2")
    k("v_xor_b32 v29, s63, v29")
    k("v_lshl_add_u32 v28, v29, 5, v28")
    k("v_and_b32 v29, 3, v0")
    k("v_lshl_add_u32 v28, v29, 3, v28")
    k("s_lshl_b32 s52, s61, 12")
    k(f"s_add_u32 s52, s52, {BRING}")
    k(f"v_add_u32 v{VBR}, s52, v28")
    k(f"v_xor_b32 v{VBR+1}, 32, v{VBR}")
    k("s_lshl_b32 s52, s5, 2")
    k("s_add_u32 s52, s52, s63")
    k(f"s_mul_hi_u32 s54, s52, {magic(7)}")
    k("s_mul_i32 s64, s54, 7")
    k("s_sub_u32 s52, s52, s64")
    k("s_mov_b32 s64, s54")
    k("s_lshr_b32 s54, s64, 2")
    k("s_lshl_b32 s54, s54, 22")
    k("s_and_b32 s81, s64, 3")
    k("s_lshl_b32 s81, s81, 19")
    k("s_add_u32 s54, s54, s81")
    k(f"s_add_u32 s54, s54, {WVF_OFF}")
    k("v_bfe_u32 v28, v0, 2, 1")
    k("v_lshlrev_b32 v28, 10, v28")
    k("v_bfe_u32 v29, v0, 3, 1")
    k("v_lshl_add_u32 v28, v29, 6, v28")
    k("v_and_b32 v29, 3, v0")
    k("v_lshl_add_u32 v28, v29, 4, v28")
    k("v_lshlrev_b32 v29, 4, v25")
    k("s_cmp_eq_u32 s52, 6")
    k("s_cselect_b64 vcc, -1, 0")
    k("s_and_b32 s64, s52, 6")
    k("s_lshl_b32 s64, s64, 10")
    k("s_and_b32 s52, s52, 1")
    k("s_lshl_b32 s52, s52, 7")
    k("s_add_u32 s54, s54, s64")
    k("s_add_u32 s54, s54, s52")
    k("v_cndmask_b32 v28, v28, v29, vcc")
    k("v_lshrrev_b32 v29, 1, v24")
    k("v_lshl_add_u32 v28, v29, 8, v28")
    k("v_add_u32 v28, s54, v28")
    for j in range(5):
        k(f"s_add_u32 s52, s70, {j}" if j < 3 else f"s_add_u32 s52, s71, {j-3}")
        k(f"s_lshr_b32 s{72+j}, s52, 1")
        k(f"s_lshl_b32 s{72+j}, s{72+j}, 14")
        if not P.get("dualW", 1):
            k("s_and_b32 s81, s52, 2")
            k("s_lshl_b32 s81, s81, 12")
            k(f"s_add_u32 s{72+j}, s{72+j}, s81")
        k("s_and_b32 s52, s52, 1")
        k("s_lshl_b32 s52, s52, 9")
        k(f"s_add_u32 s{72+j}, s{72+j}, s52")
    k("s_mov_b32 s77, 0x40000000")
    k("v_and_b32 v29, 1, v24")
    k("v_cmp_eq_u32 vcc, 1, v29")
    for g in range(3):
        k(f"v_mov_b32 v29, s{72+2*g}")
        k(f"v_mov_b32 v30, s{73+2*g}")
        k("v_cndmask_b32 v29, v29, v30, vcc")
        k(f"v_add_u32 v{58+g}, v28, v29")
    k("s_movk_i32 s72, 0x2000")
    if P.get("tlb", 1):
        k("s_mov_b64 exec, 1")
        k("buffer_load_dword v201, v58, s[44:47], 0 offen sc1")
        k("s_mov_b64 exec, -1")
    for i in range(40): k(f"v_mov_b32 v{ACC+i}, 0")
    k("s_mul_i32 s52, s3, 5120")
    k(f"s_add_u32 s52, s52, {RED}")
    k(f"v_lshl_add_u32 v{VRED}, v0, 4, s52")
    k("s_xor_b32 s52, s3, 2")
    k("s_mul_i32 s52, s52, 5120")
    k(f"s_add_u32 s52, s52, {RED}")
    k(f"v_lshl_add_u32 v{VRED+1}, v0, 4, s52")
    def reads(fb, va, aoff, astr, vb):
        f = FR + fb * 28
        out = [f"ds_read_b64_tr_b16 v[{f+20+u*4+sec*2}:{f+21+u*4+sec*2}], v{vb+u} offset:{sec*512}" for u in range(2) for sec in range(2)]
        return out + [f"ds_read_b128 v[{f+j*4}:{f+j*4+3}], v{va} offset:{aoff + j*astr}" for j in range(5)]
    def nextB():
        return [f"v_add_u32 v{VBC}, s57, v{VBR}", f"v_add_u32 v{VBC+1}, s57, v{VBR+1}", "s_add_u32 s57, s57, 8192",
                f"s_cmp_eq_u32 s57, {NB*8192}", "s_cselect_b32 s57, 0, s57"]
    def nextA():
        return [f"v_add_u32 v{VAC}, s56, v{VAR}", "s_add_u32 s56, s56, 20480", f"s_cmp_eq_u32 s56, {NAD*20480}", "s_cselect_b32 s56, 0, s56"]
    def mf(fb, j, u):
        f = FR + fb * 28; a = ACC + (u * 5 + j) * 4
        return f"v_mfma_f32_16x16x32_bf16 v[{a}:{a+3}], v[{f+j*4}:{f+j*4+3}], v[{f+20+u*4}:{f+23+u*4}], v[{a}:{a+3}]"
    def mfmas(fb, fill, waits):
        issued = 0
        for j in range(5):
            for u in range(2):
                for _ in range(2):
                    if fill:
                        x = fill.pop(0); k(x)
                        if x.startswith("ds_"): issued += 1
                if waits and u == 0: k(f"s_waitcnt lgkmcnt({4 - j + issued})")
                k(mf(fb, j, u))
        while fill: k(fill.pop(0))
    k("s_mov_b32 s56, 0"); k("s_mov_b32 s57, 8192")
    for x in nextA() + nextB(): k(x)
    k("s_mov_b32 s65, 0")
    k("s_barrier")
    for x in reads(1, VARS, 0, 2048, VBR): k(x)
    k("s_waitcnt lgkmcnt(0)")
    k("s_branch L_wv_cent")
    k.label("L_wv_cloop")
    k("s_waitcnt lgkmcnt(0)")
    k("s_barrier")
    k.label("L_wv_cent")
    mfmas(1, reads(0, VAC, ARING, 1024, VBC) + nextB(), False)
    mfmas(0, reads(1, VAC, ARING + 10240, 1024, VBC) + nextA() + nextB() + ["s_add_u32 s65, s65, 1"], True)
    k("s_cmp_lt_u32 s65, 13")
    k("s_cbranch_scc1 L_wv_cloop")
    k("s_waitcnt lgkmcnt(0)")
    for u in (1, 0):
        for j in range(5): k(mf(1, j, u))
    stamp_mid(k, P, 0)
    k("s_nop 2")
    for j in range(5):
        a = ACC + (5 + j) * 4
        k(f"ds_write_b128 v{VRED}, v[{a}:{a+3}] offset:{j*1024}")
    k("s_waitcnt lgkmcnt(0)")
    k("s_barrier")
    for j in range(5): k(f"ds_read_b128 v[{FR+28+j*4}:{FR+28+j*4+3}], v{VRED+1} offset:{j*1024}")
    for j in range(5):
        k(f"s_waitcnt lgkmcnt({4-j})")
        for i in range(4): k(f"v_add_f32 v{ACC+j*4+i}, v{ACC+j*4+i}, v{FR+28+j*4+i}")
        t = FR + j * 2
        k(f"v_cvt_pk_bf16_f32 v{t}, v{ACC+j*4}, v{ACC+j*4+1}")
        k(f"v_cvt_pk_bf16_f32 v{t+1}, v{ACC+j*4+2}, v{ACC+j*4+3}")
        if j & 1 or j == 4:
            t = FR + (j >> 1) * 4
            k("s_nop 1")
            k(f"v_permlane16_swap_b32 v{t}, v{t+2}")
            k(f"v_permlane16_swap_b32 v{t+1}, v{t+3}")
            if P.get("dualW", 1):
                k(f"buffer_store_dwordx4 v[{t}:{t+3}], v{58 + (j >> 1)}, s[44:47], 0 offen sc1")
                k(f"buffer_store_dwordx4 v[{t}:{t+3}], v{58 + (j >> 1)}, s[44:47], s72 offen sc1")
            else:
                k(f"buffer_store_dwordx4 v[{t}:{t+3}], v{58 + (j >> 1)}, s[44:47], 0 offen sc1")
    k("s_branch L_c_cons")

def xr_role(k, P):
    k("s_and_b32 s62, s3, 3")
    k("s_cmp_lt_u32 s3, 4")
    k("s_cbranch_scc1 L_xr_cons")
    tabs = [sum(x << (4 * i) for i, x in enumerate(o)) for o in xr_orders(P)]
    k(f"s_mov_b32 s66, {hex(tabs[0] & 0xffffffff)}")
    k(f"s_mov_b32 s67, {hex(tabs[0] >> 32)}")
    for c in range(1, 4):
        k(f"s_cmp_eq_u32 s50, {c}")
        k(f"s_cselect_b32 s66, {hex(tabs[c] & 0xffffffff)}, s66")
        k(f"s_cselect_b32 s67, {hex(tabs[c] >> 32)}, s67")
    VX = 4; VU = 12
    k("v_lshrrev_b32 v28, 3, v0")
    k("v_and_b32 v29, 7, v0")
    k("v_lshrrev_b32 v30, 4, v0")
    k("v_xor_b32 v29, v29, v30")
    k("v_mul_u32_u24 v28, 1280, v28")
    k("v_lshl_add_u32 v28, v29, 4, v28")
    k("s_lshl_b32 s51, s4, 2")
    k("s_add_u32 s51, s51, s62")
    k(f"s_mul_i32 s52, s51, {64*1280}")
    k(f"v_add_u32 v{VX}, s52, v28")
    k(f"v_xor_b32 v{VX+1}, 64, v{VX}")
    k(f"v_add_u32 v{VX+1}, {8*1280}, v{VX+1}")
    for i in range(2, 8): k(f"v_add_u32 v{VX+i}, {16*1280}, v{VX+i-2}")
    k("v_and_b32 v29, 15, v0")
    k("v_lshlrev_b32 v31, 1, v30")
    k("v_xor_b32 v29, v29, v31")
    k("v_mul_u32_u24 v28, 1280, v30")
    k("v_lshl_add_u32 v28, v29, 4, v28")
    k(f"s_mul_i32 s52, s62, {16*1280}")
    k("s_lshl_b32 s53, s5, 8")
    k("s_add_u32 s52, s52, s53")
    k(f"v_add_u32 v{VU}, s52, v28")
    k(f"v_add_u32 v{VU+1}, {4*1280}, v{VU}")
    k(f"v_xor_b32 v{VU+2}, 128, v{VU}")
    k(f"v_add_u32 v{VU+2}, {8*1280}, v{VU+2}")
    k(f"v_add_u32 v{VU+3}, {4*1280}, v{VU+2}")
    k("s_lshl_b32 s55, s62, 13")
    k("s_lshl_b32 s56, s62, 12")
    k("s_add_u32 s56, s56, 32768")
    k("s_mov_b32 s60, 0")
    k("s_mov_b32 s65, 0")
    k("s_waitcnt lgkmcnt(0)")
    srd(k, 28, 8, 2048 * 640 * 2)
    srd(k, 32, 16, 640 * 640 * 2)
    XL = P.get("XL", 7)
    k("s_barrier")
    stamp_mid(k, P, 2)
    k.label("L_xr_lloop")
    k("s_and_b32 s57, s66, 15")
    k("s_lshr_b64 s[66:67], s[66:67], 4")
    k("s_add_u32 m0, s56, s60")
    k("s_lshl_b32 s58, s57, 7")
    k(f"s_mul_i32 s59, s57, {64*1280}")
    for n in range(12):
        if n < 4: k(f"buffer_load_dwordx4 v{VU+n}, s[32:35], s59 offen lds")
        else: k(f"buffer_load_dwordx4 v{VX+n-4}, s[28:31], s58 offen lds")
        if n < 11:
            k("s_add_u32 m0, m0, 1024" if n != 3 else "s_add_u32 m0, s55, s60")
            if n + 1 == XL:
                k("s_cmp_lg_u32 s65, 1")
                k("s_cbranch_scc1 L_xr_ne")
                k(f"s_waitcnt vmcnt({XL})")
                stamp_mid(k, P, 3)
                k("s_barrier")
                k.label("L_xr_ne")
            else: k("s_nop 0")
    k(f"s_add_u32 s60, s60, {XSTG}")
    k(f"s_cmp_eq_u32 s60, {3*XSTG}")
    k("s_cselect_b32 s60, 0, s60")
    k("s_add_u32 s65, s65, 1")
    k("s_cmp_le_u32 s65, 2")
    k("s_cbranch_scc1 L_xr_lloop")
    k("s_waitcnt vmcnt(12)")
    k("s_barrier")
    k("s_cmp_lt_u32 s65, 10")
    k("s_cbranch_scc1 L_xr_lloop")
    k("s_waitcnt vmcnt(0)")
    k("s_barrier")
    srd(k, 44, 24, WS_BYTES)
    k("s_lshl_b32 s52, s4, 5")
    k("v_add_u32 v16, s52, v0")
    k(f"v_lshlrev_b32 v16, {FS}, v16")
    k(f"v_add_u32 v16, {SYNC2_OFF}, v16")
    k("v_mov_b32 v17, v16")
    k("s_lshl_b32 s75, s5, 2")
    k("s_add_u32 s75, s75, 96")
    k("s_mov_b32 s74, -1")
    k("s_mov_b32 s53, 4")
    decide(k, P, 1)
    k("s_cmp_lg_u32 s3, 5")
    k("s_cbranch_scc1 L_c_ld")
    k("s_mov_b32 exec_hi, 0")
    gather(k, P, "v19", "v16")
    k("s_mov_b64 exec, -1")
    k("s_lshr_b32 s52, s82, 13")
    k("s_waitcnt vmcnt(0)")
    k("v_add_u32 v19, s52, v19")
    k("s_branch L_c_ld")
    k.label("L_xr_cons")
    k("s_waitcnt lgkmcnt(0)")
    k("s_barrier")
    k("s_cmp_ge_u32 s3, 1")
    k("s_cbranch_scc1 L_xr_npr")
    probe(k, P, ["s_lshr_b32 s52, s4, 1", "s_lshl_b32 s52, s52, 22", "s_and_b32 s54, s4, 1", "s_lshl_b32 s54, s54, 20", "s_add_u32 s52, s52, s54",
                 "s_lshl_b32 s54, s5, 9", "s_add_u32 s52, s52, s54", f"s_add_u32 s52, s52, {XRF_OFF + 0x60000}"], P.get("xreps", 1))
    k.label("L_xr_npr")
    VXR = 4; VUR = 6; VXC = 10; VUC = 12; VO2 = 16
    XACC = 128
    k("s_and_b32 s61, s62, 1")
    k("s_lshr_b32 s63, s62, 1")
    k("v_and_b32 v28, 15, v0")
    k("v_lshrrev_b32 v31, 4, v0")
    k("v_bfe_u32 v29, v0, 1, 3")
    k("v_xor_b32 v29, v29, v31")
    k("v_lshlrev_b32 v29, 4, v29")
    k("v_lshl_add_u32 v28, v28, 7, v29")
    k("s_lshl_b32 s52, s61, 14")
    k(f"v_add_u32 v{VXR}, s52, v28")
    k(f"v_xor_b32 v{VXR+1}, 64, v{VXR}")
    k("v_bfe_u32 v29, v0, 2, 2")
    k("v_lshl_add_u32 v28, v31, 3, v29")
    k("v_lshlrev_b32 v28, 8, v28")
    k("v_bfe_u32 v29, v0, 2, 3")
    k("s_lshl_b32 s52, s63, 2")
    k("v_xor_b32 v29, s52, v29")
    k("v_lshl_add_u32 v28, v29, 5, v28")
    k("v_and_b32 v29, 3, v0")
    k("v_lshl_add_u32 v28, v29, 3, v28")
    k(f"v_add_u32 v{VUR}, 32768, v28")
    for eb in range(1, 4): k(f"v_xor_b32 v{VUR+eb}, {32*eb}, v{VUR}")
    k("s_lshl_b32 s54, s4, 1")
    k("s_add_u32 s54, s54, s61")
    k("s_lshr_b32 s52, s54, 2")
    k("s_lshl_b32 s52, s52, 22")
    k("s_and_b32 s81, s54, 3")
    k("s_lshl_b32 s81, s81, 19")
    k("s_add_u32 s52, s52, s81")
    k(f"s_add_u32 s52, s52, {XRF_OFF}")
    k("s_lshl_b32 s53, s5, 1")
    k("s_add_u32 s53, s53, s63")
    k("s_lshl_b32 s53, s53, 15")
    k("s_add_u32 s52, s52, s53")
    k("v_and_b32 v28, 15, v0")
    k("v_bfe_u32 v29, v0, 4, 1")
    k("v_lshl_add_u32 v28, v29, 5, v28")
    k("v_lshrrev_b32 v29, 5, v0")
    k("v_lshl_add_u32 v28, v29, 4, v28")
    k(f"v_lshl_add_u32 v{VO2}, v28, 4, s52")
    k("s_mov_b32 s68, 4096"); k("s_mov_b32 s69, 16384"); k("s_mov_b32 s70, 20480")
    for i in range(128): k(f"v_mov_b32 v{XACC+i}, 0")
    k("s_waitcnt lgkmcnt(0)")
    srd(k, 44, 24, WS_BYTES)
    FB = [32, 80]
    def acc(eb, mb): return XACC + (mb * 4 + eb) * 4
    def ureads(ks, dst, va):
        return [f"ds_read_b64_tr_b16 v[{dst+eb*4+sec*2}:{dst+eb*4+sec*2+1}], v{va+eb} offset:{(32*ks + 4*sec)*256}" for eb in range(4) for sec in range(2)]
    def xr_reads(ks, buf):
        f = FB[buf]
        return ureads(ks, f + 32, VUC) + [f"ds_read_b128 v[{f+mb*4}:{f+mb*4+3}], v{VXC+ks} offset:{mb*2048}" for mb in range(8)]
    def newstage():
        return [f"v_add_u32 v{VXC+ks}, s64, v{VXR+ks}" for ks in range(2)] + [f"v_add_u32 v{VUC+eb}, s64, v{VUR+eb}" for eb in range(4)] + \
               [f"s_add_u32 s64, s64, {XSTG}", f"s_cmp_eq_u32 s64, {3*XSTG}", "s_cselect_b32 s64, 0, s64"]
    def mf(a, u, x): return f"v_mfma_f32_16x16x32_bf16 v[{a}:{a+3}], v[{u}:{u+3}], v[{x}:{x+3}], v[{a}:{a+3}]"
    def mfmas(buf, fill):
        f = FB[buf]
        for mb in range(8):
            for eb in range(4):
                k(mf(acc(eb, mb), f + 32 + eb * 4, f + mb * 4))
                if fill: k(fill.pop(0))
        assert not fill
    k("s_mov_b32 s64, 0")
    k("s_mov_b32 s65, 0")
    for x in newstage(): k(x)
    k("s_barrier")
    for x in xr_reads(0, 0): k(x)
    k.label("L_xr_cloop")
    k("s_waitcnt lgkmcnt(0)")
    mfmas(0, xr_reads(1, 1) + newstage() + ["s_add_u32 s65, s65, 1", "s_cmp_eq_u32 s65, 8"])
    k("s_waitcnt lgkmcnt(0)")
    k("s_barrier")
    k("s_cbranch_scc1 L_xr_tail")
    mfmas(1, xr_reads(0, 0))
    k("s_branch L_xr_cloop")
    k.label("L_xr_tail")
    decide(k, P, 1)
    k(f"v_add_u32 v{VO2}, s82, v{VO2}")
    UF = [32, 48, 64, 80]; XB = [20, 24, 96, 100, 104, 108, 112, 116]; OT = 120
    q = []
    def lds(s_, tag): k(s_); q.append(tag)
    def ur(t): return ureads(t & 1, UF[t], VUC if t < 2 else VUR)
    def xread(n):
        mb, t = n // 4, n % 4
        r = XB[n % 8]
        return f"ds_read_b128 v[{r}:{r+3}], v{(VXC if t < 2 else VXR) + (t & 1)} offset:{mb*2048}"
    pre = [(x, ("u", 0)) for x in ur(0)] + [(xread(0), ("x", 0))] + [(x, ("u", 1)) for x in ur(1)] + [(xread(1), ("x", 1))]
    f = FB[1]; n = 0
    for mb in range(8):
        for eb in range(4):
            k(mf(acc(eb, mb), f + 32 + eb * 4, f + mb * 4))
            if pre: lds(*pre.pop(0))
            n += 1
            if n == 20:
                k("s_barrier")
                pre = [(x, ("u", 2)) for x in ur(2)]
    assert not pre
    outq = []; osel = [0]
    def out_instrs(mb):
        r = []
        for p in range(2):
            t = OT + osel[0] * 4; osel[0] ^= 1
            a0 = acc(2 * p, mb); a1 = acc(2 * p + 1, mb)
            so = ["0", "s68", "s69", "s70"][2 * p + (mb >> 2)]
            r.append([f"v_cvt_pk_bf16_f32 v{t}, v{a0}, v{a0+1}", f"v_cvt_pk_bf16_f32 v{t+1}, v{a0+2}, v{a0+3}",
                      f"v_cvt_pk_bf16_f32 v{t+2}, v{a1}, v{a1+1}", f"v_cvt_pk_bf16_f32 v{t+3}, v{a1+2}, v{a1+3}",
                      "s_nop 1", f"v_permlane16_swap_b32 v{t}, v{t+2}", f"v_permlane16_swap_b32 v{t+1}, v{t+3}",
                      f"buffer_store_dwordx4 v[{t}:{t+3}], v{VO2}, s[44:47], {so} offen offset:{(mb & 3)*1024} sc1"])
        return r
    nx = 2
    for n in range(32):
        mb, t = n // 4, n % 4
        if n == 0:
            lds(xread(2), ("x", 2)); nx = 3
            for x in ur(3): lds(x, ("u", 3))
        while nx < 32 and nx <= n + 5: lds(xread(nx), ("x", nx)); nx += 1
        need = max(i for i, tg in enumerate(q) if tg == ("x", n) or (mb == 0 and tg == ("u", t)))
        k(f"s_waitcnt lgkmcnt({min(15, len(q) - 1 - need)})")
        o = outq.pop(0) if (t >= 2 and outq) else []
        for eb in range(4):
            k(mf(acc(eb, mb), UF[t] + eb * 4, XB[n % 8]))
            if o: k(o.pop(0))
        while o: k(o.pop(0))
        if t == 3: outq = out_instrs(mb)
    stamp_mid(k, P, 0)
    k("s_nop 7")
    while outq:
        for x in outq.pop(0): k(x)
    k("s_barrier")

def mtmask(t):
    m = 0
    for eb in range(4 * t, 4 * t + 4):
        g, r = eb >> 3, eb & 7
        if g == 4: mt = 2 * (r >> 1) + 1
        else: mt = 2 * g + (1 if 3 <= r < 6 else 0)
        m |= 1 << mt
    return m

def c_ids(k):
    k("s_and_b32 s52, s2, 7")
    k("s_lshr_b32 s54, s2, 3")
    k("s_lshr_b32 s4, s52, 1")
    k("s_lshl_b32 s4, s4, 2")
    k("s_and_b32 s55, s54, 3")
    k("s_add_u32 s4, s4, s55")
    k("s_and_b32 s5, s52, 1")
    k("s_lshl_b32 s5, s5, 3")
    k("s_lshr_b32 s54, s54, 2")
    k("s_add_u32 s5, s5, s54")

def phase_c(k, P):
    NX = P.get("NX", 4); NW = P.get("NW", 4)
    XR = 0; WR = NX * 16384; STG = WR + NW * 14336
    assert STG + 30720 <= LCNT and STG <= 124 * 1024 and 144 * 1024 <= STG + 30720
    order = P.get("corder", list(range(10)))
    k.label("L_c_cons")
    arrive(k)
    k.label("L_c_cons2")
    stamp_mid(k, P, 1)
    c_ids(k)
    VXR = 4; VWR = 5; VXC = 6; VWC = 7; VEW = 8; VER = 9; VST = 10
    ACC = 24; FR = 80; VRD = 152
    k("s_lshl_b32 s52, s3, 11")
    k(f"v_lshl_add_u32 v{VXR}, v0, 4, s52")
    k(f"v_lshlrev_b32 v{VWR}, 4, v0")
    k(f"v_add_u32 v{VWR}, {WR}, v{VWR}")
    for i in range(56): k(f"v_mov_b32 v{ACC+i}, 0")
    k("s_mul_i32 s52, s3, 7680")
    k(f"s_add_u32 s52, s52, {STG}")
    k("v_and_b32 v18, 15, v0")
    k("v_mul_u32_u24 v18, 240, v18")
    k("v_lshrrev_b32 v19, 4, v0")
    k("v_lshl_add_u32 v20, v19, 4, v18")
    k(f"v_add_u32 v{VEW}, s52, v20")
    k("v_lshl_add_u32 v20, v19, 3, v18")
    k(f"v_add_u32 v{VER}, s52, v20")
    k(f"s_mov_b32 s53, {magic(14)}")
    k("s_lshl_b32 s54, s4, 2")
    k("s_add_u32 s54, s54, s3")
    k(f"s_mul_i32 s54, s54, {32*3456}")
    k("s_mul_i32 s55, s5, 224")
    k("s_add_u32 s54, s54, s55")
    k("s_sub_u32 s55, 3456, s55")
    k("v_mov_b32 v23, 0x7fffffff")
    for i in range(7):
        k(f"v_add_u32 v18, {64*i}, v0")
        k("v_mul_hi_u32 v19, v18, s53")
        k("v_mul_u32_u24 v20, 14, v19")
        k("v_sub_u32 v18, v18, v20")
        k("v_lshlrev_b32 v18, 4, v18")
        k("v_cmp_gt_u32 vcc, s55, v18")
        k("v_mul_u32_u24 v20, 240, v19")
        k(f"v_add3_u32 v{VRD+i}, v20, v18, s52")
        k("v_mul_u32_u24 v20, 3456, v19")
        k(f"v_add3_u32 v{VST+i}, v20, v18, s54")
        k(f"v_cndmask_b32 v{VST+i}, v23, v{VST+i}, vcc")
    srd(k, 28, 20, 2048 * 1728 * 2)
    k("s_mov_b32 s56, 0"); k("s_mov_b32 s57, 0")
    def newstage():
        return [f"v_add_u32 v{VXC}, s56, v{VXR}", f"v_add_u32 v{VWC}, s57, v{VWR}"]
    def advance():
        return ["s_add_u32 s56, s56, 16384", f"s_cmp_eq_u32 s56, {NX*16384}",
                "s_cselect_b32 s56, 0, s56", "s_add_u32 s57, s57, 14336", f"s_cmp_eq_u32 s57, {NW*14336}", "s_cselect_b32 s57, 0, s57"]
    def reads(ks):
        f = FR + ks * 36
        out = [f"ds_read_b128 v[{f+28+u*4}:{f+31+u*4}], v{VXC} offset:{XR + u*1024 + ks*8192}" for u in range(0 if P.get("ab_noxr") else 2)]
        return out + [f"ds_read_b128 v[{f+b*4}:{f+b*4+3}], v{VWC} offset:{ks*7168 + b*1024}" for b in range(7)]
    RLX = P.get("rlx", 1)
    def mfmas(ks, fill, waits):
        f = FR + ks * 36; issued = 0
        rd = [x for x in fill if x.startswith("ds_")]; ot = [x for x in fill if not x.startswith("ds_")]
        slots = P.get("rs", [0, 1, 2, 4, 5, 7, 8, 10, 11]) if RLX else list(range(9))
        last = None
        for b in range(7):
            for u in range(2):
                i = 2 * b + u
                if waits and u == 0:
                    n = min(15, 6 - b + issued)
                    if not (RLX and b >= 1 and b != P.get("wb", 3) and rd is not None and len(fill)):
                        k(f"s_waitcnt lgkmcnt({n if not (RLX and len(fill)) else (7 - P.get('wb', 3) if b == 0 else issued)})")
                a = ACC + (u * 7 + b) * 4
                k(f"v_mfma_f32_16x16x32_bf16 v[{a}:{a+3}], v[{f+b*4}:{f+b*4+3}], v[{f+28+u*4}:{f+31+u*4}], v[{a}:{a+3}]")
                if rd and i in slots:
                    k(rd.pop(0)); issued += 1
                elif ot and (not ot[0].startswith("v_add") or not rd):
                    k(ot.pop(0))
                    if ot and not rd: k(ot.pop(0))
        assert not rd
        while ot: k(ot.pop(0))
    for x in newstage() + advance(): k(x)
    k("s_mov_b32 s65, 0")
    if P.get("cp", 1):
        k("s_cmp_lg_u32 s3, 0")
        k("s_cbranch_scc1 L_c_nopoll")
        k("s_mul_i32 s52, s5, 7")
        k("s_add_u32 s54, s52, 6")
        k("s_lshr_b32 s52, s52, 2")
        k("s_lshr_b32 s54, s54, 2")
        k("s_min_u32 s54, s54, 26")
        k("s_sub_u32 s52, s54, s52")
        k("s_mov_b32 s66, 1")
        k("s_cmp_ge_u32 s52, 1")
        k("s_cselect_b32 s66, 0x101, s66")
        k("s_cmp_ge_u32 s52, 2")
        k("s_cselect_b32 s66, 0x10101, s66")
        w0 = 0
        for i in range(P.get("W0", 4)): w0 |= mtmask(order[i])
        x0 = 0
        for i in range(P["X0"]): x0 |= 1 << (24 + order[i] // 2)
        k(f"s_mul_i32 s76, s66, {w0}")
        k(f"s_or_b32 s76, s76, {x0}")
        k("s_lshl_b32 s52, s4, 4")
        k("s_add_u32 s52, s52, s5")
        k(f"s_lshl_b32 s52, s52, {FS}")
        k(f"s_add_u32 s52, s52, {SYNC2_OFF}")
        k("v_lshl_add_u32 v160, v0, 2, s52")
        k("s_mov_b32 exec_hi, 0")
        one = ["v_mov_b32 v161, 0", "buffer_atomic_or v161, v160, s[44:47], 0 offen sc0 sc1"]
        dec = [x.replace("v30", "v161") for x in DECODE]
        pub = ["v_mov_b32 v162, s63", "v_mov_b32 v163, s83", "ds_write_b64 v2, v[162:163] offset:16"]
        poll_loop(k, "L_c_pl", "\n".join(one), dec + pub + ["s_and_b32 s52, s63, s76", "s_cmp_eq_u32 s52, s76"])
        for _ in range(P.get("xp", 1)):
            for x in one + ["s_waitcnt vmcnt(0)"] + dec: k(x)
        k("s_bitset1_b32 s63, 31")
        for x in pub: k(x)
        k("s_mov_b64 exec, -1")
        k.label("L_c_nopoll")
    k("s_barrier")
    stamp_mid(k, P, 2)
    for x in reads(0): k(x)
    k.label("L_c_cloop")
    mfmas(0, reads(1) + ["s_add_u32 s65, s65, 1", "s_cmp_eq_u32 s65, 10"] + newstage(), True)
    k("s_cbranch_scc1 L_c_cdone")
    if not RLX: k("s_waitcnt lgkmcnt(0)")
    k("s_barrier")
    mfmas(1, reads(0) + advance(), bool(RLX))
    k("s_branch L_c_cloop")
    k.label("L_c_cdone")
    mfmas(1, [], True)
    stamp_mid(k, P, 3)
    k("s_nop 4")
    for p in range(4):
        for u in range(2):
            t = FR + (p * 2 + u) * 4
            a0 = ACC + (u * 7 + 2 * p) * 4; a1 = a0 + 4
            k(f"v_cvt_pk_bf16_f32 v{t}, v{a0}, v{a0+1}")
            k(f"v_cvt_pk_bf16_f32 v{t+1}, v{a0+2}, v{a0+3}")
            if p < 3:
                k(f"v_cvt_pk_bf16_f32 v{t+2}, v{a1}, v{a1+1}")
                k(f"v_cvt_pk_bf16_f32 v{t+3}, v{a1+2}, v{a1+3}")
                k(f"ds_write_b128 v{VEW}, v[{t}:{t+3}] offset:{u*16*240 + p*64}")
            else:
                k(f"ds_write_b64 v{VER}, v[{t}:{t+1}] offset:{u*16*240 + 192}")
    for i in range(7): k(f"ds_read_b128 v[{ACC+i*4}:{ACC+i*4+3}], v{VRD+i}")
    for i in range(7):
        k(f"s_waitcnt lgkmcnt({6-i})")
        k(f"buffer_store_dwordx4 v[{ACC+i*4}:{ACC+i*4+3}], v{VST+i}, s[28:31], 0 offen {P.get('k2_stflags', '')}")
    stamp_end(k, P, 0, 44, 112, 3)
    k("s_endpgm")
    k.label("L_c_ld")
    c_ids(k)
    k("s_and_b32 s62, s3, 1")
    k("s_lshl_b32 s52, s4, 4")
    k("s_add_u32 s52, s52, s5")
    k(f"s_lshl_b32 s52, s52, {FS}")
    k(f"s_add_u32 s52, s52, {SYNC2_OFF}")
    k("v_lshl_add_u32 v8, v0, 2, s52")
    k("s_mov_b32 s63, 0")
    k("s_cmp_ge_u32 s3, 6")
    k("s_cbranch_scc1 L_c_xl")
    k("s_mul_i32 s52, s5, 7")
    k("s_add_u32 s54, s52, 6")
    k("s_lshr_b32 s52, s52, 2")
    k("s_lshr_b32 s54, s54, 2")
    k("s_min_u32 s54, s54, 26")
    k("s_sub_u32 s52, s54, s52")
    k("s_mov_b32 s66, 1")
    k("s_cmp_ge_u32 s52, 1")
    k("s_cselect_b32 s66, 0x101, s66")
    k("s_cmp_ge_u32 s52, 2")
    k("s_cselect_b32 s66, 0x10101, s66")
    k("s_lshr_b32 s52, s5, 2")
    k("s_lshl_b32 s52, s52, 22")
    k("s_and_b32 s81, s5, 3")
    k("s_lshl_b32 s81, s81, 19")
    k("s_add_u32 s52, s52, s81")
    k(f"s_add_u32 s52, s52, {WVF_OFF}")
    k("s_lshl_b32 s55, s62, 14")
    k("s_add_u32 s52, s52, s55")
    if P.get("dualW", 1): k("s_add_u32 s52, s52, s82")
    else:
        k("s_lshl_b32 s55, s62, 13")
        k("s_add_u32 s52, s52, s55")
    k("s_mul_i32 s55, s62, 7168")
    k("v_lshl_add_u32 v4, v0, 4, s52")
    k("v_add_u32 v5, 4096, v4")
    k("v_mov_b32 v6, v4")
    k("s_cmp_lg_u32 s5, 15")
    k("s_cbranch_scc1 L_c_nt15")
    k("v_mov_b32 v5, 0x7fffffff")
    k("v_and_b32 v7, 8, v0")
    k("v_cmp_eq_u32 vcc, 0, v7")
    k("s_nop 1")
    k("v_cndmask_b32 v6, v5, v4, vcc")
    k.label("L_c_nt15")
    k(f"s_add_u32 s55, s55, {WR}")
    k("s_barrier")
    k("s_cmp_lg_u32 s3, 5")
    k("s_cbranch_scc1 L_c_nopush")
    k("s_cmp_eq_u32 s74, 0")
    k("s_cbranch_scc1 L_c_nopush")
    k("s_waitcnt vmcnt(0)")
    k(f"v_add_u32 v19, {TAGC}, v19")
    k("s_mov_b32 exec_lo, s74")
    k("s_mov_b32 exec_hi, 0")
    lds_wait(k, "L_c_own", "s53")
    push(k, P, "v19", "v17", "s75")
    k("s_mov_b64 exec, -1")
    stamp_mid(k, P, 0)
    k("s_branch L_c_pushed")
    k.label("L_c_nopush")
    lds_wait(k, "L_c_own4", "s53", sleep=1)
    k.label("L_c_pushed")
    if P.get("ps2", 8): k(f"s_sleep {P.get('ps2', 8)}")
    def run(name, N, per, prep, fire, init, fin=None):
        vm = VM(); ni = 0
        def both(i):
            prep(i); k("s_nop 0"); fire(i)
            for _ in range(per): vm.issue(i)
        for _ in range(init): both(ni); ni += 1
        stamp_mid(k, P, 1)
        for b in range(10):
            lim = min(9, max(N - 1, b - 1 - P.get("rlx", 1) + N))
            todo = list(range(ni, lim + 1))[:1]
            if todo: prep(todo[0])
            k(f"s_waitcnt vmcnt({vm.wait_for(lambda t: t <= b)})")
            k("s_barrier")
            if todo:
                fire(todo[0])
                for _ in range(per): vm.issue(todo[0])
                ni += 1
        assert ni == 10
        if fin: fin()
        if P.get("stamp"):
            k("s_cmp_eq_u32 s3, 5")
            k("s_cselect_b32 s99, s82, s99")
            k("s_and_b32 s62, s3, 3")
            stamp_end(k, P, 2, 44, 32, 62)
        k("s_endpgm")
    def prepW(i):
        k(f"s_mul_i32 s76, s66, {mtmask(order[i])}")
        ensure(k, "L_poll2" if P.get("cp", 1) else "L_poll")
        k(f"s_mov_b32 s58, {order[i]*32768}")
        k(f"s_add_u32 m0, s55, {(i % NW)*14336}")
    def fireW(i):
        if P.get("ab_nowd"): return
        for j in range(4): k(f"buffer_load_dwordx4 v{4 if j < 2 else 6}, s[44:47], s58 offen offset:{j*1024} sc1 lds")
        k("s_add_u32 m0, m0, 4096")
        k("s_nop 0")
        for j in range(3): k(f"buffer_load_dwordx4 v5, s[44:47], s58 offen offset:{j*1024} sc1 lds")
    def finW():
        k("s_cmp_lg_u32 s3, 4")
        k("s_cbranch_scc1 L_c_nobump")
        bump(k)
        k.label("L_c_nobump")
    run("L_c_w", NW, 7, prepW, fireW, P.get("W0", 4), finW)
    k.label("L_c_xl")
    k("s_lshr_b32 s52, s4, 2")
    k("s_lshl_b32 s52, s52, 22")
    k("s_and_b32 s81, s4, 3")
    k("s_lshl_b32 s81, s81, 19")
    k("s_add_u32 s52, s52, s81")
    k(f"s_add_u32 s52, s52, {XRF_OFF}")
    k("s_lshl_b32 s55, s62, 14")
    k("s_add_u32 s52, s52, s55")
    k("v_lshl_add_u32 v4, v0, 4, s52")
    k("v_add_u32 v5, 4096, v4")
    k("s_lshl_b32 s55, s62, 13")
    k("s_barrier")
    if P.get("xhold", 1): lds_wait(k, "L_c_xh", "s53", sleep=1)
    def prepX(i):
        if i == 0 or order[i] // 2 != order[i - 1] // 2:
            k(f"s_mov_b32 s76, {1 << (24 + order[i] // 2)}")
            ensure(k, "L_poll2" if P.get("cp", 1) else "L_poll")
        k(f"s_bitcmp1_b32 s83, {24 + order[i] // 2}")
        k("s_cselect_b32 s58, 8192, 0")
        k(f"s_add_u32 s58, s58, {order[i]*32768}")
        k(f"s_add_u32 m0, s55, {XR + (i % NX)*16384}")
    def fireX(i):
        if P.get("ab_noxd"): return
        for j in range(4): k(f"buffer_load_dwordx4 v4, s[44:47], s58 offen offset:{j*1024} sc1 lds")
        k("s_add_u32 m0, m0, 4096")
        k("s_nop 0")
        for j in range(4): k(f"buffer_load_dwordx4 v5, s[44:47], s58 offen offset:{j*1024} sc1 lds")
    run("L_c_x", NX, 8, prepX, fireX, P.get("X0", NX))

def gen(P):
    uid[0] = 0
    P = dict(P)
    for kk_, v in (("tlb", 0), ("X0", 2), ("xfirst", 0), ("pm", "atom"), ("wm", "atom"), ("ps", 0), ("ps2", 0), ("cp", 0), ("W0", 2), ("dualW", 0)): P.setdefault(kk_, v)

    k = K(KNAME)
    k("s_cmp_ge_u32 s2, 256")
    k("s_cbranch_scc1 L_end")
    k("s_load_dwordx16 s[8:23], s[0:1], 0")
    k("s_load_dwordx2 s[24:25], s[0:1], 64")
    stamp_begin(k, P)
    k("s_getpc_b64 s[40:41]")
    k.label("L_pc0")
    k("v_subrev_u32 v4, 504, v0")
    k("v_cmp_gt_u32 vcc, 8, v4")
    k("s_and_saveexec_b64 s[44:45], vcc")
    k("s_cbranch_execz L_noipf")
    k("s_and_b32 s41, s41, 0xffff")
    k("s_mov_b32 s42, L_end - L_pc0")
    k("s_mov_b32 s43, 0x00020000")
    k("s_and_b32 s46, s2, 0xf8")
    k("v_add_lshl_u32 v4, s46, v4, 7")
    k("buffer_load_dword v200, v4, s[40:43], 0 offen")
    k.label("L_noipf")
    k("s_mov_b64 exec, -1")
    k("v_lshrrev_b32 v1, 6, v0")
    k(f"v_mov_b32 v2, {LCNT}")
    k("v_mov_b32 v3, 0")
    k("v_readfirstlane_b32 s3, v1")
    k("ds_write2_b32 v2, v3, v3 offset0:0 offset1:1")
    k("ds_write2_b32 v2, v3, v3 offset0:2 offset1:3")
    k("ds_write2_b32 v2, v3, v3 offset0:4 offset1:5")
    k("v_and_b32 v0, 63, v0")
    k("s_bfe_u32 s4, s2, 0x10002")
    k("s_bfe_u32 s82, s2, 0x10005" if P.get("pol") == "alt" else f"s_xor_b32 s82, s4, {P.get('pol', 0)}")
    k("s_lshl_b32 s82, s82, 13")
    k("s_and_b32 s5, s2, 3")
    k("s_lshr_b32 s6, s2, 3")
    nwv = NWV[P.get("xrx", 2)]
    base = [sum(nwv[:j]) for j in range(4)]
    xbase = [sum(32 - n for n in nwv[:j]) for j in range(4)]
    pk = lambda v: hex(sum(x << (8 * j) for j, x in enumerate(v)))
    k("s_lshl_b32 s7, s5, 3")
    k(f"s_lshr_b32 s52, {pk(nwv)}, s7")
    k("s_and_b32 s52, s52, 0xff")
    k(f"s_lshr_b32 s53, {pk(base)}, s7")
    k("s_and_b32 s53, s53, 0xff")
    kx = K("x")
    kx(f"s_lshr_b32 s53, {pk(xbase)}, s7")
    kx("s_and_b32 s53, s53, 0xff")
    kx("s_sub_u32 s6, s6, s52")
    kx("s_add_u32 s6, s6, s53")
    kx(f"s_mul_hi_u32 s60, s6, {magic(5)}")
    kx("s_mul_i32 s5, s60, 5")
    kx("s_sub_u32 s5, s6, s5")
    kx("s_lshl_b32 s4, s4, 2")
    kx("s_add_u32 s4, s4, s60")
    kx("s_add_u32 s50, s60, s5")
    kx("s_and_b32 s50, s50, 3")
    xr_role(kx, P)
    i0 = kx.lines.index("L_xr_cons:")
    k("s_cmp_ge_u32 s6, s52")
    if P.get("xfirst", 1):
        k("s_cbranch_scc0 L_wv")
        k.lines += kx.lines[:i0]
        k.label("L_wv")
    else:
        k("s_cbranch_scc1 L_xr")
    k("s_add_u32 s53, s53, s6")
    k("s_and_b32 s60, s53, 3")
    k("s_lshl_b32 s4, s4, 2")
    k("s_add_u32 s4, s4, s60")
    k("s_lshr_b32 s5, s53, 2")
    wv_role(k, P)
    poll_sub(k, P)
    if not P.get("xfirst", 1):
        k.label("L_xr")
        k.lines += kx.lines[:i0]
    k.lines += kx.lines[i0:]
    phase_c(k, P)
    return finish(k)

def finish(k):
    k.label("L_end")
    k("s_endpgm")
    src = "; QuIP weight-only int4 layer: y = (x@U) @ (dequant(qw)@V), one fused launch (generated by dev/gen9.py)\n"
    src += "; @launch grid=(256,1,1) block=(512,1,1) lds=163840\n" + HEADER + k.text()
    src += '.section .rodata,"a"\n' + desc(KNAME, 256, 102, 256)
    return src

def is_wv(b, P):
    import numpy as np
    return (b >> 3) < np.array(NWV[P.get("xrx", 2)])[b & 3]
def is_xr(b, P):
    return ~is_wv(b, P)

if __name__ == "__main__":
    import json
    P = json.loads(sys.argv[2]) if len(sys.argv) > 2 else {}
    open(sys.argv[1], "w").write(gen(P))
```

```python
import sys
from asmlib import *
from gen import magic, VM, stamp_begin, stamp_mid, stamp_end, STAMP_OFF
from gen4 import xr_orders
SYNC_OFF = 0; SYNC2_OFF = 0x10000
AQ_OFF = 0x20000
WVF_OFF = 0x240000
XRF_OFF = 0x480000
WS_BYTES = 0x1000000
TAGC = 0x5bd1e995
LCNT = 163840 - 64
NWV = {2: [32, 32, 32, 12], 4: [32, 32, 22, 22], 8: [27, 27, 27, 27]}
XSTG = 49152
SPIN_MAX = 1 << 20
FS = 8
KNAME = "standalone__weight_only_int_quip__prompt_kernel"

def poll_loop(k, name, load, cmp_lines, sleep=0, wait="vmcnt(0)"):
    k("s_mov_b32 s80, 0")
    k.label(name)
    if sleep: k(f"s_sleep {sleep}")
    k(load)
    k("s_add_u32 s80, s80, 1")
    k(f"s_cmp_ge_u32 s80, {SPIN_MAX}")
    k(f"s_cbranch_scc1 {name}_done")
    k(f"s_waitcnt {wait}")
    for l in cmp_lines: k(l)
    k(f"s_cbranch_scc0 {name}")
    k.label(f"{name}_done")

def lds_wait(k, name, n, sleep=0):
    poll_loop(k, name, "ds_read_b32 v30, v2", ["v_readfirstlane_b32 s52, v30", f"s_cmp_ge_u32 s52, {n}"], wait="lgkmcnt(0)", sleep=sleep)

def arrive(k):
    k("s_waitcnt vmcnt(0)")
    k("v_mov_b32 v7, 1")
    k("s_mov_b64 exec, 1")
    k("ds_add_u32 v2, v7")
    k("s_mov_b64 exec, -1")

DECODE = ["v_readlane_b32 s59, v30, 31", f"s_add_u32 s52, s59, {TAGC}", "v_cmp_eq_u32 vcc, s52, v30", "s_mov_b32 s63, vcc_lo"]

def poll_sub(k, P):
    k.label("L_poll")
    k("s_mov_b32 exec_lo, -1")
    k("s_mov_b32 exec_hi, 0")
    poll_loop(k, "L_poll_l", "v_mov_b32 v30, 0\nbuffer_atomic_or v30, v8, s[44:47], 0 offen sc0 sc1", DECODE + ["s_and_b32 s52, s63, s76", "s_cmp_eq_u32 s52, s76"])
    k("s_mov_b64 exec, -1")
    k.label("L_poll_ret")
    k("s_setpc_b64 s[78:79]")

uid = [0]
def ensure(k, sub="L_poll"):
    uid[0] += 1
    k("s_and_b32 s52, s63, s76")
    k("s_cmp_eq_u32 s52, s76")
    k(f"s_cbranch_scc1 L_ok{uid[0]}")
    k(f"s_call_b64 s[78:79], {sub}")
    k.label(f"L_ok{uid[0]}")

def gather(k, P, reg, addr):
    gm = P.get("gm", "sc1")
    if gm == "atom":
        k(f"v_mov_b32 {reg}, 0")
        k(f"buffer_atomic_or {reg}, {addr}, s[44:47], 0 offen offset:124 sc0 sc1")
    else:
        k(f"buffer_load_dword {reg}, {addr}, s[44:47], 0 offen offset:124 {gm}")

def push(k, P, data, addr, so):
    if P.get("wm") == "atom": k(f"buffer_atomic_swap {data}, {addr}, s[44:47], {so} offen sc1")
    else: k(f"buffer_store_dword {data}, {addr}, s[44:47], {so} offen sc1")

def bump(k):
    k("v_mov_b32 v30, 1")
    k("s_mov_b64 exec, 1")
    k("buffer_atomic_add v30, v8, s[44:47], 0 offen offset:124 sc1")
    k("s_mov_b64 exec, -1")

def wv_role(k, P):
    NAD = 3; NB = P.get("NB", 11); TH = P.get("th", 4)
    ARING = 0; BRING = NAD * 20480; STG = BRING + NB * 8192
    RED = 124 * 1024
    assert STG + 10240 <= LCNT and NB % 2 == 1
    for i in (25, 26): assert not (BRING + (i % NB) * 8192 < RED + 20480 and RED < BRING + (i % NB + 1) * 8192)
    k("s_lshr_b32 s53, s4, 1")
    k("s_lshl_b32 s70, s53, 3")
    k("s_add_u32 s71, s70, 6")
    k("s_lshl_b32 s52, s53, 1")
    k("s_add_u32 s52, s52, 32")
    k("s_bitcmp1_b32 s4, 0")
    k("s_cselect_b32 s71, s52, s71")
    k("s_cselect_b32 s52, 3, 0")
    k("s_add_u32 s70, s70, s52")
    k(f"s_mul_i32 s68, s5, {P.get('on', 1)}")
    k(f"s_mul_i32 s52, s60, {P.get('oa', 7)}")
    k("s_add_u32 s68, s68, s52")
    k(f"s_mul_hi_u32 s52, s68, {magic(27)}")
    k("s_mul_i32 s52, s52, 27")
    k("s_sub_u32 s68, s68, s52")
    k("s_cmp_ge_u32 s3, 5")
    k("s_cbranch_scc1 L_wv_nodq")
    k("s_add_u32 s52, s70, s3")
    k("s_add_u32 s54, s71, s3")
    k("s_sub_u32 s54, s54, 3")
    k("s_cmp_ge_u32 s3, 3")
    k("s_cselect_b32 s52, s54, s52")
    k("v_lshrrev_b32 v24, 4, v0")
    k("v_and_b32 v25, 15, v0")
    k("v_mul_u32_u24 v26, 6912, v24")
    k("v_lshl_add_u32 v4, v25, 4, v26")
    k(f"s_mul_i32 s55, s52, {16*6912}")
    k("s_lshl_b32 s54, s68, 8")
    k("s_add_u32 s55, s55, s54")
    for m in range(1, 4): k(f"s_add_u32 s{55+m}, s55, {m*4*6912}")
    k("s_lshr_b32 s52, s52, 3")
    k("s_mul_i32 s52, s52, 3456")
    k("s_lshl_b32 s54, s68, 7")
    k("s_add_u32 s52, s52, s54")
    k("v_lshlrev_b32 v8, 3, v25")
    k("s_waitcnt lgkmcnt(0)")
    srd(k, 28, 10, 640 * 1728 * 4)
    R = 32
    for m in range(4): k(f"buffer_load_dwordx4 v[{R+4*m}:{R+4*m+3}], v4, s[28:31], s{55+m} offen")
    srd(k, 36, 12, 5 * 1728 * 2)
    srd(k, 40, 14, 5 * 1728 * 2)
    k("buffer_load_dwordx2 v[10:11], v8, s[36:39], s52 offen")
    k("buffer_load_dwordx2 v[12:13], v8, s[40:43], s52 offen")
    k("s_barrier")
    srd(k, 44, 24, WS_BYTES)
    k("v_lshrrev_b32 v27, 1, v25")
    k("v_lshlrev_b32 v26, 8, v27")
    k("v_and_b32 v28, 1, v25")
    k("v_lshl_add_u32 v26, v28, 3, v26")
    k("s_lshl_b32 s52, s3, 11")
    k(f"s_add_u32 s52, s52, {STG}")
    k("v_add_u32 v26, s52, v26")
    k("v_xor_b32 v27, v27, v24")
    k("v_lshl_add_u32 v4, v27, 4, v26")
    k("v_xor_b32 v5, 64, v4")
    k("v_xor_b32 v28, v0, v24")
    k("v_lshl_add_u32 v28, v28, 4, s52")
    k("v_xor_b32 v29, 64, v28")
    k("s_mul_i32 s52, s4, 27")
    k("s_add_u32 s52, s52, s68")
    k("s_mul_i32 s52, s52, 10240")
    k("s_lshl_b32 s54, s3, 10")
    k("s_add_u32 s52, s52, s54")
    k(f"s_add_u32 s55, s52, {AQ_OFF}")
    k("s_add_u32 s54, s55, 5120")
    k("v_lshlrev_b32 v9, 4, v0")
    k("s_waitcnt vmcnt(0)")
    for i in range(2):
        k(f"v_lshlrev_b32 v{14+2*i}, 16, v{10+i}"); k(f"v_and_b32 v{15+2*i}, 0xffff0000, v{10+i}")
        k(f"v_lshlrev_b32 v{18+2*i}, 16, v{12+i}"); k(f"v_and_b32 v{19+2*i}, 0xffff0000, v{12+i}")
    for i in range(4): k(f"v_mul_f32 v{18+i}, -v{18+i}, v{14+i}")
    for m in range(4):
        r = R + 4 * m
        for i in range(4): k(f"v_cvt_f32_i32 v{r+i}, v{r+i}")
        for i in range(4): k(f"v_fma_f32 v{r+i}, v{r+i}, v{14+i}, v{18+i}")
        k(f"v_cvt_pk_bf16_f32 v{r}, v{r}, v{r+1}")
        k(f"v_cvt_pk_bf16_f32 v{r+1}, v{r+2}, v{r+3}")
        k(f"ds_write_b64 v{4+(m&1)}, v[{r}:{r+1}] offset:{(m>>1)*128}")
    k("ds_read_b128 v[48:51], v28")
    k("ds_read_b128 v[52:55], v29 offset:1024")
    k("s_waitcnt lgkmcnt(1)")
    k("buffer_store_dwordx4 v[48:51], v9, s[44:47], s55 offen sc1")
    k("s_waitcnt lgkmcnt(0)")
    k("buffer_store_dwordx4 v[52:55], v9, s[44:47], s54 offen sc1")
    arrive(k)
    k("s_cmp_lt_u32 s3, 4")
    k("s_cbranch_scc1 L_wv_cons")
    k("s_branch L_wv_ld")
    k.label("L_wv_nodq")
    k("s_waitcnt lgkmcnt(0)")
    k("s_barrier")
    srd(k, 44, 24, WS_BYTES)
    k.label("L_wv_ld")
    VB = 12
    k("s_and_b32 s62, s3, 1")
    k("s_bfe_u32 s61, s3, 0x10001")
    k("v_lshrrev_b32 v24, 3, v0")
    k("v_and_b32 v25, 7, v0")
    k("v_mul_u32_u24 v26, 3456, v24")
    k("v_bfe_u32 v27, v0, 4, 1")
    k("v_lshlrev_b32 v27, 1, v27")
    k("v_xor_b32 v27, v25, v27")
    k("v_lshl_add_u32 v26, v27, 4, v26")
    k(f"s_mul_i32 s52, s62, {32*3456}")
    k("s_lshl_b32 s54, s5, 7")
    k("s_add_u32 s52, s52, s54")
    k(f"v_add_u32 v{VB}, s52, v26")
    k(f"v_xor_b32 v{VB+1}, 64, v{VB}")
    k(f"v_add_u32 v{VB+1}, {8*3456}, v{VB+1}")
    k(f"v_add_u32 v{VB+2}, {16*3456}, v{VB}")
    k(f"v_add_u32 v{VB+3}, {16*3456}, v{VB+1}")
    k("s_lshl_b32 s66, s62, 12")
    k(f"s_add_u32 s66, s66, {BRING}")
    srd(k, 32, 18, 1728 * 1728 * 2)
    def fireB():
        for n in range(4):
            k(f"buffer_load_dwordx4 v{VB+n}, s[32:35], s58 offen lds")
            if n < 3:
                k("s_add_u32 m0, m0, 1024"); k("s_nop 0")
    k("s_cmp_eq_u32 s61, 0")
    k("s_cbranch_scc1 L_wv_nopre")
    k("s_mov_b32 s57, s68")
    k("s_mov_b32 s56, s66")
    k("s_mov_b32 s65, 0")
    def xprefetch(skip):
        XRX = P.get("xrx", 2)
        nw = NWV[XRX][3]; nmx = (32 - nw) // 5; H = 2 * nw
        xi = nmx * 4; per = xi + 10
        S0 = P["xpf"]; total = (P.get("xpe", 10) - S0) * per
        k(f"s_cmp_lt_u32 s7, {8 * (4 - XRX // 2)}")
        k(f"s_cbranch_scc1 {skip}")
        srd(k, 36, 8, 2048 * 640 * 2)
        srd(k, 40, 16, 640 * 640 * 2)
        k("s_lshr_b32 s52, s7, 3")
        k(f"s_sub_u32 s52, s52, {4 - XRX // 2}")
        k(f"s_mul_i32 s52, s52, {256 * nmx * 1280}")
        k("s_lshr_b32 s53, s4, 2")
        k(f"s_mul_i32 s53, s53, {1024 * 1280}")
        k("s_add_u32 s72, s52, s53")
        k("v_mul_u32_u24 v20, 1280, v0")
        k("v_lshlrev_b32 v21, 7, v0")
        k("s_lshl_b32 s73, s6, 1")
        k("s_add_u32 s73, s73, s62")
        k.label("L_wv_pf")
        k(f"s_mul_hi_u32 s52, s73, {magic(per)}")
        k(f"s_mul_i32 s53, s52, {per}")
        k("s_sub_u32 s53, s73, s53")
        k(f"s_add_u32 s52, s52, {S0}")
        k(f"s_cmp_ge_u32 s53, {xi}")
        k("s_cbranch_scc1 L_wv_pfu")
        k(f"s_mul_i32 s53, s53, {64*1280}")
        k("s_lshl_b32 s52, s52, 7")
        k("s_add_u32 s52, s52, s53")
        k("s_add_u32 s52, s52, s72")
        k("buffer_load_dword v201, v20, s[36:39], s52 offen")
        k("s_branch L_wv_pfn")
        k.label("L_wv_pfu")
        k("s_mul_i32 s52, s52, 10")
        k("s_add_u32 s52, s52, s53")
        k(f"s_sub_u32 s52, s52, {xi}")
        k("s_lshl_b32 s52, s52, 13")
        k("buffer_load_dword v201, v21, s[40:43], s52 offen")
        k.label("L_wv_pfn")
        k(f"s_add_u32 s73, s73, {H}")
        k(f"s_cmp_lt_u32 s73, {total}")
        k(f"s_waitcnt vmcnt({P.get('pth', 1)})")
        k("s_cbranch_scc1 L_wv_pf")
    if P.get("xpf") is not None and not P.get("xpa"): xprefetch("L_wv_pre")
    k.label("L_wv_pre")
    k("s_mov_b32 m0, s56")
    k(f"s_mul_i32 s58, s57, {64*3456}")
    fireB()
    k("s_add_u32 s57, s57, 1")
    k("s_cmp_eq_u32 s57, 27")
    k("s_cselect_b32 s57, 0, s57")
    k("s_add_u32 s56, s56, 8192")
    k("s_add_u32 s65, s65, 1")
    k(f"s_cmp_ge_u32 s65, {P.get('n1', 6)}")
    k("s_cbranch_scc1 L_wv_pre2")
    k(f"s_waitcnt vmcnt({TH})")
    k.label("L_wv_pre2")
    k(f"s_cmp_lt_u32 s65, {NB}")
    k("s_cbranch_scc1 L_wv_pre")
    if P.get("xpf") is not None and P.get("xpa"): xprefetch("L_wv_nopre")
    k.label("L_wv_nopre")
    k(f"s_mul_i32 s52, s4, {27 << FS}")
    k(f"s_add_u32 s52, s52, {SYNC_OFF}")
    k(f"v_lshl_add_u32 v6, v0, {FS}, s52")
    k(f"s_lshl_b32 s53, s5, {FS}")
    k("s_add_u32 s52, s52, s53")
    k("v_lshl_add_u32 v8, v0, 2, s52")
    k("s_lshl_b32 s52, s5, 2")
    k(f"s_mul_hi_u32 s72, s52, {magic(7)}")
    k("s_add_u32 s52, s52, 3")
    k(f"s_mul_hi_u32 s73, s52, {magic(7)}")
    k("s_cmp_eq_u32 s72, s73")
    k("s_cselect_b32 s74, 0xffff, -1")
    k("v_bfe_u32 v18, v0, 4, 1")
    k("v_add_u32 v18, s72, v18")
    k("v_and_b32 v16, 15, v0")
    k("v_lshl_add_u32 v16, v16, 4, v18")
    k(f"v_lshlrev_b32 v16, {FS}, v16")
    k(f"v_add_u32 v16, {SYNC2_OFF}, v16")
    k("v_mul_u32_u24 v18, 7, v18")
    k("v_lshrrev_b32 v18, 2, v18")
    k("v_sub_u32 v18, s5, v18")
    k("v_lshl_add_u32 v17, v18, 5, v16")
    k("s_lshl_b32 s75, s4, 2")
    k("s_cmp_lg_u32 s3, 5")
    k("s_cbranch_scc1 L_wv_go")
    k("s_lshl_b32 s53, s68, 2")
    k("s_mov_b64 exec, 0x7ffffff")
    gather(k, P, "v11", "v6")
    k("s_mov_b32 exec_lo, s74")
    gather(k, P, "v19", "v16")
    k("s_mov_b32 exec_lo, 0x7ffffff")
    k("s_waitcnt vmcnt(1)")
    k(f"v_add_u32 v11, {TAGC}, v11")
    lds_wait(k, "L_wv_own", 5)
    push(k, P, "v11", "v6", "s53")
    k("s_mov_b64 exec, -1")
    k.label("L_wv_go")
    k(f"s_mul_i32 s52, s4, {27*10240}")
    k("s_mul_i32 s55, s62, 5120")
    k("s_add_u32 s52, s52, s55")
    k(f"s_add_u32 s52, s52, {AQ_OFF}")
    k("v_lshl_add_u32 v9, v0, 4, s52")
    k("v_add_u32 v10, 4096, v9")
    k("s_mul_i32 s52, s61, 10240")
    k("s_add_u32 s55, s55, s52")
    k("s_add_u32 s57, s68, s61")
    k("s_add_u32 s57, s57, 1")
    k("s_sub_u32 s52, s57, 27")
    k("s_cselect_b32 s57, s57, s52")
    k(f"s_add_u32 s67, s57, {NB-1}")
    k("s_sub_u32 s52, s67, 27")
    k("s_cselect_b32 s67, s67, s52")
    k("s_lshl_b32 s69, s61, 13")
    k("s_cmp_lg_u32 s3, 4")
    k("s_cbranch_scc1 L_wv_np")
    k(f"s_lshl_b64 s[76:77], 15, s57")
    k("s_lshr_b64 s[78:79], s[76:77], 27")
    k("s_or_b32 s76, s76, s78")
    k("s_and_b32 s76, s76, 0x7ffffff")
    if P.get("ps", 16): k(f"s_sleep {P.get('ps', 16)}")
    k("s_call_b64 s[78:79], L_poll")
    k("v_mov_b32 v30, s63")
    k("ds_write_b32 v2, v30 offset:4")
    k("s_branch L_wv_np2")
    k.label("L_wv_np")
    poll_loop(k, "L_wv_lm", "ds_read_b32 v30, v2 offset:4", ["v_readfirstlane_b32 s63, v30", "s_cmp_lg_u32 s63, 0"], wait="lgkmcnt(0)", sleep=1)
    k.label("L_wv_np2")
    stamp_mid(k, P, 3)
    vm = VM()
    def prepA(D):
        k("s_lshl_b32 s76, 1, s57")
        ensure(k)
        k("s_mul_i32 s64, s57, 10240")
        k("s_add_u32 s57, s57, 2")
        k("s_sub_u32 s52, s57, 27")
        k("s_cselect_b32 s57, s57, s52")
        k(f"s_add_u32 m0, s55, {ARING + (D % NAD)*20480}")
    def fireA(D):
        for j in range(4): k(f"buffer_load_dwordx4 v9, s[44:47], s64 offen offset:{j*1024} sc1 lds")
        k("s_add_u32 m0, m0, 4096")
        k("s_nop 0")
        k("buffer_load_dwordx4 v10, s[44:47], s64 offen sc1 lds")
        for _ in range(5): vm.issue(("A", D))
    def prepB():
        k(f"s_mul_i32 s58, s67, {64*3456}")
        k("s_add_u32 s67, s67, 2")
        k("s_sub_u32 s52, s67, 27")
        k("s_cselect_b32 s67, s67, s52")
        k("s_add_u32 s56, s66, s69")
        k("s_add_u32 s69, s69, 16384")
        k(f"s_sub_u32 s52, s69, {NB*8192}")
        k("s_cselect_b32 s69, s69, s52")
    na = 0; nb = (NB - 1) // 2
    for _ in range(2):
        prepA(na); k("s_nop 0"); fireA(na); na += 1
    for D in range(13):
        lim = D - 1 + NAD if D >= 1 else NAD - 1
        la = [x for x in range(na, min(12, lim) + 1)][:1]
        lb = [nb] if (D >= 1 and nb <= 12 and (D not in P.get("bskip", []) or nb - D <= 2)) else []
        if lb: prepB()
        if la: prepA(la[0])
        k(f"s_waitcnt vmcnt({vm.wait_for(lambda t: t[1] <= D)})")
        k("s_barrier")
        if la: fireA(la[0])
        if lb:
            k("s_mov_b32 m0, s56"); k("s_nop 0"); fireB()
            for _ in range(4): vm.issue(("B", nb))
            nb += 1
        na += len(la)
    assert na == 13 and nb >= 13
    k("s_cmp_lg_u32 s3, 4")
    k("s_cbranch_scc1 L_wv_nobump")
    bump(k)
    k.label("L_wv_nobump")
    k("s_mov_b32 s53, 9")
    k("s_branch L_c_ld")
    k.label("L_wv_cons")
    VAR = 48; VBR = 49; VAC = 51; VBC = 52; VO = 54; VRED = 55; VARS = 57
    FR = 64; ACC = 120
    k("s_and_b32 s60, s3, 1")
    k("s_lshr_b32 s61, s3, 1")
    k("s_mul_i32 s52, s61, 5120")
    k(f"v_lshl_add_u32 v{VAR}, v0, 4, s52")
    k("s_lshl_b32 s54, s61, 2")
    k("v_or_b32 v28, s54, v24")
    k("v_xor_b32 v28, v28, v0")
    k("s_lshl_b32 s52, s61, 10")
    k(f"s_add_u32 s52, s52, {STG}")
    k(f"v_lshl_add_u32 v{VARS}, v28, 4, s52")
    k("s_lshl_b32 s63, s60, 1")
    k("s_add_u32 s63, s63, s61")
    k("v_bfe_u32 v28, v0, 2, 2")
    k("v_lshl_add_u32 v28, v24, 3, v28")
    k("v_lshlrev_b32 v28, 7, v28")
    k("v_bfe_u32 v29, v0, 3, 2")
    k("v_xor_b32 v29, s63, v29")
    k("v_lshl_add_u32 v28, v29, 5, v28")
    k("v_and_b32 v29, 3, v0")
    k("v_lshl_add_u32 v28, v29, 3, v28")
    k("s_lshl_b32 s52, s61, 12")
    k(f"s_add_u32 s52, s52, {BRING}")
    k(f"v_add_u32 v{VBR}, s52, v28")
    k(f"v_xor_b32 v{VBR+1}, 32, v{VBR}")
    k("s_lshl_b32 s52, s5, 2")
    k("s_add_u32 s52, s52, s63")
    k(f"s_mul_hi_u32 s54, s52, {magic(7)}")
    k("s_mul_i32 s64, s54, 7")
    k("s_sub_u32 s52, s52, s64")
    k("s_mov_b32 s64, s54")
    k("s_mul_i32 s54, s64, 143360")
    k(f"s_add_u32 s54, s54, {WVF_OFF}")
    k("v_bfe_u32 v28, v0, 2, 1")
    k("v_lshlrev_b32 v28, 10, v28")
    k("v_bfe_u32 v29, v0, 3, 1")
    k("v_lshl_add_u32 v28, v29, 6, v28")
    k("v_and_b32 v29, 3, v0")
    k("v_lshl_add_u32 v28, v29, 4, v28")
    k("v_lshlrev_b32 v29, 4, v25")
    k("s_cmp_eq_u32 s52, 6")
    k("s_cselect_b64 vcc, -1, 0")
    k("s_and_b32 s64, s52, 6")
    k("s_lshl_b32 s64, s64, 10")
    k("s_and_b32 s52, s52, 1")
    k("s_lshl_b32 s52, s52, 7")
    k("s_add_u32 s54, s54, s64")
    k("s_add_u32 s54, s54, s52")
    k("v_cndmask_b32 v28, v28, v29, vcc")
    k("v_lshrrev_b32 v29, 1, v24")
    k("v_lshl_add_u32 v28, v29, 8, v28")
    k("v_add_u32 v28, s54, v28")
    for j in range(5):
        k(f"s_add_u32 s52, s70, {j}" if j < 3 else f"s_add_u32 s52, s71, {j-3}")
        k(f"s_lshr_b32 s{72+j}, s52, 1")
        k(f"s_mul_i32 s{72+j}, s{72+j}, 7168")
        k("s_and_b32 s52, s52, 1")
        k("s_lshl_b32 s52, s52, 9")
        k(f"s_add_u32 s{72+j}, s{72+j}, s52")
    k("s_mov_b32 s77, 0x40000000")
    k("v_and_b32 v29, 1, v24")
    k("v_cmp_eq_u32 vcc, 1, v29")
    for g in range(3):
        k(f"v_mov_b32 v29, s{72+2*g}")
        k(f"v_mov_b32 v30, s{73+2*g}")
        k("v_cndmask_b32 v29, v29, v30, vcc")
        k(f"v_add_u32 v{58+g}, v28, v29")
    for i in range(40): k(f"v_mov_b32 v{ACC+i}, 0")
    k("s_mul_i32 s52, s3, 5120")
    k(f"s_add_u32 s52, s52, {RED}")
    k(f"v_lshl_add_u32 v{VRED}, v0, 4, s52")
    k("s_xor_b32 s52, s3, 2")
    k("s_mul_i32 s52, s52, 5120")
    k(f"s_add_u32 s52, s52, {RED}")
    k(f"v_lshl_add_u32 v{VRED+1}, v0, 4, s52")
    def reads(fb, va, aoff, astr, vb):
        f = FR + fb * 28
        out = [f"ds_read_b64_tr_b16 v[{f+20+u*4+sec*2}:{f+21+u*4+sec*2}], v{vb+u} offset:{sec*512}" for u in range(2) for sec in range(2)]
        return out + [f"ds_read_b128 v[{f+j*4}:{f+j*4+3}], v{va} offset:{aoff + j*astr}" for j in range(5)]
    def nextB():
        return [f"v_add_u32 v{VBC}, s57, v{VBR}", f"v_add_u32 v{VBC+1}, s57, v{VBR+1}", "s_add_u32 s57, s57, 8192",
                f"s_cmp_eq_u32 s57, {NB*8192}", "s_cselect_b32 s57, 0, s57"]
    def nextA():
        return [f"v_add_u32 v{VAC}, s56, v{VAR}", "s_add_u32 s56, s56, 20480", f"s_cmp_eq_u32 s56, {NAD*20480}", "s_cselect_b32 s56, 0, s56"]
    def mf(fb, j, u):
        f = FR + fb * 28; a = ACC + (u * 5 + j) * 4
        return f"v_mfma_f32_16x16x32_bf16 v[{a}:{a+3}], v[{f+j*4}:{f+j*4+3}], v[{f+20+u*4}:{f+23+u*4}], v[{a}:{a+3}]"
    def mfmas(fb, fill, waits):
        issued = 0
        for j in range(5):
            for u in range(2):
                for _ in range(2):
                    if fill:
                        x = fill.pop(0); k(x)
                        if x.startswith("ds_"): issued += 1
                if waits and u == 0: k(f"s_waitcnt lgkmcnt({4 - j + issued})")
                k(mf(fb, j, u))
        while fill: k(fill.pop(0))
    k("s_mov_b32 s56, 0"); k("s_mov_b32 s57, 8192")
    for x in nextA() + nextB(): k(x)
    k("s_mov_b32 s65, 0")
    k("s_barrier")
    for x in reads(1, VARS, 0, 2048, VBR): k(x)
    k("s_waitcnt lgkmcnt(0)")
    k("s_branch L_wv_cent")
    k.label("L_wv_cloop")
    k("s_waitcnt lgkmcnt(0)")
    k("s_barrier")
    k.label("L_wv_cent")
    mfmas(1, reads(0, VAC, ARING, 1024, VBC) + nextB(), False)
    mfmas(0, reads(1, VAC, ARING + 10240, 1024, VBC) + nextA() + nextB() + ["s_add_u32 s65, s65, 1"], True)
    k("s_cmp_lt_u32 s65, 13")
    k("s_cbranch_scc1 L_wv_cloop")
    k("s_waitcnt lgkmcnt(0)")
    for u in (1, 0):
        for j in range(5): k(mf(1, j, u))
    stamp_mid(k, P, 0)
    k("s_nop 2")
    for j in range(5):
        a = ACC + (5 + j) * 4
        k(f"ds_write_b128 v{VRED}, v[{a}:{a+3}] offset:{j*1024}")
    k("s_waitcnt lgkmcnt(0)")
    k("s_barrier")
    for j in range(5): k(f"ds_read_b128 v[{FR+28+j*4}:{FR+28+j*4+3}], v{VRED+1} offset:{j*1024}")
    for j in range(5):
        k(f"s_waitcnt lgkmcnt({4-j})")
        for i in range(4): k(f"v_add_f32 v{ACC+j*4+i}, v{ACC+j*4+i}, v{FR+28+j*4+i}")
        t = FR + j * 2
        k(f"v_cvt_pk_bf16_f32 v{t}, v{ACC+j*4}, v{ACC+j*4+1}")
        k(f"v_cvt_pk_bf16_f32 v{t+1}, v{ACC+j*4+2}, v{ACC+j*4+3}")
        if j & 1 or j == 4:
            t = FR + (j >> 1) * 4
            k("s_nop 1")
            k(f"v_permlane16_swap_b32 v{t}, v{t+2}")
            k(f"v_permlane16_swap_b32 v{t+1}, v{t+3}")
            k(f"buffer_store_dwordx4 v[{t}:{t+3}], v{58 + (j >> 1)}, s[44:47], 0 offen sc1")
    k("s_branch L_c_cons")

def xr_role(k, P):
    k("s_and_b32 s62, s3, 3")
    k("s_cmp_lt_u32 s3, 4")
    k("s_cbranch_scc1 L_xr_cons")
    tabs = [sum(x << (4 * i) for i, x in enumerate(o)) for o in xr_orders(P)]
    k(f"s_mov_b32 s66, {hex(tabs[0] & 0xffffffff)}")
    k(f"s_mov_b32 s67, {hex(tabs[0] >> 32)}")
    for c in range(1, 4):
        k(f"s_cmp_eq_u32 s50, {c}")
        k(f"s_cselect_b32 s66, {hex(tabs[c] & 0xffffffff)}, s66")
        k(f"s_cselect_b32 s67, {hex(tabs[c] >> 32)}, s67")
    VX = 4; VU = 12
    k("v_lshrrev_b32 v28, 3, v0")
    k("v_and_b32 v29, 7, v0")
    k("v_lshrrev_b32 v30, 4, v0")
    k("v_xor_b32 v29, v29, v30")
    k("v_mul_u32_u24 v28, 1280, v28")
    k("v_lshl_add_u32 v28, v29, 4, v28")
    k("s_lshl_b32 s51, s4, 2")
    k("s_add_u32 s51, s51, s62")
    k(f"s_mul_i32 s52, s51, {64*1280}")
    k(f"v_add_u32 v{VX}, s52, v28")
    k(f"v_xor_b32 v{VX+1}, 64, v{VX}")
    k(f"v_add_u32 v{VX+1}, {8*1280}, v{VX+1}")
    for i in range(2, 8): k(f"v_add_u32 v{VX+i}, {16*1280}, v{VX+i-2}")
    k("v_and_b32 v29, 15, v0")
    k("v_lshlrev_b32 v31, 1, v30")
    k("v_xor_b32 v29, v29, v31")
    k("v_mul_u32_u24 v28, 1280, v30")
    k("v_lshl_add_u32 v28, v29, 4, v28")
    k(f"s_mul_i32 s52, s62, {16*1280}")
    k("s_lshl_b32 s53, s5, 8")
    k("s_add_u32 s52, s52, s53")
    k(f"v_add_u32 v{VU}, s52, v28")
    k(f"v_add_u32 v{VU+1}, {4*1280}, v{VU}")
    k(f"v_xor_b32 v{VU+2}, 128, v{VU}")
    k(f"v_add_u32 v{VU+2}, {8*1280}, v{VU+2}")
    k(f"v_add_u32 v{VU+3}, {4*1280}, v{VU+2}")
    k("s_lshl_b32 s55, s62, 13")
    k("s_lshl_b32 s56, s62, 12")
    k("s_add_u32 s56, s56, 32768")
    k("s_mov_b32 s60, 0")
    k("s_mov_b32 s65, 0")
    k("s_waitcnt lgkmcnt(0)")
    srd(k, 28, 8, 2048 * 640 * 2)
    srd(k, 32, 16, 640 * 640 * 2)
    XL = P.get("XL", 7)
    stamp_mid(k, P, 2)
    k.label("L_xr_lloop")
    k("s_and_b32 s57, s66, 15")
    k("s_lshr_b64 s[66:67], s[66:67], 4")
    k("s_add_u32 m0, s56, s60")
    k("s_lshl_b32 s58, s57, 7")
    k(f"s_mul_i32 s59, s57, {64*1280}")
    for n in range(12):
        if n < 4: k(f"buffer_load_dwordx4 v{VU+n}, s[32:35], s59 offen lds")
        else: k(f"buffer_load_dwordx4 v{VX+n-4}, s[28:31], s58 offen lds")
        if n < 11:
            k("s_add_u32 m0, m0, 1024" if n != 3 else "s_add_u32 m0, s55, s60")
            if n + 1 == XL:
                k("s_cmp_lg_u32 s65, 1")
                k("s_cbranch_scc1 L_xr_ne")
                k(f"s_waitcnt vmcnt({XL})")
                stamp_mid(k, P, 3)
                k("s_barrier")
                k.label("L_xr_ne")
            else: k("s_nop 0")
    k(f"s_add_u32 s60, s60, {XSTG}")
    k(f"s_cmp_eq_u32 s60, {3*XSTG}")
    k("s_cselect_b32 s60, 0, s60")
    k("s_add_u32 s65, s65, 1")
    k("s_cmp_le_u32 s65, 2")
    k("s_cbranch_scc1 L_xr_lloop")
    k("s_waitcnt vmcnt(12)")
    k("s_barrier")
    k("s_cmp_lt_u32 s65, 10")
    k("s_cbranch_scc1 L_xr_lloop")
    k("s_waitcnt vmcnt(0)")
    k("s_barrier")
    srd(k, 44, 24, WS_BYTES)
    k("s_lshl_b32 s52, s4, 5")
    k("v_add_u32 v16, s52, v0")
    k(f"v_lshlrev_b32 v16, {FS}, v16")
    k(f"v_add_u32 v16, {SYNC2_OFF}, v16")
    k("v_mov_b32 v17, v16")
    k("s_lshl_b32 s75, s5, 2")
    k("s_add_u32 s75, s75, 96")
    k("s_mov_b32 s74, -1")
    k("s_mov_b32 s53, 4")
    k("s_cmp_lg_u32 s3, 5")
    k("s_cbranch_scc1 L_c_ld")
    k("s_mov_b32 exec_hi, 0")
    gather(k, P, "v19", "v16")
    k("s_mov_b64 exec, -1")
    k("s_branch L_c_ld")
    k.label("L_xr_cons")
    VXR = 4; VUR = 6; VXC = 10; VUC = 12; VO2 = 16
    XACC = 128
    k("s_and_b32 s61, s62, 1")
    k("s_lshr_b32 s63, s62, 1")
    k("v_and_b32 v28, 15, v0")
    k("v_lshrrev_b32 v31, 4, v0")
    k("v_bfe_u32 v29, v0, 1, 3")
    k("v_xor_b32 v29, v29, v31")
    k("v_lshlrev_b32 v29, 4, v29")
    k("v_lshl_add_u32 v28, v28, 7, v29")
    k("s_lshl_b32 s52, s61, 14")
    k(f"v_add_u32 v{VXR}, s52, v28")
    k(f"v_xor_b32 v{VXR+1}, 64, v{VXR}")
    k("v_bfe_u32 v29, v0, 2, 2")
    k("v_lshl_add_u32 v28, v31, 3, v29")
    k("v_lshlrev_b32 v28, 8, v28")
    k("v_bfe_u32 v29, v0, 2, 3")
    k("s_lshl_b32 s52, s63, 2")
    k("v_xor_b32 v29, s52, v29")
    k("v_lshl_add_u32 v28, v29, 5, v28")
    k("v_and_b32 v29, 3, v0")
    k("v_lshl_add_u32 v28, v29, 3, v28")
    k(f"v_add_u32 v{VUR}, 32768, v28")
    for eb in range(1, 4): k(f"v_xor_b32 v{VUR+eb}, {32*eb}, v{VUR}")
    k("s_lshl_b32 s54, s4, 1")
    k("s_add_u32 s54, s54, s61")
    k("s_mul_i32 s52, s54, 163840")
    k(f"s_add_u32 s52, s52, {XRF_OFF}")
    k("s_lshl_b32 s53, s5, 1")
    k("s_add_u32 s53, s53, s63")
    k("s_lshl_b32 s53, s53, 14")
    k("s_add_u32 s52, s52, s53")
    k("v_and_b32 v28, 15, v0")
    k("v_bfe_u32 v29, v0, 4, 1")
    k("v_lshl_add_u32 v28, v29, 5, v28")
    k("v_lshrrev_b32 v29, 5, v0")
    k("v_lshl_add_u32 v28, v29, 4, v28")
    k(f"v_lshl_add_u32 v{VO2}, v28, 4, s52")
    k("s_mov_b32 s68, 4096"); k("s_mov_b32 s69, 8192"); k("s_mov_b32 s70, 12288")
    for i in range(128): k(f"v_mov_b32 v{XACC+i}, 0")
    k("s_waitcnt lgkmcnt(0)")
    srd(k, 44, 24, WS_BYTES)
    FB = [32, 80]
    def acc(eb, mb): return XACC + (mb * 4 + eb) * 4
    def ureads(ks, dst, va):
        return [f"ds_read_b64_tr_b16 v[{dst+eb*4+sec*2}:{dst+eb*4+sec*2+1}], v{va+eb} offset:{(32*ks + 4*sec)*256}" for eb in range(4) for sec in range(2)]
    def xr_reads(ks, buf):
        f = FB[buf]
        return ureads(ks, f + 32, VUC) + [f"ds_read_b128 v[{f+mb*4}:{f+mb*4+3}], v{VXC+ks} offset:{mb*2048}" for mb in range(8)]
    def newstage():
        return [f"v_add_u32 v{VXC+ks}, s64, v{VXR+ks}" for ks in range(2)] + [f"v_add_u32 v{VUC+eb}, s64, v{VUR+eb}" for eb in range(4)] + \
               [f"s_add_u32 s64, s64, {XSTG}", f"s_cmp_eq_u32 s64, {3*XSTG}", "s_cselect_b32 s64, 0, s64"]
    def mf(a, u, x): return f"v_mfma_f32_16x16x32_bf16 v[{a}:{a+3}], v[{u}:{u+3}], v[{x}:{x+3}], v[{a}:{a+3}]"
    def mfmas(buf, fill):
        f = FB[buf]
        for mb in range(8):
            for eb in range(4):
                k(mf(acc(eb, mb), f + 32 + eb * 4, f + mb * 4))
                if fill: k(fill.pop(0))
        assert not fill
    k("s_mov_b32 s64, 0")
    k("s_mov_b32 s65, 0")
    for x in newstage(): k(x)
    k("s_barrier")
    for x in xr_reads(0, 0): k(x)
    k.label("L_xr_cloop")
    k("s_waitcnt lgkmcnt(0)")
    mfmas(0, xr_reads(1, 1) + newstage() + ["s_add_u32 s65, s65, 1", "s_cmp_eq_u32 s65, 8"])
    k("s_waitcnt lgkmcnt(0)")
    k("s_barrier")
    k("s_cbranch_scc1 L_xr_tail")
    mfmas(1, xr_reads(0, 0))
    k("s_branch L_xr_cloop")
    k.label("L_xr_tail")
    UF = [32, 48, 64, 80]; XB = [20, 24, 96, 100, 104, 108, 112, 116]; OT = 120
    q = []
    def lds(s_, tag): k(s_); q.append(tag)
    def ur(t): return ureads(t & 1, UF[t], VUC if t < 2 else VUR)
    def xread(n):
        mb, t = n // 4, n % 4
        r = XB[n % 8]
        return f"ds_read_b128 v[{r}:{r+3}], v{(VXC if t < 2 else VXR) + (t & 1)} offset:{mb*2048}"
    pre = [(x, ("u", 0)) for x in ur(0)] + [(xread(0), ("x", 0))] + [(x, ("u", 1)) for x in ur(1)] + [(xread(1), ("x", 1))]
    f = FB[1]; n = 0
    for mb in range(8):
        for eb in range(4):
            k(mf(acc(eb, mb), f + 32 + eb * 4, f + mb * 4))
            if pre: lds(*pre.pop(0))
            n += 1
            if n == 20:
                k("s_barrier")
                pre = [(x, ("u", 2)) for x in ur(2)]
    assert not pre
    outq = []; osel = [0]
    def out_instrs(mb):
        r = []
        for p in range(2):
            t = OT + osel[0] * 4; osel[0] ^= 1
            a0 = acc(2 * p, mb); a1 = acc(2 * p + 1, mb)
            so = ["0", "s68", "s69", "s70"][2 * p + (mb >> 2)]
            r.append([f"v_cvt_pk_bf16_f32 v{t}, v{a0}, v{a0+1}", f"v_cvt_pk_bf16_f32 v{t+1}, v{a0+2}, v{a0+3}",
                      f"v_cvt_pk_bf16_f32 v{t+2}, v{a1}, v{a1+1}", f"v_cvt_pk_bf16_f32 v{t+3}, v{a1+2}, v{a1+3}",
                      "s_nop 1", f"v_permlane16_swap_b32 v{t}, v{t+2}", f"v_permlane16_swap_b32 v{t+1}, v{t+3}",
                      f"buffer_store_dwordx4 v[{t}:{t+3}], v{VO2}, s[44:47], {so} offen offset:{(mb & 3)*1024} sc1"])
        return r
    nx = 2
    for n in range(32):
        mb, t = n // 4, n % 4
        if n == 0:
            lds(xread(2), ("x", 2)); nx = 3
            for x in ur(3): lds(x, ("u", 3))
        while nx < 32 and nx <= n + 5: lds(xread(nx), ("x", nx)); nx += 1
        need = max(i for i, tg in enumerate(q) if tg == ("x", n) or (mb == 0 and tg == ("u", t)))
        k(f"s_waitcnt lgkmcnt({min(15, len(q) - 1 - need)})")
        o = outq.pop(0) if (t >= 2 and outq) else []
        for eb in range(4):
            k(mf(acc(eb, mb), UF[t] + eb * 4, XB[n % 8]))
            if o: k(o.pop(0))
        while o: k(o.pop(0))
        if t == 3: outq = out_instrs(mb)
    stamp_mid(k, P, 0)
    k("s_nop 7")
    while outq:
        for x in outq.pop(0): k(x)
    k("s_barrier")

def mtmask(t):
    m = 0
    for eb in range(4 * t, 4 * t + 4):
        g, r = eb >> 3, eb & 7
        if g == 4: mt = 2 * (r >> 1) + 1
        else: mt = 2 * g + (1 if 3 <= r < 6 else 0)
        m |= 1 << mt
    return m

def c_ids(k):
    k("s_and_b32 s52, s2, 7")
    k("s_lshr_b32 s54, s2, 3")
    k("s_lshr_b32 s4, s52, 1")
    k("s_lshl_b32 s4, s4, 2")
    k("s_and_b32 s55, s54, 3")
    k("s_add_u32 s4, s4, s55")
    k("s_and_b32 s5, s52, 1")
    k("s_lshl_b32 s5, s5, 3")
    k("s_lshr_b32 s54, s54, 2")
    k("s_add_u32 s5, s5, s54")

def phase_c(k, P):
    NX = P.get("NX", 4); NW = P.get("NW", 4)
    XR = 0; WR = NX * 16384; STG = WR + NW * 14336
    assert STG + 30720 <= LCNT and STG <= 124 * 1024 and 144 * 1024 <= STG + 30720
    order = P.get("corder", list(range(10)))
    k.label("L_c_cons")
    arrive(k)
    k.label("L_c_cons2")
    stamp_mid(k, P, 1)
    c_ids(k)
    VXR = 4; VWR = 5; VXC = 6; VWC = 7; VEW = 8; VER = 9; VST = 10
    ACC = 24; FR = 80; VRD = 152
    k("s_lshl_b32 s52, s3, 11")
    k(f"v_lshl_add_u32 v{VXR}, v0, 4, s52")
    k(f"v_lshlrev_b32 v{VWR}, 4, v0")
    k(f"v_add_u32 v{VWR}, {WR}, v{VWR}")
    for i in range(56): k(f"v_mov_b32 v{ACC+i}, 0")
    k("s_mul_i32 s52, s3, 7680")
    k(f"s_add_u32 s52, s52, {STG}")
    k("v_and_b32 v18, 15, v0")
    k("v_mul_u32_u24 v18, 240, v18")
    k("v_lshrrev_b32 v19, 4, v0")
    k("v_lshl_add_u32 v20, v19, 4, v18")
    k(f"v_add_u32 v{VEW}, s52, v20")
    k("v_lshl_add_u32 v20, v19, 3, v18")
    k(f"v_add_u32 v{VER}, s52, v20")
    k(f"s_mov_b32 s53, {magic(14)}")
    k("s_lshl_b32 s54, s4, 2")
    k("s_add_u32 s54, s54, s3")
    k(f"s_mul_i32 s54, s54, {32*3456}")
    k("s_mul_i32 s55, s5, 224")
    k("s_add_u32 s54, s54, s55")
    k("s_sub_u32 s55, 3456, s55")
    k("v_mov_b32 v23, 0x7fffffff")
    for i in range(7):
        k(f"v_add_u32 v18, {64*i}, v0")
        k("v_mul_hi_u32 v19, v18, s53")
        k("v_mul_u32_u24 v20, 14, v19")
        k("v_sub_u32 v18, v18, v20")
        k("v_lshlrev_b32 v18, 4, v18")
        k("v_cmp_gt_u32 vcc, s55, v18")
        k("v_mul_u32_u24 v20, 240, v19")
        k(f"v_add3_u32 v{VRD+i}, v20, v18, s52")
        k("v_mul_u32_u24 v20, 3456, v19")
        k(f"v_add3_u32 v{VST+i}, v20, v18, s54")
        k(f"v_cndmask_b32 v{VST+i}, v23, v{VST+i}, vcc")
    srd(k, 28, 20, 2048 * 1728 * 2)
    k("s_mov_b32 s56, 0"); k("s_mov_b32 s57, 0")
    def newstage():
        return [f"v_add_u32 v{VXC}, s56, v{VXR}", f"v_add_u32 v{VWC}, s57, v{VWR}"]
    def advance():
        return ["s_add_u32 s56, s56, 16384", f"s_cmp_eq_u32 s56, {NX*16384}",
                "s_cselect_b32 s56, 0, s56", "s_add_u32 s57, s57, 14336", f"s_cmp_eq_u32 s57, {NW*14336}", "s_cselect_b32 s57, 0, s57"]
    def reads(ks):
        f = FR + ks * 36
        out = [f"ds_read_b128 v[{f+28+u*4}:{f+31+u*4}], v{VXC} offset:{XR + u*1024 + ks*8192}" for u in range(0 if P.get("ab_noxr") else 2)]
        return out + [f"ds_read_b128 v[{f+b*4}:{f+b*4+3}], v{VWC} offset:{ks*7168 + b*1024}" for b in range(7)]
    RLX = P.get("rlx", 1)
    def mfmas(ks, fill, waits):
        f = FR + ks * 36; issued = 0
        rd = [x for x in fill if x.startswith("ds_")]; ot = [x for x in fill if not x.startswith("ds_")]
        slots = P.get("rs", [0, 1, 2, 4, 5, 7, 8, 10, 11]) if RLX else list(range(9))
        last = None
        for b in range(7):
            for u in range(2):
                i = 2 * b + u
                if waits and u == 0:
                    n = min(15, 6 - b + issued)
                    if not (RLX and b >= 1 and b != P.get("wb", 3) and rd is not None and len(fill)):
                        k(f"s_waitcnt lgkmcnt({n if not (RLX and len(fill)) else (7 - P.get('wb', 3) if b == 0 else issued)})")
                a = ACC + (u * 7 + b) * 4
                k(f"v_mfma_f32_16x16x32_bf16 v[{a}:{a+3}], v[{f+b*4}:{f+b*4+3}], v[{f+28+u*4}:{f+31+u*4}], v[{a}:{a+3}]")
                if rd and i in slots:
                    k(rd.pop(0)); issued += 1
                elif ot and (not ot[0].startswith("v_add") or not rd):
                    k(ot.pop(0))
                    if ot and not rd: k(ot.pop(0))
        assert not rd
        while ot: k(ot.pop(0))
    for x in newstage() + advance(): k(x)
    k("s_mov_b32 s65, 0")
    k("s_barrier")
    stamp_mid(k, P, 2)
    for x in reads(0): k(x)
    k.label("L_c_cloop")
    mfmas(0, reads(1) + ["s_add_u32 s65, s65, 1", "s_cmp_eq_u32 s65, 10"] + newstage(), True)
    k("s_cbranch_scc1 L_c_cdone")
    if not RLX: k("s_waitcnt lgkmcnt(0)")
    k("s_barrier")
    mfmas(1, reads(0) + advance(), bool(RLX))
    k("s_branch L_c_cloop")
    k.label("L_c_cdone")
    mfmas(1, [], True)
    stamp_mid(k, P, 3)
    k("s_nop 4")
    for p in range(4):
        for u in range(2):
            t = FR + (p * 2 + u) * 4
            a0 = ACC + (u * 7 + 2 * p) * 4; a1 = a0 + 4
            k(f"v_cvt_pk_bf16_f32 v{t}, v{a0}, v{a0+1}")
            k(f"v_cvt_pk_bf16_f32 v{t+1}, v{a0+2}, v{a0+3}")
            if p < 3:
                k(f"v_cvt_pk_bf16_f32 v{t+2}, v{a1}, v{a1+1}")
                k(f"v_cvt_pk_bf16_f32 v{t+3}, v{a1+2}, v{a1+3}")
                k(f"ds_write_b128 v{VEW}, v[{t}:{t+3}] offset:{u*16*240 + p*64}")
            else:
                k(f"ds_write_b64 v{VER}, v[{t}:{t+1}] offset:{u*16*240 + 192}")
    for i in range(7): k(f"ds_read_b128 v[{ACC+i*4}:{ACC+i*4+3}], v{VRD+i}")
    for i in range(7):
        k(f"s_waitcnt lgkmcnt({6-i})")
        k(f"buffer_store_dwordx4 v[{ACC+i*4}:{ACC+i*4+3}], v{VST+i}, s[28:31], 0 offen {P.get('k2_stflags', '')}")
    stamp_end(k, P, 0, 44, 112, 3)
    k("s_endpgm")
    k.label("L_c_ld")
    c_ids(k)
    k("s_and_b32 s62, s3, 1")
    k("s_lshl_b32 s52, s4, 4")
    k("s_add_u32 s52, s52, s5")
    k(f"s_lshl_b32 s52, s52, {FS}")
    k(f"s_add_u32 s52, s52, {SYNC2_OFF}")
    k("v_lshl_add_u32 v8, v0, 2, s52")
    k("s_mov_b32 s63, 0")
    k("s_cmp_ge_u32 s3, 6")
    k("s_cbranch_scc1 L_c_xl")
    k("s_mul_i32 s52, s5, 7")
    k("s_add_u32 s54, s52, 6")
    k("s_lshr_b32 s52, s52, 2")
    k("s_lshr_b32 s54, s54, 2")
    k("s_min_u32 s54, s54, 26")
    k("s_sub_u32 s52, s54, s52")
    k("s_mov_b32 s66, 1")
    k("s_cmp_ge_u32 s52, 1")
    k("s_cselect_b32 s66, 0x101, s66")
    k("s_cmp_ge_u32 s52, 2")
    k("s_cselect_b32 s66, 0x10101, s66")
    k("s_mul_i32 s52, s5, 143360")
    k(f"s_add_u32 s52, s52, {WVF_OFF}")
    k("s_mul_i32 s55, s62, 7168")
    k("s_add_u32 s52, s52, s55")
    k("v_lshl_add_u32 v4, v0, 4, s52")
    k("v_add_u32 v5, 4096, v4")
    k("v_mov_b32 v6, v4")
    k("s_cmp_lg_u32 s5, 15")
    k("s_cbranch_scc1 L_c_nt15")
    k("v_mov_b32 v5, 0x7fffffff")
    k("v_and_b32 v7, 8, v0")
    k("v_cmp_eq_u32 vcc, 0, v7")
    k("s_nop 1")
    k("v_cndmask_b32 v6, v5, v4, vcc")
    k.label("L_c_nt15")
    k(f"s_add_u32 s55, s55, {WR}")
    k("s_barrier")
    k("s_cmp_lg_u32 s3, 5")
    k("s_cbranch_scc1 L_c_nopush")
    k("s_cmp_eq_u32 s74, 0")
    k("s_cbranch_scc1 L_c_nopush")
    k("s_waitcnt vmcnt(0)")
    k(f"v_add_u32 v19, {TAGC}, v19")
    k("s_mov_b32 exec_lo, s74")
    k("s_mov_b32 exec_hi, 0")
    lds_wait(k, "L_c_own", "s53")
    push(k, P, "v19", "v17", "s75")
    k("s_mov_b64 exec, -1")
    stamp_mid(k, P, 0)
    k("s_branch L_c_pushed")
    k.label("L_c_nopush")
    lds_wait(k, "L_c_own4", "s53", sleep=1)
    k.label("L_c_pushed")
    if P.get("ps2", 8): k(f"s_sleep {P.get('ps2', 8)}")
    def run(name, N, per, prep, fire, init, fin=None):
        vm = VM(); ni = 0
        def both(i):
            prep(i); k("s_nop 0"); fire(i)
            for _ in range(per): vm.issue(i)
        for _ in range(init): both(ni); ni += 1
        stamp_mid(k, P, 1)
        for b in range(10):
            lim = min(9, max(N - 1, b - 1 - P.get("rlx", 1) + N))
            todo = list(range(ni, lim + 1))[:1]
            if todo: prep(todo[0])
            k(f"s_waitcnt vmcnt({vm.wait_for(lambda t: t <= b)})")
            k("s_barrier")
            if todo:
                fire(todo[0])
                for _ in range(per): vm.issue(todo[0])
                ni += 1
        assert ni == 10
        if fin: fin()
        if P.get("stamp"):
            k("s_and_b32 s62, s3, 3")
            stamp_end(k, P, 2, 44, 32, 62)
        k("s_endpgm")
    def prepW(i):
        k(f"s_mul_i32 s76, s66, {mtmask(order[i])}")
        ensure(k)
        k(f"s_mov_b32 s58, {order[i]*14336}")
        k(f"s_add_u32 m0, s55, {(i % NW)*14336}")
    def fireW(i):
        if P.get("ab_nowd"): return
        for j in range(4): k(f"buffer_load_dwordx4 v{4 if j < 2 else 6}, s[44:47], s58 offen offset:{j*1024} sc1 lds")
        k("s_add_u32 m0, m0, 4096")
        k("s_nop 0")
        for j in range(3): k(f"buffer_load_dwordx4 v5, s[44:47], s58 offen offset:{j*1024} sc1 lds")
    def finW():
        k("s_cmp_lg_u32 s3, 4")
        k("s_cbranch_scc1 L_c_nobump")
        bump(k)
        k.label("L_c_nobump")
    run("L_c_w", NW, 7, prepW, fireW, P.get("W0", 4), finW)
    k.label("L_c_xl")
    k("s_mul_i32 s52, s4, 163840")
    k(f"s_add_u32 s52, s52, {XRF_OFF}")
    k("s_lshl_b32 s55, s62, 13")
    k("s_add_u32 s52, s52, s55")
    k("v_lshl_add_u32 v4, v0, 4, s52")
    k("v_add_u32 v5, 4096, v4")
    k("s_barrier")
    if P.get("xhold", 1): lds_wait(k, "L_c_xh", "s53", sleep=1)
    def prepX(i):
        if i == 0 or order[i] // 2 != order[i - 1] // 2:
            k(f"s_mov_b32 s76, {1 << (24 + order[i] // 2)}")
            ensure(k)
        k(f"s_mov_b32 s58, {order[i]*16384}")
        k(f"s_add_u32 m0, s55, {XR + (i % NX)*16384}")
    def fireX(i):
        if P.get("ab_noxd"): return
        for j in range(4): k(f"buffer_load_dwordx4 v4, s[44:47], s58 offen offset:{j*1024} sc1 lds")
        k("s_add_u32 m0, m0, 4096")
        k("s_nop 0")
        for j in range(4): k(f"buffer_load_dwordx4 v5, s[44:47], s58 offen offset:{j*1024} sc1 lds")
    run("L_c_x", NX, 8, prepX, fireX, P.get("X0", NX))

def gen(P):
    uid[0] = 0
    P = dict(P)
    for kk_, v in (("tlb", 0), ("X0", 2), ("xfirst", 0), ("pm", "atom"), ("wm", "atom"), ("ps", 0), ("ps2", 0), ("cp", 0), ("W0", 2), ("dualW", 0)): P.setdefault(kk_, v)

    k = K(KNAME)
    k("s_cmp_ge_u32 s2, 256")
    k("s_cbranch_scc1 L_end")
    k("s_load_dwordx16 s[8:23], s[0:1], 0")
    k("s_load_dwordx2 s[24:25], s[0:1], 64")
    stamp_begin(k, P)
    k("s_getpc_b64 s[40:41]")
    k.label("L_pc0")
    k("v_subrev_u32 v4, 504, v0")
    k("v_cmp_gt_u32 vcc, 8, v4")
    k("s_and_saveexec_b64 s[44:45], vcc")
    k("s_cbranch_execz L_noipf")
    k("s_and_b32 s41, s41, 0xffff")
    k("s_mov_b32 s42, L_end - L_pc0")
    k("s_mov_b32 s43, 0x00020000")
    k("s_and_b32 s46, s2, 0xf8")
    k("v_add_lshl_u32 v4, s46, v4, 7")
    k("buffer_load_dword v200, v4, s[40:43], 0 offen")
    k.label("L_noipf")
    k("s_mov_b64 exec, -1")
    k("v_lshrrev_b32 v1, 6, v0")
    k(f"v_mov_b32 v2, {LCNT}")
    k("v_mov_b32 v3, 0")
    k("v_readfirstlane_b32 s3, v1")
    k("ds_write2_b32 v2, v3, v3 offset0:0 offset1:1")
    k("v_and_b32 v0, 63, v0")
    k("s_bfe_u32 s4, s2, 0x10002")
    k("s_and_b32 s5, s2, 3")
    k("s_lshr_b32 s6, s2, 3")
    nwv = NWV[P.get("xrx", 2)]
    base = [sum(nwv[:j]) for j in range(4)]
    xbase = [sum(32 - n for n in nwv[:j]) for j in range(4)]
    pk = lambda v: hex(sum(x << (8 * j) for j, x in enumerate(v)))
    k("s_lshl_b32 s7, s5, 3")
    k(f"s_lshr_b32 s52, {pk(nwv)}, s7")
    k("s_and_b32 s52, s52, 0xff")
    k(f"s_lshr_b32 s53, {pk(base)}, s7")
    k("s_and_b32 s53, s53, 0xff")
    kx = K("x")
    kx(f"s_lshr_b32 s53, {pk(xbase)}, s7")
    kx("s_and_b32 s53, s53, 0xff")
    kx("s_sub_u32 s6, s6, s52")
    kx("s_add_u32 s6, s6, s53")
    kx(f"s_mul_hi_u32 s60, s6, {magic(5)}")
    kx("s_mul_i32 s5, s60, 5")
    kx("s_sub_u32 s5, s6, s5")
    kx("s_lshl_b32 s4, s4, 2")
    kx("s_add_u32 s4, s4, s60")
    kx("s_add_u32 s50, s60, s5")
    kx("s_and_b32 s50, s50, 3")
    xr_role(kx, P)
    i0 = kx.lines.index("L_xr_cons:")
    k("s_cmp_ge_u32 s6, s52")
    if P.get("xfirst", 1):
        k("s_cbranch_scc0 L_wv")
        k.lines += kx.lines[:i0]
        k.label("L_wv")
    else:
        k("s_cbranch_scc1 L_xr")
    k("s_add_u32 s53, s53, s6")
    k("s_and_b32 s60, s53, 3")
    k("s_lshl_b32 s4, s4, 2")
    k("s_add_u32 s4, s4, s60")
    k("s_lshr_b32 s5, s53, 2")
    wv_role(k, P)
    poll_sub(k, P)
    if not P.get("xfirst", 1):
        k.label("L_xr")
        k.lines += kx.lines[:i0]
    k.lines += kx.lines[i0:]
    phase_c(k, P)
    return finish(k)

def finish(k):
    k.label("L_end")
    k("s_endpgm")
    src = "; QuIP weight-only int4 layer: y = (x@U) @ (dequant(qw)@V), one fused launch (generated by dev/gen9.py)\n"
    src += "; @launch grid=(256,1,1) block=(512,1,1) lds=163840\n" + HEADER + k.text()
    src += '.section .rodata,"a"\n' + desc(KNAME, 256, 102, 256)
    return src

def is_wv(b, P):
    import numpy as np
    return (b >> 3) < np.array(NWV[P.get("xrx", 2)])[b & 3]
def is_xr(b, P):
    return ~is_wv(b, P)

if __name__ == "__main__":
    import json
    P = json.loads(sys.argv[2]) if len(sys.argv) > 2 else {}
    open(sys.argv[1], "w").write(gen(P))
```

```python
import sys
from asmlib import *
from gen import magic, VM, stamp_begin, stamp_mid, stamp_end, STAMP_OFF
from gen4 import xr_orders
SYNC_OFF = 0; SYNC2_OFF = 0x10000
AQ_OFF = 0x20000
WVF_OFF = 0x240000
XRF_OFF = 0x480000
WS_BYTES = 0x1000000
TAGC = 0x5bd1e995
LCNT = 163840 - 64
NWV = {2: [32, 32, 32, 12], 4: [32, 32, 22, 22], 8: [27, 27, 27, 27]}
XSTG = 49152
SPIN_MAX = 1 << 19
FS = 8
KNAME = "standalone__weight_only_int_quip__prompt_kernel"

def poll_loop(k, name, load, cmp_lines, sleep=0, wait="vmcnt(0)"):
    k("s_mov_b32 s80, 0")
    k.label(name)
    if sleep: k(f"s_sleep {sleep}")
    k(load)
    k("s_add_u32 s80, s80, 1")
    k(f"s_cmp_ge_u32 s80, {SPIN_MAX}")
    k(f"s_cbranch_scc1 {name}_done")
    k(f"s_waitcnt {wait}")
    for l in cmp_lines: k(l)
    k(f"s_cbranch_scc0 {name}")
    k.label(f"{name}_done")

def lds_wait(k, name, n, sleep=0):
    poll_loop(k, name, "ds_read_b32 v30, v2", ["v_readfirstlane_b32 s52, v30", f"s_cmp_ge_u32 s52, {n}"], wait="lgkmcnt(0)", sleep=sleep)

def arrive(k):
    k("s_waitcnt vmcnt(0)")
    k("v_mov_b32 v7, 1")
    k("s_mov_b64 exec, 1")
    k("ds_add_u32 v2, v7")
    k("s_mov_b64 exec, -1")

DECODE = ["v_readlane_b32 s59, v30, 31", f"s_add_u32 s52, s59, {TAGC}", "v_cmp_eq_u32 vcc, s52, v30", "s_mov_b32 s63, vcc_lo"]

def poll_sub(k, P):
    k.label("L_poll")
    k("s_mov_b32 exec_lo, -1")
    k("s_mov_b32 exec_hi, 0")
    poll_loop(k, "L_poll_l", "v_mov_b32 v30, 0\nbuffer_atomic_or v30, v8, s[44:47], 0 offen sc0 sc1", DECODE + ["s_and_b32 s52, s63, s76", "s_cmp_eq_u32 s52, s76"])
    k("s_mov_b64 exec, -1")
    k.label("L_poll_ret")
    k("s_setpc_b64 s[78:79]")

uid = [0]
def ensure(k, sub="L_poll"):
    uid[0] += 1
    k("s_and_b32 s52, s63, s76")
    k("s_cmp_eq_u32 s52, s76")
    k(f"s_cbranch_scc1 L_ok{uid[0]}")
    k(f"s_call_b64 s[78:79], {sub}")
    k.label(f"L_ok{uid[0]}")

def gather(k, P, reg, addr):
    gm = P.get("gm", "sc1")
    if gm == "atom":
        k(f"v_mov_b32 {reg}, 0")
        k(f"buffer_atomic_or {reg}, {addr}, s[44:47], 0 offen offset:124 sc0 sc1")
    else:
        k(f"buffer_load_dword {reg}, {addr}, s[44:47], 0 offen offset:124 {gm}")

def push(k, P, data, addr, so):
    if P.get("wm") == "atom": k(f"buffer_atomic_swap {data}, {addr}, s[44:47], {so} offen sc1")
    else: k(f"buffer_store_dword {data}, {addr}, s[44:47], {so} offen sc1")

def bump(k):
    k("v_mov_b32 v30, 1")
    k("s_mov_b64 exec, 1")
    k("buffer_atomic_add v30, v8, s[44:47], 0 offen offset:124 sc1")
    k("s_mov_b64 exec, -1")

def wv_role(k, P):
    NAD = 3; NB = P.get("NB", 11); TH = P.get("th", 4)
    ARING = 0; BRING = NAD * 20480; STG = BRING + NB * 8192
    RED = 124 * 1024
    assert STG + 10240 <= LCNT and NB % 2 == 1
    for i in (25, 26): assert not (BRING + (i % NB) * 8192 < RED + 20480 and RED < BRING + (i % NB + 1) * 8192)
    k("s_lshr_b32 s53, s4, 1")
    k("s_lshl_b32 s70, s53, 3")
    k("s_add_u32 s71, s70, 6")
    k("s_lshl_b32 s52, s53, 1")
    k("s_add_u32 s52, s52, 32")
    k("s_bitcmp1_b32 s4, 0")
    k("s_cselect_b32 s71, s52, s71")
    k("s_cselect_b32 s52, 3, 0")
    k("s_add_u32 s70, s70, s52")
    k(f"s_mul_i32 s68, s5, {P.get('on', 1)}")
    k(f"s_mul_i32 s52, s60, {P.get('oa', 7)}")
    k("s_add_u32 s68, s68, s52")
    k(f"s_mul_hi_u32 s52, s68, {magic(27)}")
    k("s_mul_i32 s52, s52, 27")
    k("s_sub_u32 s68, s68, s52")
    k("s_cmp_ge_u32 s3, 5")
    k("s_cbranch_scc1 L_wv_nodq")
    k("s_add_u32 s52, s70, s3")
    k("s_add_u32 s54, s71, s3")
    k("s_sub_u32 s54, s54, 3")
    k("s_cmp_ge_u32 s3, 3")
    k("s_cselect_b32 s52, s54, s52")
    k("v_lshrrev_b32 v24, 4, v0")
    k("v_and_b32 v25, 15, v0")
    k("v_mul_u32_u24 v26, 6912, v24")
    k("v_lshl_add_u32 v4, v25, 4, v26")
    k(f"s_mul_i32 s55, s52, {16*6912}")
    k("s_lshl_b32 s54, s68, 8")
    k("s_add_u32 s55, s55, s54")
    for m in range(1, 4): k(f"s_add_u32 s{55+m}, s55, {m*4*6912}")
    k("s_lshr_b32 s52, s52, 3")
    k("s_mul_i32 s52, s52, 3456")
    k("s_lshl_b32 s54, s68, 7")
    k("s_add_u32 s52, s52, s54")
    k("v_lshlrev_b32 v8, 3, v25")
    k("s_waitcnt lgkmcnt(0)")
    srd(k, 28, 10, 640 * 1728 * 4)
    R = 32
    for m in range(4): k(f"buffer_load_dwordx4 v[{R+4*m}:{R+4*m+3}], v4, s[28:31], s{55+m} offen")
    srd(k, 36, 12, 5 * 1728 * 2)
    srd(k, 40, 14, 5 * 1728 * 2)
    k("buffer_load_dwordx2 v[10:11], v8, s[36:39], s52 offen")
    k("buffer_load_dwordx2 v[12:13], v8, s[40:43], s52 offen")
    k("s_barrier")
    srd(k, 44, 24, WS_BYTES)
    k("v_lshrrev_b32 v27, 1, v25")
    k("v_lshlrev_b32 v26, 8, v27")
    k("v_and_b32 v28, 1, v25")
    k("v_lshl_add_u32 v26, v28, 3, v26")
    k("s_lshl_b32 s52, s3, 11")
    k(f"s_add_u32 s52, s52, {STG}")
    k("v_add_u32 v26, s52, v26")
    k("v_xor_b32 v27, v27, v24")
    k("v_lshl_add_u32 v4, v27, 4, v26")
    k("v_xor_b32 v5, 64, v4")
    k("v_xor_b32 v28, v0, v24")
    k("v_lshl_add_u32 v28, v28, 4, s52")
    k("v_xor_b32 v29, 64, v28")
    k("s_mul_i32 s52, s4, 27")
    k("s_add_u32 s52, s52, s68")
    k("s_mul_i32 s52, s52, 10240")
    k("s_lshl_b32 s54, s3, 10")
    k("s_add_u32 s52, s52, s54")
    k(f"s_add_u32 s55, s52, {AQ_OFF}")
    k("s_add_u32 s54, s55, 5120")
    k("v_lshlrev_b32 v9, 4, v0")
    k("s_waitcnt vmcnt(0)")
    for i in range(2):
        k(f"v_lshlrev_b32 v{14+2*i}, 16, v{10+i}"); k(f"v_and_b32 v{15+2*i}, 0xffff0000, v{10+i}")
        k(f"v_lshlrev_b32 v{18+2*i}, 16, v{12+i}"); k(f"v_and_b32 v{19+2*i}, 0xffff0000, v{12+i}")
    for i in range(4): k(f"v_mul_f32 v{18+i}, -v{18+i}, v{14+i}")
    for m in range(4):
        r = R + 4 * m
        for i in range(4): k(f"v_cvt_f32_i32 v{r+i}, v{r+i}")
        for i in range(4): k(f"v_fma_f32 v{r+i}, v{r+i}, v{14+i}, v{18+i}")
        k(f"v_cvt_pk_bf16_f32 v{r}, v{r}, v{r+1}")
        k(f"v_cvt_pk_bf16_f32 v{r+1}, v{r+2}, v{r+3}")
        k(f"ds_write_b64 v{4+(m&1)}, v[{r}:{r+1}] offset:{(m>>1)*128}")
    k("ds_read_b128 v[48:51], v28")
    k("ds_read_b128 v[52:55], v29 offset:1024")
    k("s_waitcnt lgkmcnt(1)")
    k("buffer_store_dwordx4 v[48:51], v9, s[44:47], s55 offen sc1")
    k("s_waitcnt lgkmcnt(0)")
    k("buffer_store_dwordx4 v[52:55], v9, s[44:47], s54 offen sc1")
    arrive(k)
    k("s_cmp_lt_u32 s3, 4")
    k("s_cbranch_scc1 L_wv_cons")
    k("s_branch L_wv_ld")
    k.label("L_wv_nodq")
    k("s_waitcnt lgkmcnt(0)")
    k("s_barrier")
    srd(k, 44, 24, WS_BYTES)
    k.label("L_wv_ld")
    VB = 12
    k("s_and_b32 s62, s3, 1")
    k("s_bfe_u32 s61, s3, 0x10001")
    k("v_lshrrev_b32 v24, 3, v0")
    k("v_and_b32 v25, 7, v0")
    k("v_mul_u32_u24 v26, 3456, v24")
    k("v_bfe_u32 v27, v0, 4, 1")
    k("v_lshlrev_b32 v27, 1, v27")
    k("v_xor_b32 v27, v25, v27")
    k("v_lshl_add_u32 v26, v27, 4, v26")
    k(f"s_mul_i32 s52, s62, {32*3456}")
    k("s_lshl_b32 s54, s5, 7")
    k("s_add_u32 s52, s52, s54")
    k(f"v_add_u32 v{VB}, s52, v26")
    k(f"v_xor_b32 v{VB+1}, 64, v{VB}")
    k(f"v_add_u32 v{VB+1}, {8*3456}, v{VB+1}")
    k(f"v_add_u32 v{VB+2}, {16*3456}, v{VB}")
    k(f"v_add_u32 v{VB+3}, {16*3456}, v{VB+1}")
    k("s_lshl_b32 s66, s62, 12")
    k(f"s_add_u32 s66, s66, {BRING}")
    srd(k, 32, 18, 1728 * 1728 * 2)
    def fireB():
        for n in range(4):
            k(f"buffer_load_dwordx4 v{VB+n}, s[32:35], s58 offen lds")
            if n < 3:
                k("s_add_u32 m0, m0, 1024"); k("s_nop 0")
    k("s_cmp_eq_u32 s61, 0")
    k("s_cbranch_scc1 L_wv_nopre")
    k("s_mov_b32 s57, s68")
    k("s_mov_b32 s56, s66")
    k("s_mov_b32 s65, 0")
    def xprefetch(skip):
        XRX = P.get("xrx", 2)
        nw = NWV[XRX][3]; nmx = (32 - nw) // 5; H = 2 * nw
        xi = 0 if P.get("xpu") else nmx * 4; per = xi + 10
        S0 = P["xpf"]; total = (P.get("xpe", 10) - S0) * per
        k(f"s_cmp_lt_u32 s7, {8 * (4 - XRX // 2)}")
        k(f"s_cbranch_scc1 {skip}")
        srd(k, 36, 8, 2048 * 640 * 2)
        srd(k, 40, 16, 640 * 640 * 2)
        k("s_lshr_b32 s52, s7, 3")
        k(f"s_sub_u32 s52, s52, {4 - XRX // 2}")
        k(f"s_mul_i32 s52, s52, {256 * nmx * 1280}")
        k("s_lshr_b32 s53, s4, 2")
        k(f"s_mul_i32 s53, s53, {1024 * 1280}")
        k("s_add_u32 s72, s52, s53")
        k("v_mul_u32_u24 v20, 1280, v0")
        k("v_lshlrev_b32 v21, 7, v0")
        k("s_lshl_b32 s73, s6, 1")
        k("s_add_u32 s73, s73, s62")
        k.label("L_wv_pf")
        k(f"s_mul_hi_u32 s52, s73, {magic(per)}")
        k(f"s_mul_i32 s53, s52, {per}")
        k("s_sub_u32 s53, s73, s53")
        k(f"s_add_u32 s52, s52, {S0}")
        k(f"s_cmp_ge_u32 s53, {xi}")
        k("s_cbranch_scc1 L_wv_pfu")
        k(f"s_mul_i32 s53, s53, {64*1280}")
        k("s_lshl_b32 s52, s52, 7")
        k("s_add_u32 s52, s52, s53")
        k("s_add_u32 s52, s52, s72")
        k("buffer_load_dword v201, v20, s[36:39], s52 offen")
        k("s_branch L_wv_pfn")
        k.label("L_wv_pfu")
        k("s_mul_i32 s52, s52, 10")
        k("s_add_u32 s52, s52, s53")
        k(f"s_sub_u32 s52, s52, {xi}")
        k("s_lshl_b32 s52, s52, 13")
        k("buffer_load_dword v201, v21, s[40:43], s52 offen")
        k.label("L_wv_pfn")
        k(f"s_add_u32 s73, s73, {H}")
        k(f"s_cmp_lt_u32 s73, {total}")
        k(f"s_waitcnt vmcnt({P.get('pth', 1)})")
        k("s_cbranch_scc1 L_wv_pf")
    if P.get("xpf") is not None and not P.get("xpa"): xprefetch("L_wv_pre")
    k.label("L_wv_pre")
    k("s_mov_b32 m0, s56")
    k(f"s_mul_i32 s58, s57, {64*3456}")
    fireB()
    k("s_add_u32 s57, s57, 1")
    k("s_cmp_eq_u32 s57, 27")
    k("s_cselect_b32 s57, 0, s57")
    k("s_add_u32 s56, s56, 8192")
    k("s_add_u32 s65, s65, 1")
    k(f"s_cmp_ge_u32 s65, {P.get('n1', 6)}")
    k("s_cbranch_scc1 L_wv_pre2")
    k(f"s_waitcnt vmcnt({TH})")
    k.label("L_wv_pre2")
    k(f"s_cmp_lt_u32 s65, {NB}")
    k("s_cbranch_scc1 L_wv_pre")
    if P.get("xpf") is not None and P.get("xpa"): xprefetch("L_wv_nopre")
    k.label("L_wv_nopre")
    k(f"s_mul_i32 s52, s4, {27 << FS}")
    k(f"s_add_u32 s52, s52, {SYNC_OFF}")
    k(f"v_lshl_add_u32 v6, v0, {FS}, s52")
    k(f"s_lshl_b32 s53, s5, {FS}")
    k("s_add_u32 s52, s52, s53")
    k("v_lshl_add_u32 v8, v0, 2, s52")
    k("s_lshl_b32 s52, s5, 2")
    k(f"s_mul_hi_u32 s72, s52, {magic(7)}")
    k("s_add_u32 s52, s52, 3")
    k(f"s_mul_hi_u32 s73, s52, {magic(7)}")
    k("s_cmp_eq_u32 s72, s73")
    k("s_cselect_b32 s74, 0xffff, -1")
    k("v_bfe_u32 v18, v0, 4, 1")
    k("v_add_u32 v18, s72, v18")
    k("v_and_b32 v16, 15, v0")
    k("v_lshl_add_u32 v16, v16, 4, v18")
    k(f"v_lshlrev_b32 v16, {FS}, v16")
    k(f"v_add_u32 v16, {SYNC2_OFF}, v16")
    k("v_mul_u32_u24 v18, 7, v18")
    k("v_lshrrev_b32 v18, 2, v18")
    k("v_sub_u32 v18, s5, v18")
    k("v_lshl_add_u32 v17, v18, 5, v16")
    k("s_lshl_b32 s75, s4, 2")
    k("s_cmp_lg_u32 s3, 5")
    k("s_cbranch_scc1 L_wv_go")
    k("s_lshl_b32 s53, s68, 2")
    k("s_mov_b64 exec, 0x7ffffff")
    gather(k, P, "v11", "v6")
    k("s_mov_b32 exec_lo, s74")
    gather(k, P, "v19", "v16")
    k("s_mov_b32 exec_lo, 0x7ffffff")
    k("s_waitcnt vmcnt(1)")
    k(f"v_add_u32 v11, {TAGC}, v11")
    lds_wait(k, "L_wv_own", 5)
    push(k, P, "v11", "v6", "s53")
    k("s_mov_b64 exec, -1")
    k.label("L_wv_go")
    k(f"s_mul_i32 s52, s4, {27*10240}")
    k("s_mul_i32 s55, s62, 5120")
    k("s_add_u32 s52, s52, s55")
    k(f"s_add_u32 s52, s52, {AQ_OFF}")
    k("v_lshl_add_u32 v9, v0, 4, s52")
    k("v_add_u32 v10, 4096, v9")
    k("s_mul_i32 s52, s61, 10240")
    k("s_add_u32 s55, s55, s52")
    k("s_add_u32 s57, s68, s61")
    k("s_add_u32 s57, s57, 1")
    k("s_sub_u32 s52, s57, 27")
    k("s_cselect_b32 s57, s57, s52")
    k(f"s_add_u32 s67, s57, {NB-1}")
    k("s_sub_u32 s52, s67, 27")
    k("s_cselect_b32 s67, s67, s52")
    k("s_lshl_b32 s69, s61, 13")
    k("s_cmp_lg_u32 s3, 4")
    k("s_cbranch_scc1 L_wv_np")
    k(f"s_lshl_b64 s[76:77], 15, s57")
    k("s_lshr_b64 s[78:79], s[76:77], 27")
    k("s_or_b32 s76, s76, s78")
    k("s_and_b32 s76, s76, 0x7ffffff")
    if P.get("ps", 16): k(f"s_sleep {P.get('ps', 16)}")
    k("s_call_b64 s[78:79], L_poll")
    k("v_mov_b32 v30, s63")
    k("ds_write_b32 v2, v30 offset:4")
    k("s_branch L_wv_np2")
    k.label("L_wv_np")
    poll_loop(k, "L_wv_lm", "ds_read_b32 v30, v2 offset:4", ["v_readfirstlane_b32 s63, v30", "s_cmp_lg_u32 s63, 0"], wait="lgkmcnt(0)", sleep=1)
    k.label("L_wv_np2")
    stamp_mid(k, P, 3)
    vm = VM()
    HD = P.get("hd", 7)
    def step(reg, Dn):
        if Dn < HD:
            k(f"s_add_u32 {reg}, {reg}, 2")
        elif Dn == HD:
            k(f"s_sub_u32 {reg}, s68, s61")
            k(f"s_add_u32 {reg}, {reg}, 26")
        else:
            k(f"s_add_u32 {reg}, {reg}, 25")
        k(f"s_sub_u32 s52, {reg}, 27")
        k(f"s_cselect_b32 {reg}, {reg}, s52")
    assert HD > (NB - 1) // 2
    def prepA(D):
        k("s_lshl_b32 s76, 1, s57")
        ensure(k)
        k("s_mul_i32 s64, s57, 10240")
        step("s57", D + 1)
        k(f"s_add_u32 m0, s55, {ARING + (D % NAD)*20480}")
    def fireA(D):
        for j in range(4): k(f"buffer_load_dwordx4 v9, s[44:47], s64 offen offset:{j*1024} sc1 lds")
        k("s_add_u32 m0, m0, 4096")
        k("s_nop 0")
        k("buffer_load_dwordx4 v10, s[44:47], s64 offen sc1 lds")
        for _ in range(5): vm.issue(("A", D))
    def prepB(Db):
        k(f"s_mul_i32 s58, s67, {64*3456}")
        step("s67", Db + 1)
        k("s_add_u32 s56, s66, s69")
        k("s_add_u32 s69, s69, 16384")
        k(f"s_sub_u32 s52, s69, {NB*8192}")
        k("s_cselect_b32 s69, s69, s52")
    na = 0; nb = (NB - 1) // 2
    for _ in range(2):
        prepA(na); k("s_nop 0"); fireA(na); na += 1
    for D in range(13):
        lim = D - 1 + NAD if D >= 1 else NAD - 1
        la = [x for x in range(na, min(12, lim) + 1)][:1]
        lb = [nb] if (D >= 1 and nb <= 12 and (D not in P.get("bskip", []) or nb - D <= 2)) else []
        if lb: prepB(nb)
        if la: prepA(la[0])
        k(f"s_waitcnt vmcnt({vm.wait_for(lambda t: t[1] <= D)})")
        k("s_barrier")
        if la: fireA(la[0])
        if lb:
            k("s_mov_b32 m0, s56"); k("s_nop 0"); fireB()
            for _ in range(4): vm.issue(("B", nb))
            nb += 1
        na += len(la)
    assert na == 13 and nb >= 13
    k("s_cmp_lg_u32 s3, 4")
    k("s_cbranch_scc1 L_wv_nobump")
    bump(k)
    k.label("L_wv_nobump")
    k("s_mov_b32 s53, 9")
    k("s_branch L_c_ld")
    k.label("L_wv_cons")
    VAR = 48; VBR = 49; VAC = 51; VBC = 52; VO = 54; VRED = 55; VARS = 57
    FR = 64; ACC = 120
    k("s_and_b32 s60, s3, 1")
    k("s_lshr_b32 s61, s3, 1")
    k("s_mul_i32 s52, s61, 5120")
    k(f"v_lshl_add_u32 v{VAR}, v0, 4, s52")
    k("s_lshl_b32 s54, s61, 2")
    k("v_or_b32 v28, s54, v24")
    k("v_xor_b32 v28, v28, v0")
    k("s_lshl_b32 s52, s61, 10")
    k(f"s_add_u32 s52, s52, {STG}")
    k(f"v_lshl_add_u32 v{VARS}, v28, 4, s52")
    k("s_lshl_b32 s63, s60, 1")
    k("s_add_u32 s63, s63, s61")
    k("v_bfe_u32 v28, v0, 2, 2")
    k("v_lshl_add_u32 v28, v24, 3, v28")
    k("v_lshlrev_b32 v28, 7, v28")
    k("v_bfe_u32 v29, v0, 3, 2")
    k("v_xor_b32 v29, s63, v29")
    k("v_lshl_add_u32 v28, v29, 5, v28")
    k("v_and_b32 v29, 3, v0")
    k("v_lshl_add_u32 v28, v29, 3, v28")
    k("s_lshl_b32 s52, s61, 12")
    k(f"s_add_u32 s52, s52, {BRING}")
    k(f"v_add_u32 v{VBR}, s52, v28")
    k(f"v_xor_b32 v{VBR+1}, 32, v{VBR}")
    k("s_lshl_b32 s52, s5, 2")
    k("s_add_u32 s52, s52, s63")
    k(f"s_mul_hi_u32 s54, s52, {magic(7)}")
    k("s_mul_i32 s64, s54, 7")
    k("s_sub_u32 s52, s52, s64")
    k("s_mov_b32 s64, s54")
    k("s_mul_i32 s54, s64, 143360")
    k(f"s_add_u32 s54, s54, {WVF_OFF}")
    k("v_bfe_u32 v28, v0, 2, 1")
    k("v_lshlrev_b32 v28, 10, v28")
    k("v_bfe_u32 v29, v0, 3, 1")
    k("v_lshl_add_u32 v28, v29, 6, v28")
    k("v_and_b32 v29, 3, v0")
    k("v_lshl_add_u32 v28, v29, 4, v28")
    k("v_lshlrev_b32 v29, 4, v25")
    k("s_cmp_eq_u32 s52, 6")
    k("s_cselect_b64 vcc, -1, 0")
    k("s_and_b32 s64, s52, 6")
    k("s_lshl_b32 s64, s64, 10")
    k("s_and_b32 s52, s52, 1")
    k("s_lshl_b32 s52, s52, 7")
    k("s_add_u32 s54, s54, s64")
    k("s_add_u32 s54, s54, s52")
    k("v_cndmask_b32 v28, v28, v29, vcc")
    k("v_lshrrev_b32 v29, 1, v24")
    k("v_lshl_add_u32 v28, v29, 8, v28")
    k("v_add_u32 v28, s54, v28")
    for j in range(5):
        k(f"s_add_u32 s52, s70, {j}" if j < 3 else f"s_add_u32 s52, s71, {j-3}")
        k(f"s_lshr_b32 s{72+j}, s52, 1")
        k(f"s_mul_i32 s{72+j}, s{72+j}, 7168")
        k("s_and_b32 s52, s52, 1")
        k("s_lshl_b32 s52, s52, 9")
        k(f"s_add_u32 s{72+j}, s{72+j}, s52")
    k("s_mov_b32 s77, 0x40000000")
    k("v_and_b32 v29, 1, v24")
    k("v_cmp_eq_u32 vcc, 1, v29")
    for g in range(3):
        k(f"v_mov_b32 v29, s{72+2*g}")
        k(f"v_mov_b32 v30, s{73+2*g}")
        k("v_cndmask_b32 v29, v29, v30, vcc")
        k(f"v_add_u32 v{58+g}, v28, v29")
    for i in range(40): k(f"v_mov_b32 v{ACC+i}, 0")
    k("s_mul_i32 s52, s3, 5120")
    k(f"s_add_u32 s52, s52, {RED}")
    k(f"v_lshl_add_u32 v{VRED}, v0, 4, s52")
    k("s_xor_b32 s52, s3, 2")
    k("s_mul_i32 s52, s52, 5120")
    k(f"s_add_u32 s52, s52, {RED}")
    k(f"v_lshl_add_u32 v{VRED+1}, v0, 4, s52")
    def reads(fb, va, aoff, astr, vb):
        f = FR + fb * 28
        out = [f"ds_read_b64_tr_b16 v[{f+20+u*4+sec*2}:{f+21+u*4+sec*2}], v{vb+u} offset:{sec*512}" for u in range(2) for sec in range(2)]
        return out + [f"ds_read_b128 v[{f+j*4}:{f+j*4+3}], v{va} offset:{aoff + j*astr}" for j in range(5)]
    def nextB():
        return [f"v_add_u32 v{VBC}, s57, v{VBR}", f"v_add_u32 v{VBC+1}, s57, v{VBR+1}", "s_add_u32 s57, s57, 8192",
                f"s_cmp_eq_u32 s57, {NB*8192}", "s_cselect_b32 s57, 0, s57"]
    def nextA():
        return [f"v_add_u32 v{VAC}, s56, v{VAR}", "s_add_u32 s56, s56, 20480", f"s_cmp_eq_u32 s56, {NAD*20480}", "s_cselect_b32 s56, 0, s56"]
    def mf(fb, j, u):
        f = FR + fb * 28; a = ACC + (u * 5 + j) * 4
        return f"v_mfma_f32_16x16x32_bf16 v[{a}:{a+3}], v[{f+j*4}:{f+j*4+3}], v[{f+20+u*4}:{f+23+u*4}], v[{a}:{a+3}]"
    def mfmas(fb, fill, waits):
        issued = 0
        for j in range(5):
            for u in range(2):
                for _ in range(2):
                    if fill:
                        x = fill.pop(0); k(x)
                        if x.startswith("ds_"): issued += 1
                if waits and u == 0: k(f"s_waitcnt lgkmcnt({4 - j + issued})")
                k(mf(fb, j, u))
        while fill: k(fill.pop(0))
    k("s_mov_b32 s56, 0"); k("s_mov_b32 s57, 8192")
    for x in nextA() + nextB(): k(x)
    k("s_mov_b32 s65, 0")
    k("s_barrier")
    for x in reads(1, VARS, 0, 2048, VBR): k(x)
    k("s_waitcnt lgkmcnt(0)")
    k("s_branch L_wv_cent")
    k.label("L_wv_cloop")
    k("s_waitcnt lgkmcnt(0)")
    k("s_barrier")
    k.label("L_wv_cent")
    mfmas(1, reads(0, VAC, ARING, 1024, VBC) + nextB(), False)
    mfmas(0, reads(1, VAC, ARING + 10240, 1024, VBC) + nextA() + nextB() + ["s_add_u32 s65, s65, 1"], True)
    k("s_cmp_lt_u32 s65, 13")
    k("s_cbranch_scc1 L_wv_cloop")
    k("s_waitcnt lgkmcnt(0)")
    for u in (1, 0):
        for j in range(5): k(mf(1, j, u))
    stamp_mid(k, P, 0)
    k("s_nop 2")
    for j in range(5):
        a = ACC + (5 + j) * 4
        k(f"ds_write_b128 v{VRED}, v[{a}:{a+3}] offset:{j*1024}")
    k("s_waitcnt lgkmcnt(0)")
    k("s_barrier")
    for j in range(5): k(f"ds_read_b128 v[{FR+28+j*4}:{FR+28+j*4+3}], v{VRED+1} offset:{j*1024}")
    for j in range(5):
        k(f"s_waitcnt lgkmcnt({4-j})")
        for i in range(4): k(f"v_add_f32 v{ACC+j*4+i}, v{ACC+j*4+i}, v{FR+28+j*4+i}")
        t = FR + j * 2
        k(f"v_cvt_pk_bf16_f32 v{t}, v{ACC+j*4}, v{ACC+j*4+1}")
        k(f"v_cvt_pk_bf16_f32 v{t+1}, v{ACC+j*4+2}, v{ACC+j*4+3}")
        if j & 1 or j == 4:
            t = FR + (j >> 1) * 4
            k("s_nop 1")
            k(f"v_permlane16_swap_b32 v{t}, v{t+2}")
            k(f"v_permlane16_swap_b32 v{t+1}, v{t+3}")
            k(f"buffer_store_dwordx4 v[{t}:{t+3}], v{58 + (j >> 1)}, s[44:47], 0 offen sc1")
    k("s_branch L_c_cons")

def _x5(pos):
    out = []
    for c in range(5):
        oth = [(c + j) % 5 for j in range(1, 5)]; oth.insert(pos[c], 5 + c)
        out.append([c] + oth + [5 + i for i in range(5) if i != c])
    return out
X5 = {"a": _x5([0, 1, 2, 3, 4]), "b": _x5([1, 1, 2, 3, 3]), "c": _x5([2, 2, 2, 2, 2])}

def xr_role(k, P):
    k("s_and_b32 s62, s3, 3")
    k("s_cmp_lt_u32 s3, 4")
    k("s_cbranch_scc1 L_xr_cons")
    ords = xr_orders(P) if not P.get("x5") else X5[P["x5"]]
    tabs = [sum(x << (4 * i) for i, x in enumerate(o)) for o in ords]
    k(f"s_mov_b32 s66, {hex(tabs[0] & 0xffffffff)}")
    k(f"s_mov_b32 s67, {hex(tabs[0] >> 32)}")
    if P.get("x5"):
        k(f"s_mul_i32 s50, s60, {P.get('x5m', 0)}")
        k("s_add_u32 s50, s50, s5")
        k(f"s_mul_hi_u32 s51, s50, {magic(5)}")
        k("s_mul_i32 s51, s51, 5")
        k("s_sub_u32 s50, s50, s51")
    for c in range(1, len(tabs)):
        k(f"s_cmp_eq_u32 s50, {c}")
        k(f"s_cselect_b32 s66, {hex(tabs[c] & 0xffffffff)}, s66")
        k(f"s_cselect_b32 s67, {hex(tabs[c] >> 32)}, s67")
    VX = 4; VU = 12
    k("v_lshrrev_b32 v28, 3, v0")
    k("v_and_b32 v29, 7, v0")
    k("v_lshrrev_b32 v30, 4, v0")
    k("v_xor_b32 v29, v29, v30")
    k("v_mul_u32_u24 v28, 1280, v28")
    k("v_lshl_add_u32 v28, v29, 4, v28")
    k("s_lshl_b32 s51, s4, 2")
    k("s_add_u32 s51, s51, s62")
    k(f"s_mul_i32 s52, s51, {64*1280}")
    k(f"v_add_u32 v{VX}, s52, v28")
    k(f"v_xor_b32 v{VX+1}, 64, v{VX}")
    k(f"v_add_u32 v{VX+1}, {8*1280}, v{VX+1}")
    for i in range(2, 8): k(f"v_add_u32 v{VX+i}, {16*1280}, v{VX+i-2}")
    k("v_and_b32 v29, 15, v0")
    k("v_lshlrev_b32 v31, 1, v30")
    k("v_xor_b32 v29, v29, v31")
    k("v_mul_u32_u24 v28, 1280, v30")
    k("v_lshl_add_u32 v28, v29, 4, v28")
    k(f"s_mul_i32 s52, s62, {16*1280}")
    k("s_lshl_b32 s53, s5, 8")
    k("s_add_u32 s52, s52, s53")
    k(f"v_add_u32 v{VU}, s52, v28")
    k(f"v_add_u32 v{VU+1}, {4*1280}, v{VU}")
    k(f"v_xor_b32 v{VU+2}, 128, v{VU}")
    k(f"v_add_u32 v{VU+2}, {8*1280}, v{VU+2}")
    k(f"v_add_u32 v{VU+3}, {4*1280}, v{VU+2}")
    k("s_lshl_b32 s55, s62, 13")
    k("s_lshl_b32 s56, s62, 12")
    k("s_add_u32 s56, s56, 32768")
    k("s_mov_b32 s60, 0")
    k("s_mov_b32 s65, 0")
    k("s_waitcnt lgkmcnt(0)")
    srd(k, 28, 8, 2048 * 640 * 2)
    srd(k, 32, 16, 640 * 640 * 2)
    XL = P.get("XL", 7)
    stamp_mid(k, P, 2)
    k.label("L_xr_lloop")
    k("s_and_b32 s57, s66, 15")
    k("s_lshr_b64 s[66:67], s[66:67], 4")
    k("s_add_u32 m0, s56, s60")
    k("s_lshl_b32 s58, s57, 7")
    k(f"s_mul_i32 s59, s57, {64*1280}")
    for n in range(12):
        if n < 4: k(f"buffer_load_dwordx4 v{VU+n}, s[32:35], s59 offen lds")
        else: k(f"buffer_load_dwordx4 v{VX+n-4}, s[28:31], s58 offen lds")
        if n < 11:
            k("s_add_u32 m0, m0, 1024" if n != 3 else "s_add_u32 m0, s55, s60")
            if n + 1 == XL:
                k("s_cmp_lg_u32 s65, 1")
                k("s_cbranch_scc1 L_xr_ne")
                k(f"s_waitcnt vmcnt({XL})")
                stamp_mid(k, P, 3)
                k("s_barrier")
                k.label("L_xr_ne")
            else: k("s_nop 0")
    k(f"s_add_u32 s60, s60, {XSTG}")
    k(f"s_cmp_eq_u32 s60, {3*XSTG}")
    k("s_cselect_b32 s60, 0, s60")
    k("s_add_u32 s65, s65, 1")
    k("s_cmp_le_u32 s65, 2")
    k("s_cbranch_scc1 L_xr_lloop")
    k("s_waitcnt vmcnt(12)")
    k("s_barrier")
    k("s_cmp_lt_u32 s65, 10")
    k("s_cbranch_scc1 L_xr_lloop")
    k("s_waitcnt vmcnt(0)")
    k("s_barrier")
    srd(k, 44, 24, WS_BYTES)
    k("s_lshl_b32 s52, s4, 5")
    k("v_add_u32 v16, s52, v0")
    k(f"v_lshlrev_b32 v16, {FS}, v16")
    k(f"v_add_u32 v16, {SYNC2_OFF}, v16")
    k("v_mov_b32 v17, v16")
    k("s_lshl_b32 s75, s5, 2")
    k("s_add_u32 s75, s75, 96")
    k("s_mov_b32 s74, -1")
    k("s_mov_b32 s53, 4")
    k("s_cmp_lg_u32 s3, 5")
    k("s_cbranch_scc1 L_c_ld")
    k("s_mov_b32 exec_hi, 0")
    gather(k, P, "v19", "v16")
    k("s_mov_b64 exec, -1")
    k("s_branch L_c_ld")
    k.label("L_xr_cons")
    VXR = 4; VUR = 6; VXC = 10; VUC = 12; VO2 = 16
    XACC = 128
    k("s_and_b32 s61, s62, 1")
    k("s_lshr_b32 s63, s62, 1")
    k("v_and_b32 v28, 15, v0")
    k("v_lshrrev_b32 v31, 4, v0")
    k("v_bfe_u32 v29, v0, 1, 3")
    k("v_xor_b32 v29, v29, v31")
    k("v_lshlrev_b32 v29, 4, v29")
    k("v_lshl_add_u32 v28, v28, 7, v29")
    k("s_lshl_b32 s52, s61, 14")
    k(f"v_add_u32 v{VXR}, s52, v28")
    k(f"v_xor_b32 v{VXR+1}, 64, v{VXR}")
    k("v_bfe_u32 v29, v0, 2, 2")
    k("v_lshl_add_u32 v28, v31, 3, v29")
    k("v_lshlrev_b32 v28, 8, v28")
    k("v_bfe_u32 v29, v0, 2, 3")
    k("s_lshl_b32 s52, s63, 2")
    k("v_xor_b32 v29, s52, v29")
    k("v_lshl_add_u32 v28, v29, 5, v28")
    k("v_and_b32 v29, 3, v0")
    k("v_lshl_add_u32 v28, v29, 3, v28")
    k(f"v_add_u32 v{VUR}, 32768, v28")
    for eb in range(1, 4): k(f"v_xor_b32 v{VUR+eb}, {32*eb}, v{VUR}")
    k("s_lshl_b32 s54, s4, 1")
    k("s_add_u32 s54, s54, s61")
    k("s_mul_i32 s52, s54, 163840")
    k(f"s_add_u32 s52, s52, {XRF_OFF}")
    k("s_lshl_b32 s53, s5, 1")
    k("s_add_u32 s53, s53, s63")
    k("s_lshl_b32 s53, s53, 14")
    k("s_add_u32 s52, s52, s53")
    k("v_and_b32 v28, 15, v0")
    k("v_bfe_u32 v29, v0, 4, 1")
    k("v_lshl_add_u32 v28, v29, 5, v28")
    k("v_lshrrev_b32 v29, 5, v0")
    k("v_lshl_add_u32 v28, v29, 4, v28")
    k(f"v_lshl_add_u32 v{VO2}, v28, 4, s52")
    k("s_mov_b32 s68, 4096"); k("s_mov_b32 s69, 8192"); k("s_mov_b32 s70, 12288")
    for i in range(128): k(f"v_mov_b32 v{XACC+i}, 0")
    k("s_waitcnt lgkmcnt(0)")
    srd(k, 44, 24, WS_BYTES)
    FB = [32, 80]
    def acc(eb, mb): return XACC + (mb * 4 + eb) * 4
    def ureads(ks, dst, va):
        return [f"ds_read_b64_tr_b16 v[{dst+eb*4+sec*2}:{dst+eb*4+sec*2+1}], v{va+eb} offset:{(32*ks + 4*sec)*256}" for eb in range(4) for sec in range(2)]
    def xr_reads(ks, buf):
        f = FB[buf]
        return ureads(ks, f + 32, VUC) + [f"ds_read_b128 v[{f+mb*4}:{f+mb*4+3}], v{VXC+ks} offset:{mb*2048}" for mb in range(8)]
    def newstage():
        return [f"v_add_u32 v{VXC+ks}, s64, v{VXR+ks}" for ks in range(2)] + [f"v_add_u32 v{VUC+eb}, s64, v{VUR+eb}" for eb in range(4)] + \
               [f"s_add_u32 s64, s64, {XSTG}", f"s_cmp_eq_u32 s64, {3*XSTG}", "s_cselect_b32 s64, 0, s64"]
    def mf(a, u, x): return f"v_mfma_f32_16x16x32_bf16 v[{a}:{a+3}], v[{u}:{u+3}], v[{x}:{x+3}], v[{a}:{a+3}]"
    def mfmas(buf, fill):
        f = FB[buf]
        for mb in range(8):
            for eb in range(4):
                k(mf(acc(eb, mb), f + 32 + eb * 4, f + mb * 4))
                if fill: k(fill.pop(0))
        assert not fill
    k("s_mov_b32 s64, 0")
    k("s_mov_b32 s65, 0")
    for x in newstage(): k(x)
    k("s_barrier")
    for x in xr_reads(0, 0): k(x)
    k.label("L_xr_cloop")
    k("s_waitcnt lgkmcnt(0)")
    mfmas(0, xr_reads(1, 1) + newstage() + ["s_add_u32 s65, s65, 1", "s_cmp_eq_u32 s65, 8"])
    k("s_waitcnt lgkmcnt(0)")
    k("s_barrier")
    k("s_cbranch_scc1 L_xr_tail")
    mfmas(1, xr_reads(0, 0))
    k("s_branch L_xr_cloop")
    k.label("L_xr_tail")
    UF = [32, 48, 64, 80]; XB = [20, 24, 96, 100, 104, 108, 112, 116]; OT = 120
    q = []
    def lds(s_, tag): k(s_); q.append(tag)
    def ur(t): return ureads(t & 1, UF[t], VUC if t < 2 else VUR)
    def xread(n):
        mb, t = n // 4, n % 4
        r = XB[n % 8]
        return f"ds_read_b128 v[{r}:{r+3}], v{(VXC if t < 2 else VXR) + (t & 1)} offset:{mb*2048}"
    pre = [(x, ("u", 0)) for x in ur(0)] + [(xread(0), ("x", 0))] + [(x, ("u", 1)) for x in ur(1)] + [(xread(1), ("x", 1))]
    f = FB[1]; n = 0
    for mb in range(8):
        for eb in range(4):
            k(mf(acc(eb, mb), f + 32 + eb * 4, f + mb * 4))
            if pre: lds(*pre.pop(0))
            n += 1
            if n == 20:
                k("s_barrier")
                pre = [(x, ("u", 2)) for x in ur(2)]
    assert not pre
    outq = []; osel = [0]
    def out_instrs(mb):
        r = []
        for p in range(2):
            t = OT + osel[0] * 4; osel[0] ^= 1
            a0 = acc(2 * p, mb); a1 = acc(2 * p + 1, mb)
            so = ["0", "s68", "s69", "s70"][2 * p + (mb >> 2)]
            r.append([f"v_cvt_pk_bf16_f32 v{t}, v{a0}, v{a0+1}", f"v_cvt_pk_bf16_f32 v{t+1}, v{a0+2}, v{a0+3}",
                      f"v_cvt_pk_bf16_f32 v{t+2}, v{a1}, v{a1+1}", f"v_cvt_pk_bf16_f32 v{t+3}, v{a1+2}, v{a1+3}",
                      None, None, f"v_permlane16_swap_b32 v{t}, v{t+2}", f"v_permlane16_swap_b32 v{t+1}, v{t+3}",
                      f"buffer_store_dwordx4 v[{t}:{t+3}], v{VO2}, s[44:47], {so} offen offset:{(mb & 3)*1024} sc1"])
        return r
    nx = 2
    for n in range(32):
        mb, t = n // 4, n % 4
        if n == 0:
            lds(xread(2), ("x", 2)); nx = 3
            for x in ur(3): lds(x, ("u", 3))
        while nx < 32 and nx <= n + 5: lds(xread(nx), ("x", nx)); nx += 1
        need = max(i for i, tg in enumerate(q) if tg == ("x", n) or (mb == 0 and tg == ("u", t)))
        k(f"s_waitcnt lgkmcnt({min(15, len(q) - 1 - need)})")
        for eb in range(4):
            k(mf(acc(eb, mb), UF[t] + eb * 4, XB[n % 8]))
            if 4 * t + eb >= 6:
                for _ in range(2):
                    if outq:
                        x = outq.pop(0)
                        if x: k(x)
        if t == 3:
            assert not outq
            outq = sum(out_instrs(mb), [])
    stamp_mid(k, P, 0)
    k("s_nop 7")
    for x in outq: k(x if x else "s_nop 0")
    k("s_barrier")

def mtmask(t):
    m = 0
    for eb in range(4 * t, 4 * t + 4):
        g, r = eb >> 3, eb & 7
        if g == 4: mt = 2 * (r >> 1) + 1
        else: mt = 2 * g + (1 if 3 <= r < 6 else 0)
        m |= 1 << mt
    return m

def c_ids(k):
    k("s_and_b32 s52, s2, 7")
    k("s_lshr_b32 s54, s2, 3")
    k("s_lshr_b32 s4, s52, 1")
    k("s_lshl_b32 s4, s4, 2")
    k("s_and_b32 s55, s54, 3")
    k("s_add_u32 s4, s4, s55")
    k("s_and_b32 s5, s52, 1")
    k("s_lshl_b32 s5, s5, 3")
    k("s_lshr_b32 s54, s54, 2")
    k("s_add_u32 s5, s5, s54")

def phase_c(k, P):
    NX = P.get("NX", 4); NW = P.get("NW", 4)
    XR = 0; WR = NX * 16384; STG = WR + NW * 14336
    assert STG + 30720 <= LCNT and STG <= 124 * 1024 and 144 * 1024 <= STG + 30720
    order = P.get("corder", list(range(10)))
    k.label("L_c_cons")
    arrive(k)
    k.label("L_c_cons2")
    stamp_mid(k, P, 1)
    c_ids(k)
    VXR = 4; VWR = 5; VXC = 6; VWC = 7; VEW = 8; VER = 9; VST = 10
    ACC = 24; FR = 80; VRD = 152
    k("s_lshl_b32 s52, s3, 11")
    k(f"v_lshl_add_u32 v{VXR}, v0, 4, s52")
    k(f"v_lshlrev_b32 v{VWR}, 4, v0")
    k(f"v_add_u32 v{VWR}, {WR}, v{VWR}")
    for i in range(56): k(f"v_mov_b32 v{ACC+i}, 0")
    k("s_mul_i32 s52, s3, 7680")
    k(f"s_add_u32 s52, s52, {STG}")
    k("v_and_b32 v18, 15, v0")
    k("v_mul_u32_u24 v18, 240, v18")
    k("v_lshrrev_b32 v19, 4, v0")
    k("v_lshl_add_u32 v20, v19, 4, v18")
    k(f"v_add_u32 v{VEW}, s52, v20")
    k("v_lshl_add_u32 v20, v19, 3, v18")
    k(f"v_add_u32 v{VER}, s52, v20")
    k(f"s_mov_b32 s53, {magic(14)}")
    k("s_lshl_b32 s54, s4, 2")
    k("s_add_u32 s54, s54, s3")
    k(f"s_mul_i32 s54, s54, {32*3456}")
    k("s_mul_i32 s55, s5, 224")
    k("s_add_u32 s54, s54, s55")
    k("s_sub_u32 s55, 3456, s55")
    k("v_mov_b32 v23, 0x7fffffff")
    for i in range(7):
        k(f"v_add_u32 v18, {64*i}, v0")
        k("v_mul_hi_u32 v19, v18, s53")
        k("v_mul_u32_u24 v20, 14, v19")
        k("v_sub_u32 v18, v18, v20")
        k("v_lshlrev_b32 v18, 4, v18")
        k("v_cmp_gt_u32 vcc, s55, v18")
        k("v_mul_u32_u24 v20, 240, v19")
        k(f"v_add3_u32 v{VRD+i}, v20, v18, s52")
        k("v_mul_u32_u24 v20, 3456, v19")
        k(f"v_add3_u32 v{VST+i}, v20, v18, s54")
        k(f"v_cndmask_b32 v{VST+i}, v23, v{VST+i}, vcc")
    srd(k, 28, 20, 2048 * 1728 * 2)
    k("s_mov_b32 s56, 0"); k("s_mov_b32 s57, 0")
    def newstage():
        return [f"v_add_u32 v{VXC}, s56, v{VXR}", f"v_add_u32 v{VWC}, s57, v{VWR}"]
    def advance():
        return ["s_add_u32 s56, s56, 16384", f"s_cmp_eq_u32 s56, {NX*16384}",
                "s_cselect_b32 s56, 0, s56", "s_add_u32 s57, s57, 14336", f"s_cmp_eq_u32 s57, {NW*14336}", "s_cselect_b32 s57, 0, s57"]
    def reads(ks):
        f = FR + ks * 36
        out = [f"ds_read_b128 v[{f+28+u*4}:{f+31+u*4}], v{VXC} offset:{XR + u*1024 + ks*8192}" for u in range(0 if P.get("ab_noxr") else 2)]
        return out + [f"ds_read_b128 v[{f+b*4}:{f+b*4+3}], v{VWC} offset:{ks*7168 + b*1024}" for b in range(7)]
    RLX = P.get("rlx", 1)
    def mfmas(ks, fill, waits):
        f = FR + ks * 36; issued = 0
        rd = [x for x in fill if x.startswith("ds_")]; ot = [x for x in fill if not x.startswith("ds_")]
        slots = P.get("rs", [0, 1, 2, 4, 5, 7, 8, 10, 11]) if RLX else list(range(9))
        last = None
        for b in range(7):
            for u in range(2):
                i = 2 * b + u
                if waits and u == 0:
                    n = min(15, 6 - b + issued)
                    if not (RLX and b >= 1 and b != P.get("wb", 3) and rd is not None and len(fill)):
                        k(f"s_waitcnt lgkmcnt({n if not (RLX and len(fill)) else (7 - P.get('wb', 3) if b == 0 else issued)})")
                a = ACC + (u * 7 + b) * 4
                k(f"v_mfma_f32_16x16x32_bf16 v[{a}:{a+3}], v[{f+b*4}:{f+b*4+3}], v[{f+28+u*4}:{f+31+u*4}], v[{a}:{a+3}]")
                if rd and i in slots:
                    k(rd.pop(0)); issued += 1
                elif ot and (not ot[0].startswith("v_add") or not rd):
                    k(ot.pop(0))
                    if ot and not rd: k(ot.pop(0))
        assert not rd
        while ot: k(ot.pop(0))
    for x in newstage() + advance(): k(x)
    k("s_mov_b32 s65, 0")
    k("s_barrier")
    stamp_mid(k, P, 2)
    for x in reads(0): k(x)
    k.label("L_c_cloop")
    EO = P.get("eo", 1)
    OTT = 160
    def cvts(u):
        out = []
        for p in range(4):
            t = OTT + (p * 2 + u) * 4
            a0 = ACC + (u * 7 + 2 * p) * 4; a1 = a0 + 4
            out += [f"v_cvt_pk_bf16_f32 v{t}, v{a0}, v{a0+1}", f"v_cvt_pk_bf16_f32 v{t+1}, v{a0+2}, v{a0+3}"]
            if p < 3:
                out += [f"v_cvt_pk_bf16_f32 v{t+2}, v{a1}, v{a1+1}", f"v_cvt_pk_bf16_f32 v{t+3}, v{a1+2}, v{a1+3}",
                        f"ds_write_b128 v{VEW}, v[{t}:{t+3}] offset:{u*16*240 + p*64}"]
            else:
                out += [f"ds_write_b64 v{VER}, v[{t}:{t+1}] offset:{u*16*240 + 192}"]
        return out
    RB = 192
    def rb(i): return f"ds_read_b128 v[{RB+i*4}:{RB+i*4+3}], v{VRD+i}"
    def st(i): return f"buffer_store_dwordx4 v[{RB+i*4}:{RB+i*4+3}], v{VST+i}, s[28:31], 0 offen {P.get('k2_stflags', '')}"
    def mf1(ks, b, u):
        f = FR + ks * 36; a = ACC + (u * 7 + b) * 4
        return f"v_mfma_f32_16x16x32_bf16 v[{a}:{a+3}], v[{f+b*4}:{f+b*4+3}], v[{f+28+u*4}:{f+31+u*4}], v[{a}:{a+3}]"
    if not EO:
        mfmas(0, reads(1) + ["s_add_u32 s65, s65, 1", "s_cmp_eq_u32 s65, 10"] + newstage(), True)
        k("s_cbranch_scc1 L_c_cdone")
        if not RLX: k("s_waitcnt lgkmcnt(0)")
        k("s_barrier")
        mfmas(1, reads(0) + advance(), bool(RLX))
        k("s_branch L_c_cloop")
        k.label("L_c_cdone")
        mfmas(1, [], True)
        stamp_mid(k, P, 3)
        k("s_nop 4")
        for x in cvts(0) + cvts(1): k(x)
        for i in range(7): k(rb(i))
        for i in range(7):
            k(f"s_waitcnt lgkmcnt({6-i})"); k(st(i))
    else:
        mfmas(0, reads(1) + newstage(), True)
        if not RLX: k("s_waitcnt lgkmcnt(0)")
        k("s_barrier")
        mfmas(1, reads(0) + advance() + ["s_add_u32 s65, s65, 1", "s_cmp_lt_u32 s65, 9"], bool(RLX))
        k("s_cbranch_scc1 L_c_cloop")
        rd = reads(1)
        k("s_waitcnt lgkmcnt(4)")
        n = 0
        for b in range(7):
            if b == 3: k(f"s_waitcnt lgkmcnt({n})")
            k(mf1(0, b, 0)); k(rd.pop(0)); n += 1
        for b in range(4):
            k(mf1(0, b, 1))
            if rd: k(rd.pop(0))
        for b in range(7):
            k(f"s_waitcnt lgkmcnt({6-b})")
            k(mf1(1, b, 0))
        fill = cvts(0) + [rb(0), rb(1), rb(2)]
        rest = [mf1(0, b, 1) for b in range(4, 7)] + [mf1(1, b, 1) for b in range(7)]
        for i, m in enumerate(rest):
            k(m)
            if i >= 1:
                for _ in range(3):
                    if fill: k(fill.pop(0))
        assert not fill
        stamp_mid(k, P, 3)
        c1 = cvts(1)
        for i in range(3):
            k(f"s_waitcnt lgkmcnt({2-i})"); k(st(i))
        for x in c1: k(x)
        for i in range(3, 7): k(rb(i))
        for i in range(3, 7):
            k(f"s_waitcnt lgkmcnt({6-i})"); k(st(i))
    stamp_end(k, P, 0, 44, 112, 3)
    k("s_endpgm")
    k.label("L_c_ld")
    c_ids(k)
    k("s_and_b32 s62, s3, 1")
    k("s_lshl_b32 s52, s4, 4")
    k("s_add_u32 s52, s52, s5")
    k(f"s_lshl_b32 s52, s52, {FS}")
    k(f"s_add_u32 s52, s52, {SYNC2_OFF}")
    k("v_lshl_add_u32 v8, v0, 2, s52")
    k("s_mov_b32 s63, 0")
    k("s_cmp_ge_u32 s3, 6")
    k("s_cbranch_scc1 L_c_xl")
    k("s_mul_i32 s52, s5, 7")
    k("s_add_u32 s54, s52, 6")
    k("s_lshr_b32 s52, s52, 2")
    k("s_lshr_b32 s54, s54, 2")
    k("s_min_u32 s54, s54, 26")
    k("s_sub_u32 s52, s54, s52")
    k("s_mov_b32 s66, 1")
    k("s_cmp_ge_u32 s52, 1")
    k("s_cselect_b32 s66, 0x101, s66")
    k("s_cmp_ge_u32 s52, 2")
    k("s_cselect_b32 s66, 0x10101, s66")
    k("s_mul_i32 s52, s5, 143360")
    k(f"s_add_u32 s52, s52, {WVF_OFF}")
    k("s_mul_i32 s55, s62, 7168")
    k("s_add_u32 s52, s52, s55")
    k("v_lshl_add_u32 v4, v0, 4, s52")
    k("v_add_u32 v5, 4096, v4")
    k("v_mov_b32 v6, v4")
    k("s_cmp_lg_u32 s5, 15")
    k("s_cbranch_scc1 L_c_nt15")
    k("v_mov_b32 v5, 0x7fffffff")
    k("v_and_b32 v7, 8, v0")
    k("v_cmp_eq_u32 vcc, 0, v7")
    k("s_nop 1")
    k("v_cndmask_b32 v6, v5, v4, vcc")
    k.label("L_c_nt15")
    k(f"s_add_u32 s55, s55, {WR}")
    k("s_barrier")
    k("s_cmp_lg_u32 s3, 5")
    k("s_cbranch_scc1 L_c_nopush")
    k("s_cmp_eq_u32 s74, 0")
    k("s_cbranch_scc1 L_c_nopush")
    k("s_waitcnt vmcnt(0)")
    k(f"v_add_u32 v19, {TAGC}, v19")
    k("s_mov_b32 exec_lo, s74")
    k("s_mov_b32 exec_hi, 0")
    lds_wait(k, "L_c_own", "s53")
    push(k, P, "v19", "v17", "s75")
    k("s_mov_b64 exec, -1")
    stamp_mid(k, P, 0)
    k("s_branch L_c_pushed")
    k.label("L_c_nopush")
    lds_wait(k, "L_c_own4", "s53", sleep=1)
    k.label("L_c_pushed")
    if P.get("ps2", 8): k(f"s_sleep {P.get('ps2', 8)}")
    def run(name, N, per, prep, fire, init, fin=None, la=99, ramp=1):
        vm = VM(); ni = 0
        def both(i):
            prep(i); k("s_nop 0"); fire(i)
            for _ in range(per): vm.issue(i)
        for _ in range(init): both(ni); ni += 1
        stamp_mid(k, P, 1)
        for b in range(10):
            lim = min(9, max(N - 1, b - 1 - P.get("rlx", 1) + N))
            todo = list(range(ni, min(lim, b + la) + 1))[:ramp]
            if todo: prep(todo[0])
            k(f"s_waitcnt vmcnt({vm.wait_for(lambda t: t <= b)})")
            k("s_barrier")
            if todo:
                fire(todo[0])
                for _ in range(per): vm.issue(todo[0])
                ni += 1
                for t_ in todo[1:]: both(t_); ni += 1
        assert ni == 10
        if fin: fin()
        if P.get("stamp"):
            k("s_and_b32 s62, s3, 3")
            stamp_end(k, P, 2, 44, 32, 62)
        k("s_endpgm")
    def prepW(i):
        k(f"s_mul_i32 s76, s66, {mtmask(order[i])}")
        ensure(k)
        k(f"s_mov_b32 s58, {order[i]*14336}")
        k(f"s_add_u32 m0, s55, {(i % NW)*14336}")
    def fireW(i):
        if P.get("ab_nowd"): return
        for j in range(4): k(f"buffer_load_dwordx4 v{4 if j < 2 else 6}, s[44:47], s58 offen offset:{j*1024} sc1 lds")
        k("s_add_u32 m0, m0, 4096")
        k("s_nop 0")
        for j in range(3): k(f"buffer_load_dwordx4 v5, s[44:47], s58 offen offset:{j*1024} sc1 lds")
    def finW():
        k("s_cmp_lg_u32 s3, 4")
        k("s_cbranch_scc1 L_c_nobump")
        bump(k)
        k.label("L_c_nobump")
    run("L_c_w", NW, 7, prepW, fireW, P.get("W0", 4), finW, la=P.get("law", 99))
    k.label("L_c_xl")
    k("s_mul_i32 s52, s4, 163840")
    k(f"s_add_u32 s52, s52, {XRF_OFF}")
    k("s_lshl_b32 s55, s62, 13")
    k("s_add_u32 s52, s52, s55")
    k("v_lshl_add_u32 v4, v0, 4, s52")
    k("v_add_u32 v5, 4096, v4")
    k("s_barrier")
    if P.get("xhold", 1): lds_wait(k, "L_c_xh", "s53", sleep=1)
    def prepX(i):
        if i == 0 or order[i] // 2 != order[i - 1] // 2:
            k(f"s_mov_b32 s76, {1 << (24 + order[i] // 2)}")
            ensure(k)
        k(f"s_mov_b32 s58, {order[i]*16384}")
        k(f"s_add_u32 m0, s55, {XR + (i % NX)*16384}")
    def fireX(i):
        if P.get("ab_noxd"): return
        for j in range(4): k(f"buffer_load_dwordx4 v4, s[44:47], s58 offen offset:{j*1024} sc1 lds")
        k("s_add_u32 m0, m0, 4096")
        k("s_nop 0")
        for j in range(4): k(f"buffer_load_dwordx4 v5, s[44:47], s58 offen offset:{j*1024} sc1 lds")
    run("L_c_x", NX, 8, prepX, fireX, P.get("X0", NX), ramp=P.get("xramp", 1))

def gen(P):
    uid[0] = 0
    P = dict(P)
    for kk_, v in (("tlb", 0), ("X0", 2), ("xfirst", 0), ("pm", "atom"), ("wm", "atom"), ("ps", 0), ("ps2", 0), ("cp", 0), ("W0", 2), ("dualW", 0)): P.setdefault(kk_, v)

    k = K(KNAME)
    k("s_cmp_ge_u32 s2, 256")
    k("s_cbranch_scc1 L_end")
    k("s_load_dwordx16 s[8:23], s[0:1], 0")
    k("s_load_dwordx2 s[24:25], s[0:1], 64")
    stamp_begin(k, P)
    k("s_getpc_b64 s[40:41]")
    k.label("L_pc0")
    k("v_subrev_u32 v4, 504, v0")
    k("v_cmp_gt_u32 vcc, 8, v4")
    k("s_and_saveexec_b64 s[44:45], vcc")
    k("s_cbranch_execz L_noipf")
    k("s_and_b32 s41, s41, 0xffff")
    k("s_mov_b32 s42, L_end - L_pc0")
    k("s_mov_b32 s43, 0x00020000")
    k("s_and_b32 s46, s2, 0xf8")
    k("v_add_lshl_u32 v4, s46, v4, 7")
    k("buffer_load_dword v200, v4, s[40:43], 0 offen")
    k.label("L_noipf")
    k("s_mov_b64 exec, -1")
    k("v_lshrrev_b32 v1, 6, v0")
    k(f"v_mov_b32 v2, {LCNT}")
    k("v_mov_b32 v3, 0")
    k("v_readfirstlane_b32 s3, v1")
    k("ds_write2_b32 v2, v3, v3 offset0:0 offset1:1")
    k("v_and_b32 v0, 63, v0")
    k("s_bfe_u32 s4, s2, 0x10002")
    k("s_and_b32 s5, s2, 3")
    k("s_lshr_b32 s6, s2, 3")
    nwv = NWV[P.get("xrx", 2)]
    base = [sum(nwv[:j]) for j in range(4)]
    xbase = [sum(32 - n for n in nwv[:j]) for j in range(4)]
    pk = lambda v: hex(sum(x << (8 * j) for j, x in enumerate(v)))
    k("s_lshl_b32 s7, s5, 3")
    k(f"s_lshr_b32 s52, {pk(nwv)}, s7")
    k("s_and_b32 s52, s52, 0xff")
    k(f"s_lshr_b32 s53, {pk(base)}, s7")
    k("s_and_b32 s53, s53, 0xff")
    kx = K("x")
    kx(f"s_lshr_b32 s53, {pk(xbase)}, s7")
    kx("s_and_b32 s53, s53, 0xff")
    kx("s_sub_u32 s6, s6, s52")
    kx("s_add_u32 s6, s6, s53")
    kx(f"s_mul_hi_u32 s60, s6, {magic(5)}")
    kx("s_mul_i32 s5, s60, 5")
    kx("s_sub_u32 s5, s6, s5")
    kx("s_lshl_b32 s4, s4, 2")
    kx("s_add_u32 s4, s4, s60")
    kx("s_add_u32 s50, s60, s5")
    kx("s_and_b32 s50, s50, 3")
    xr_role(kx, P)
    i0 = kx.lines.index("L_xr_cons:")
    k("s_cmp_ge_u32 s6, s52")
    if P.get("xfirst", 1):
        k("s_cbranch_scc0 L_wv")
        k.lines += kx.lines[:i0]
        k.label("L_wv")
    else:
        k("s_cbranch_scc1 L_xr")
    k("s_add_u32 s53, s53, s6")
    k("s_and_b32 s60, s53, 3")
    k("s_lshl_b32 s4, s4, 2")
    k("s_add_u32 s4, s4, s60")
    k("s_lshr_b32 s5, s53, 2")
    wv_role(k, P)
    poll_sub(k, P)
    if not P.get("xfirst", 1):
        k.label("L_xr")
        k.lines += kx.lines[:i0]
    k.lines += kx.lines[i0:]
    phase_c(k, P)
    return finish(k)

def finish(k):
    k.label("L_end")
    k("s_endpgm")
    src = "; QuIP weight-only int4 layer: y = (x@U) @ (dequant(qw)@V), one fused launch (generated by dev/gen9.py)\n"
    src += "; @launch grid=(256,1,1) block=(512,1,1) lds=163840\n" + HEADER + k.text()
    src += '.section .rodata,"a"\n' + desc(KNAME, 256, 102, 256)
    return src

def is_wv(b, P):
    import numpy as np
    return (b >> 3) < np.array(NWV[P.get("xrx", 2)])[b & 3]
def is_xr(b, P):
    return ~is_wv(b, P)

if __name__ == "__main__":
    import json
    P = json.loads(sys.argv[2]) if len(sys.argv) > 2 else {}
    open(sys.argv[1], "w").write(gen(P))
```

```python
import sys
from asmlib import *
from gen import magic, VM, stamp_begin, stamp_mid, stamp_end, STAMP_OFF
from gen4 import xr_orders
SYNC_OFF = 0; SYNC2_OFF = 0x10000
AQ_OFF = 0x20000
WVF_OFF = 0x240000
XRF_OFF = 0x480000
WS_BYTES = 0x1000000
TAGC = 0x5bd1e995
LCNT = 163840 - 64
NWV = {2: [32, 32, 32, 12], 4: [32, 32, 22, 22], 8: [27, 27, 27, 27]}
XSTG = 49152
SPIN_MAX = 1 << 19
FS = 8
KNAME = "standalone__weight_only_int_quip__prompt_kernel"

def poll_loop(k, name, load, cmp_lines, sleep=0, wait="vmcnt(0)"):
    k("s_mov_b32 s80, 0")
    k.label(name)
    if sleep: k(f"s_sleep {sleep}")
    k(load)
    k("s_add_u32 s80, s80, 1")
    k(f"s_cmp_ge_u32 s80, {SPIN_MAX}")
    k(f"s_cbranch_scc1 {name}_done")
    k(f"s_waitcnt {wait}")
    for l in cmp_lines: k(l)
    k(f"s_cbranch_scc0 {name}")
    k.label(f"{name}_done")

def lds_wait(k, name, n, sleep=0):
    poll_loop(k, name, "ds_read_b32 v30, v2", ["v_readfirstlane_b32 s52, v30", f"s_cmp_ge_u32 s52, {n}"], wait="lgkmcnt(0)", sleep=sleep)

def arrive(k):
    k("s_waitcnt vmcnt(0)")
    k("v_mov_b32 v7, 1")
    k("s_mov_b64 exec, 1")
    k("ds_add_u32 v2, v7")
    k("s_mov_b64 exec, -1")

DECODE = ["v_readlane_b32 s59, v30, 31", f"s_add_u32 s52, s59, {TAGC}", "v_cmp_eq_u32 vcc, s52, v30", "s_mov_b32 s63, vcc_lo"]

def poll_sub(k, P):
    k.label("L_poll")
    k("s_mov_b32 exec_lo, -1")
    k("s_mov_b32 exec_hi, 0")
    poll_loop(k, "L_poll_l", "v_mov_b32 v30, 0\nbuffer_atomic_or v30, v8, s[44:47], 0 offen sc0 sc1", DECODE + ["s_and_b32 s52, s63, s76", "s_cmp_eq_u32 s52, s76"])
    k("s_mov_b64 exec, -1")
    k.label("L_poll_ret")
    k("s_setpc_b64 s[78:79]")

uid = [0]
def ensure(k, sub="L_poll"):
    uid[0] += 1
    k("s_and_b32 s52, s63, s76")
    k("s_cmp_eq_u32 s52, s76")
    k(f"s_cbranch_scc1 L_ok{uid[0]}")
    k(f"s_call_b64 s[78:79], {sub}")
    k.label(f"L_ok{uid[0]}")

def gather(k, P, reg, addr):
    gm = P.get("gm", "sc1")
    if gm == "atom":
        k(f"v_mov_b32 {reg}, 0")
        k(f"buffer_atomic_or {reg}, {addr}, s[44:47], 0 offen offset:124 sc0 sc1")
    else:
        k(f"buffer_load_dword {reg}, {addr}, s[44:47], 0 offen offset:124 {gm}")

def push(k, P, data, addr, so):
    if P.get("wm") == "atom": k(f"buffer_atomic_swap {data}, {addr}, s[44:47], {so} offen sc1")
    else: k(f"buffer_store_dword {data}, {addr}, s[44:47], {so} offen sc1")

def bump(k):
    k("v_mov_b32 v30, 1")
    k("s_mov_b64 exec, 1")
    k("buffer_atomic_add v30, v8, s[44:47], 0 offen offset:124 sc1")
    k("s_mov_b64 exec, -1")

def wv_role(k, P):
    NAD = P.get("NAD", 3); NB = P.get("NB", 11); TH = P.get("th", 4)
    ARING = 0; BRING = NAD * 20480; STG = BRING + NB * 8192
    RED = P.get("RED", 124) * 1024
    assert 122880 <= RED and RED + 20480 <= 153600
    B0 = P.get("B0", NB)
    assert STG + 10240 <= LCNT and NB % 2 == 1
    for i in (25, 26): assert not (BRING + (i % NB) * 8192 < RED + 20480 and RED < BRING + (i % NB + 1) * 8192)
    k("s_lshr_b32 s53, s4, 1")
    k("s_lshl_b32 s70, s53, 3")
    k("s_add_u32 s71, s70, 6")
    k("s_lshl_b32 s52, s53, 1")
    k("s_add_u32 s52, s52, 32")
    k("s_bitcmp1_b32 s4, 0")
    k("s_cselect_b32 s71, s52, s71")
    k("s_cselect_b32 s52, 3, 0")
    k("s_add_u32 s70, s70, s52")
    k(f"s_mul_i32 s68, s5, {P.get('on', 1)}")
    k(f"s_mul_i32 s52, s60, {P.get('oa', 7)}")
    k("s_add_u32 s68, s68, s52")
    k(f"s_mul_hi_u32 s52, s68, {magic(27)}")
    k("s_mul_i32 s52, s52, 27")
    k("s_sub_u32 s68, s68, s52")
    k("s_cmp_ge_u32 s3, 5")
    k("s_cbranch_scc1 L_wv_nodq")
    k("s_add_u32 s52, s70, s3")
    k("s_add_u32 s54, s71, s3")
    k("s_sub_u32 s54, s54, 3")
    k("s_cmp_ge_u32 s3, 3")
    k("s_cselect_b32 s52, s54, s52")
    k("v_lshrrev_b32 v24, 4, v0")
    k("v_and_b32 v25, 15, v0")
    k("v_mul_u32_u24 v26, 6912, v24")
    k("v_lshl_add_u32 v4, v25, 4, v26")
    k(f"s_mul_i32 s55, s52, {16*6912}")
    k("s_lshl_b32 s54, s68, 8")
    k("s_add_u32 s55, s55, s54")
    for m in range(1, 4): k(f"s_add_u32 s{55+m}, s55, {m*4*6912}")
    k("s_lshr_b32 s52, s52, 3")
    k("s_mul_i32 s52, s52, 3456")
    k("s_lshl_b32 s54, s68, 7")
    k("s_add_u32 s52, s52, s54")
    k("v_lshlrev_b32 v8, 3, v25")
    k("s_waitcnt lgkmcnt(0)")
    R = 32
    srd(k, 36, 12, 5 * 1728 * 2)
    k("buffer_load_dwordx2 v[10:11], v8, s[36:39], s52 offen")
    srd(k, 40, 14, 5 * 1728 * 2)
    k("buffer_load_dwordx2 v[12:13], v8, s[40:43], s52 offen")
    srd(k, 28, 10, 640 * 1728 * 4)
    for m in range(4): k(f"buffer_load_dwordx4 v[{R+4*m}:{R+4*m+3}], v4, s[28:31], s{55+m} offen")
    k("s_barrier")
    srd(k, 44, 24, WS_BYTES)
    k("v_lshrrev_b32 v27, 1, v25")
    k("v_lshlrev_b32 v26, 8, v27")
    k("v_and_b32 v28, 1, v25")
    k("v_lshl_add_u32 v26, v28, 3, v26")
    k("s_lshl_b32 s52, s3, 11")
    k(f"s_add_u32 s52, s52, {STG}")
    k("v_add_u32 v26, s52, v26")
    k("v_xor_b32 v27, v27, v24")
    k("v_lshl_add_u32 v4, v27, 4, v26")
    k("v_xor_b32 v5, 64, v4")
    k("v_xor_b32 v28, v0, v24")
    k("v_lshl_add_u32 v28, v28, 4, s52")
    k("v_xor_b32 v29, 64, v28")
    k("s_mul_i32 s52, s4, 27")
    k("s_add_u32 s52, s52, s68")
    k("s_mul_i32 s52, s52, 10240")
    k("s_lshl_b32 s54, s3, 10")
    k("s_add_u32 s52, s52, s54")
    k(f"s_add_u32 s55, s52, {AQ_OFF}")
    k("s_add_u32 s54, s55, 5120")
    k("v_lshlrev_b32 v9, 4, v0")
    k("s_waitcnt vmcnt(4)")
    for i in range(2):
        k(f"v_lshlrev_b32 v{14+2*i}, 16, v{10+i}"); k(f"v_and_b32 v{15+2*i}, 0xffff0000, v{10+i}")
        k(f"v_lshlrev_b32 v{18+2*i}, 16, v{12+i}"); k(f"v_and_b32 v{19+2*i}, 0xffff0000, v{12+i}")
    for i in range(4): k(f"v_mul_f32 v{18+i}, -v{18+i}, v{14+i}")
    for m in range(4):
        r = R + 4 * m
        k(f"s_waitcnt vmcnt({3-m})")
        for i in range(4): k(f"v_cvt_f32_i32 v{r+i}, v{r+i}")
        for i in range(4): k(f"v_fma_f32 v{r+i}, v{r+i}, v{14+i}, v{18+i}")
        k(f"v_cvt_pk_bf16_f32 v{r}, v{r}, v{r+1}")
        k(f"v_cvt_pk_bf16_f32 v{r+1}, v{r+2}, v{r+3}")
        k(f"ds_write_b64 v{4+(m&1)}, v[{r}:{r+1}] offset:{(m>>1)*128}")
    k("ds_read_b128 v[48:51], v28")
    k("ds_read_b128 v[52:55], v29 offset:1024")
    k("s_waitcnt lgkmcnt(1)")
    k("buffer_store_dwordx4 v[48:51], v9, s[44:47], s55 offen sc1")
    k("s_waitcnt lgkmcnt(0)")
    k("buffer_store_dwordx4 v[52:55], v9, s[44:47], s54 offen sc1")
    arrive(k)
    k("s_cmp_lt_u32 s3, 4")
    k("s_cbranch_scc1 L_wv_cons")
    k("s_branch L_wv_ld")
    k.label("L_wv_nodq")
    k("s_waitcnt lgkmcnt(0)")
    k("s_barrier")
    srd(k, 44, 24, WS_BYTES)
    k.label("L_wv_ld")
    VB = 12
    k("s_and_b32 s62, s3, 1")
    k("s_bfe_u32 s61, s3, 0x10001")
    k("v_lshrrev_b32 v24, 3, v0")
    k("v_and_b32 v25, 7, v0")
    k("v_mul_u32_u24 v26, 3456, v24")
    k("v_bfe_u32 v27, v0, 4, 1")
    k("v_lshlrev_b32 v27, 1, v27")
    k("v_xor_b32 v27, v25, v27")
    k("v_lshl_add_u32 v26, v27, 4, v26")
    k(f"s_mul_i32 s52, s62, {32*3456}")
    k("s_lshl_b32 s54, s5, 7")
    k("s_add_u32 s52, s52, s54")
    k(f"v_add_u32 v{VB}, s52, v26")
    k(f"v_xor_b32 v{VB+1}, 64, v{VB}")
    k(f"v_add_u32 v{VB+1}, {8*3456}, v{VB+1}")
    k(f"v_add_u32 v{VB+2}, {16*3456}, v{VB}")
    k(f"v_add_u32 v{VB+3}, {16*3456}, v{VB+1}")
    k("s_lshl_b32 s66, s62, 12")
    k(f"s_add_u32 s66, s66, {BRING}")
    srd(k, 32, 18, 1728 * 1728 * 2)
    def fireB():
        for n in range(4):
            k(f"buffer_load_dwordx4 v{VB+n}, s[32:35], s58 offen lds")
            if n < 3:
                k("s_add_u32 m0, m0, 1024"); k("s_nop 0")
    k("s_cmp_eq_u32 s61, 0")
    k("s_cbranch_scc1 L_wv_nopre")
    k("s_mov_b32 s57, s68")
    k("s_mov_b32 s56, s66")
    k("s_mov_b32 s65, 0")
    def xprefetch(skip):
        XRX = P.get("xrx", 2)
        nw = NWV[XRX][3]; nmx = (32 - nw) // 5; H = 2 * nw
        xi = 0 if P.get("xpu") else nmx * 4; per = xi + 10
        S0 = P["xpf"]; total = (P.get("xpe", 10) - S0) * per
        k(f"s_cmp_lt_u32 s7, {8 * (4 - XRX // 2)}")
        k(f"s_cbranch_scc1 {skip}")
        srd(k, 36, 8, 2048 * 640 * 2)
        srd(k, 40, 16, 640 * 640 * 2)
        k("s_lshr_b32 s52, s7, 3")
        k(f"s_sub_u32 s52, s52, {4 - XRX // 2}")
        k(f"s_mul_i32 s52, s52, {256 * nmx * 1280}")
        k("s_lshr_b32 s53, s4, 2")
        k(f"s_mul_i32 s53, s53, {1024 * 1280}")
        k("s_add_u32 s72, s52, s53")
        k("v_mul_u32_u24 v20, 1280, v0")
        k("v_lshlrev_b32 v21, 7, v0")
        k("s_lshl_b32 s73, s6, 1")
        k("s_add_u32 s73, s73, s62")
        k.label("L_wv_pf")
        k(f"s_mul_hi_u32 s52, s73, {magic(per)}")
        k(f"s_mul_i32 s53, s52, {per}")
        k("s_sub_u32 s53, s73, s53")
        k(f"s_add_u32 s52, s52, {S0}")
        k(f"s_cmp_ge_u32 s53, {xi}")
        k("s_cbranch_scc1 L_wv_pfu")
        k(f"s_mul_i32 s53, s53, {64*1280}")
        k("s_lshl_b32 s52, s52, 7")
        k("s_add_u32 s52, s52, s53")
        k("s_add_u32 s52, s52, s72")
        k("buffer_load_dword v201, v20, s[36:39], s52 offen")
        k("s_branch L_wv_pfn")
        k.label("L_wv_pfu")
        k("s_mul_i32 s52, s52, 10")
        k("s_add_u32 s52, s52, s53")
        k(f"s_sub_u32 s52, s52, {xi}")
        k("s_lshl_b32 s52, s52, 13")
        k("buffer_load_dword v201, v21, s[40:43], s52 offen")
        k.label("L_wv_pfn")
        k(f"s_add_u32 s73, s73, {H}")
        k(f"s_cmp_lt_u32 s73, {total}")
        k(f"s_waitcnt vmcnt({P.get('pth', 1)})")
        k("s_cbranch_scc1 L_wv_pf")
    if P.get("xpf") is not None and not P.get("xpa"): xprefetch("L_wv_pre")
    k.label("L_wv_pre")
    k("s_mov_b32 m0, s56")
    k(f"s_mul_i32 s58, s57, {64*3456}")
    fireB()
    k("s_add_u32 s57, s57, 1")
    k("s_cmp_eq_u32 s57, 27")
    k("s_cselect_b32 s57, 0, s57")
    k("s_add_u32 s56, s56, 8192")
    k("s_add_u32 s65, s65, 1")
    k(f"s_cmp_ge_u32 s65, {P.get('n1', 6)}")
    k("s_cbranch_scc1 L_wv_pre2")
    k(f"s_waitcnt vmcnt({TH})")
    if P.get("n0"):
        k(f"s_cmp_gt_u32 s65, {P['n0']}")
        k("s_cbranch_scc1 L_wv_pre2")
        k("s_waitcnt vmcnt(0)")
    k.label("L_wv_pre2")
    k(f"s_cmp_lt_u32 s65, {B0}")
    k("s_cbranch_scc1 L_wv_pre")
    if P.get("xpf") is not None and P.get("xpa"): xprefetch("L_wv_nopre")
    k.label("L_wv_nopre")
    k(f"s_mul_i32 s52, s4, {27 << FS}")
    k(f"s_add_u32 s52, s52, {SYNC_OFF}")
    k(f"v_lshl_add_u32 v6, v0, {FS}, s52")
    k(f"s_lshl_b32 s53, s5, {FS}")
    k("s_add_u32 s52, s52, s53")
    k("v_lshl_add_u32 v8, v0, 2, s52")
    k("s_lshl_b32 s52, s5, 2")
    k(f"s_mul_hi_u32 s72, s52, {magic(7)}")
    k("s_add_u32 s52, s52, 3")
    k(f"s_mul_hi_u32 s73, s52, {magic(7)}")
    k("s_cmp_eq_u32 s72, s73")
    k("s_cselect_b32 s74, 0xffff, -1")
    k("v_bfe_u32 v18, v0, 4, 1")
    k("v_add_u32 v18, s72, v18")
    k("v_and_b32 v16, 15, v0")
    k("v_lshl_add_u32 v16, v16, 4, v18")
    k(f"v_lshlrev_b32 v16, {FS}, v16")
    k(f"v_add_u32 v16, {SYNC2_OFF}, v16")
    k("v_mul_u32_u24 v18, 7, v18")
    k("v_lshrrev_b32 v18, 2, v18")
    k("v_sub_u32 v18, s5, v18")
    k("v_lshl_add_u32 v17, v18, 5, v16")
    k("s_lshl_b32 s75, s4, 2")
    k("s_cmp_lg_u32 s3, 5")
    k("s_cbranch_scc1 L_wv_go")
    k("s_lshl_b32 s53, s68, 2")
    k("s_mov_b64 exec, 0x7ffffff")
    gather(k, P, "v11", "v6")
    k("s_mov_b32 exec_lo, s74")
    gather(k, P, "v19", "v16")
    k("s_mov_b32 exec_lo, 0x7ffffff")
    k("s_waitcnt vmcnt(1)")
    k(f"v_add_u32 v11, {TAGC}, v11")
    lds_wait(k, "L_wv_own", 5)
    push(k, P, "v11", "v6", "s53")
    k("s_mov_b64 exec, -1")
    k.label("L_wv_go")
    k(f"s_mul_i32 s52, s4, {27*10240}")
    k("s_mul_i32 s55, s62, 5120")
    k("s_add_u32 s52, s52, s55")
    k(f"s_add_u32 s52, s52, {AQ_OFF}")
    k("v_lshl_add_u32 v9, v0, 4, s52")
    k("v_add_u32 v10, 4096, v9")
    k("s_mul_i32 s52, s61, 10240")
    k("s_add_u32 s55, s55, s52")
    k("s_add_u32 s57, s68, s61")
    k("s_add_u32 s57, s57, 1")
    k("s_sub_u32 s52, s57, 27")
    k("s_cselect_b32 s57, s57, s52")
    k(f"s_add_u32 s67, s57, {B0-1}")
    k("s_sub_u32 s52, s67, 27")
    k("s_cselect_b32 s67, s67, s52")
    k("s_lshl_b32 s69, s61, 13")
    if B0 < NB: k(f"s_add_u32 s69, s69, {B0*8192}")
    k("s_cmp_lg_u32 s3, 4")
    k("s_cbranch_scc1 L_wv_np")
    k(f"s_mov_b32 s76, {(1 << P.get('need', 4)) - 1}")
    k("s_mov_b32 s77, 0")
    k("s_lshl_b64 s[76:77], s[76:77], s57")
    k("s_lshr_b64 s[78:79], s[76:77], 27")
    k("s_or_b32 s76, s76, s78")
    k("s_and_b32 s76, s76, 0x7ffffff")
    if P.get("ps", 16): k(f"s_sleep {P.get('ps', 16)}")
    k("s_call_b64 s[78:79], L_poll")
    k("v_mov_b32 v30, s63")
    k("ds_write_b32 v2, v30 offset:4")
    k("s_branch L_wv_np2")
    k.label("L_wv_np")
    poll_loop(k, "L_wv_lm", "ds_read_b32 v30, v2 offset:4", ["v_readfirstlane_b32 s63, v30", "s_cmp_lg_u32 s63, 0"], wait="lgkmcnt(0)", sleep=1)
    k.label("L_wv_np2")
    stamp_mid(k, P, 3)
    vm = VM()
    HD = P.get("hd", 7)
    def step(reg, Dn):
        if Dn < HD:
            k(f"s_add_u32 {reg}, {reg}, 2")
        elif Dn == HD:
            k(f"s_sub_u32 {reg}, s68, s61")
            k(f"s_add_u32 {reg}, {reg}, 26")
        else:
            k(f"s_add_u32 {reg}, {reg}, 25")
        k(f"s_sub_u32 s52, {reg}, 27")
        k(f"s_cselect_b32 {reg}, {reg}, s52")
    assert HD > (NB - 1) // 2
    def prepA(D):
        if P.get("need", 4) < 26:
            k("s_lshl_b32 s76, 1, s57")
            ensure(k)
        k("s_mul_i32 s64, s57, 10240")
        step("s57", D + 1)
        k(f"s_add_u32 m0, s55, {ARING + (D % NAD)*20480}")
    def fireA(D):
        for j in range(4): k(f"buffer_load_dwordx4 v9, s[44:47], s64 offen offset:{j*1024} sc1 lds")
        k("s_add_u32 m0, m0, 4096")
        k("s_nop 0")
        k("buffer_load_dwordx4 v10, s[44:47], s64 offen sc1 lds")
        for _ in range(5): vm.issue(("A", D))
    def prepB(Db):
        k(f"s_mul_i32 s58, s67, {64*3456}")
        step("s67", Db + 1)
        k("s_add_u32 s56, s66, s69")
        k("s_add_u32 s69, s69, 16384")
        k(f"s_sub_u32 s52, s69, {NB*8192}")
        k("s_cselect_b32 s69, s69, s52")
    na = 0; nb = (B0 - 1) // 2
    for _ in range(P.get("A0", 2)):
        prepA(na); k("s_nop 0"); fireA(na); na += 1
    for D in range(13):
        lim = D - 1 + NAD if D >= 1 else NAD - 1
        la = [x for x in range(na, min(12, lim) + 1)][:1]
        lx = [x for x in range(na + 1, min(12, lim) + 1)][:1] if P.get("aramp") else []
        lb = [nb] if ((D >= 1 or B0 < NB) and nb <= 12 and (D not in P.get("bskip", []) or nb - D <= 2)) else []
        if lb: prepB(nb)
        if la: prepA(la[0])
        k(f"s_waitcnt vmcnt({vm.wait_for(lambda t: t[1] <= D)})")
        k("s_barrier")
        if la: fireA(la[0])
        if lx:
            prepA(lx[0]); k("s_nop 0"); fireA(lx[0]); na += 1
        if lb:
            k("s_mov_b32 m0, s56"); k("s_nop 0"); fireB()
            for _ in range(4): vm.issue(("B", nb))
            nb += 1
        na += len(la)
    assert na == 13 and nb >= 13
    k("s_cmp_lg_u32 s3, 4")
    k("s_cbranch_scc1 L_wv_nobump")
    bump(k)
    k.label("L_wv_nobump")
    k("s_mov_b32 s53, 9")
    k("s_branch L_c_ld")
    k.label("L_wv_cons")
    VAR = 48; VBR = 49; VAC = 51; VBC = 52; VO = 54; VRED = 55; VARS = 57
    FR = 64; ACC = 120
    k("s_and_b32 s60, s3, 1")
    k("s_lshr_b32 s61, s3, 1")
    k("s_mul_i32 s52, s61, 5120")
    k(f"v_lshl_add_u32 v{VAR}, v0, 4, s52")
    k("s_lshl_b32 s54, s61, 2")
    k("v_or_b32 v28, s54, v24")
    k("v_xor_b32 v28, v28, v0")
    k("s_lshl_b32 s52, s61, 10")
    k(f"s_add_u32 s52, s52, {STG}")
    k(f"v_lshl_add_u32 v{VARS}, v28, 4, s52")
    k("s_lshl_b32 s63, s60, 1")
    k("s_add_u32 s63, s63, s61")
    k("v_bfe_u32 v28, v0, 2, 2")
    k("v_lshl_add_u32 v28, v24, 3, v28")
    k("v_lshlrev_b32 v28, 7, v28")
    k("v_bfe_u32 v29, v0, 3, 2")
    k("v_xor_b32 v29, s63, v29")
    k("v_lshl_add_u32 v28, v29, 5, v28")
    k("v_and_b32 v29, 3, v0")
    k("v_lshl_add_u32 v28, v29, 3, v28")
    k("s_lshl_b32 s52, s61, 12")
    k(f"s_add_u32 s52, s52, {BRING}")
    k(f"v_add_u32 v{VBR}, s52, v28")
    k(f"v_xor_b32 v{VBR+1}, 32, v{VBR}")
    k("s_lshl_b32 s52, s5, 2")
    k("s_add_u32 s52, s52, s63")
    k(f"s_mul_hi_u32 s54, s52, {magic(7)}")
    k("s_mul_i32 s64, s54, 7")
    k("s_sub_u32 s52, s52, s64")
    k("s_mov_b32 s64, s54")
    k("s_mul_i32 s54, s64, 143360")
    k(f"s_add_u32 s54, s54, {WVF_OFF}")
    k("v_bfe_u32 v28, v0, 2, 1")
    k("v_lshlrev_b32 v28, 10, v28")
    k("v_bfe_u32 v29, v0, 3, 1")
    k("v_lshl_add_u32 v28, v29, 6, v28")
    k("v_and_b32 v29, 3, v0")
    k("v_lshl_add_u32 v28, v29, 4, v28")
    k("v_lshlrev_b32 v29, 4, v25")
    k("s_cmp_eq_u32 s52, 6")
    k("s_cselect_b64 vcc, -1, 0")
    k("s_and_b32 s64, s52, 6")
    k("s_lshl_b32 s64, s64, 10")
    k("s_and_b32 s52, s52, 1")
    k("s_lshl_b32 s52, s52, 7")
    k("s_add_u32 s54, s54, s64")
    k("s_add_u32 s54, s54, s52")
    k("v_cndmask_b32 v28, v28, v29, vcc")
    k("v_lshrrev_b32 v29, 1, v24")
    k("v_lshl_add_u32 v28, v29, 8, v28")
    k("v_add_u32 v28, s54, v28")
    for j in range(5):
        k(f"s_add_u32 s52, s70, {j}" if j < 3 else f"s_add_u32 s52, s71, {j-3}")
        k(f"s_lshr_b32 s{72+j}, s52, 1")
        k(f"s_mul_i32 s{72+j}, s{72+j}, 7168")
        k("s_and_b32 s52, s52, 1")
        k("s_lshl_b32 s52, s52, 9")
        k(f"s_add_u32 s{72+j}, s{72+j}, s52")
    k("s_mov_b32 s77, 0x40000000")
    k("v_and_b32 v29, 1, v24")
    k("v_cmp_eq_u32 vcc, 1, v29")
    for g in range(3):
        k(f"v_mov_b32 v29, s{72+2*g}")
        k(f"v_mov_b32 v30, s{73+2*g}")
        k("v_cndmask_b32 v29, v29, v30, vcc")
        k(f"v_add_u32 v{58+g}, v28, v29")
    for i in range(40): k(f"v_mov_b32 v{ACC+i}, 0")
    k("s_mul_i32 s52, s3, 5120")
    k(f"s_add_u32 s52, s52, {RED}")
    k(f"v_lshl_add_u32 v{VRED}, v0, 4, s52")
    k("s_xor_b32 s52, s3, 2")
    k("s_mul_i32 s52, s52, 5120")
    k(f"s_add_u32 s52, s52, {RED}")
    k(f"v_lshl_add_u32 v{VRED+1}, v0, 4, s52")
    def reads(fb, va, aoff, astr, vb):
        f = FR + fb * 28
        out = [f"ds_read_b64_tr_b16 v[{f+20+u*4+sec*2}:{f+21+u*4+sec*2}], v{vb+u} offset:{sec*512}" for u in range(2) for sec in range(2)]
        return out + [f"ds_read_b128 v[{f+j*4}:{f+j*4+3}], v{va} offset:{aoff + j*astr}" for j in range(5)]
    def nextB():
        return [f"v_add_u32 v{VBC}, s57, v{VBR}", f"v_add_u32 v{VBC+1}, s57, v{VBR+1}", "s_add_u32 s57, s57, 8192",
                f"s_cmp_eq_u32 s57, {NB*8192}", "s_cselect_b32 s57, 0, s57"]
    def nextA():
        return [f"v_add_u32 v{VAC}, s56, v{VAR}", "s_add_u32 s56, s56, 20480", f"s_cmp_eq_u32 s56, {NAD*20480}", "s_cselect_b32 s56, 0, s56"]
    def mf(fb, j, u):
        f = FR + fb * 28; a = ACC + (u * 5 + j) * 4
        return f"v_mfma_f32_16x16x32_bf16 v[{a}:{a+3}], v[{f+j*4}:{f+j*4+3}], v[{f+20+u*4}:{f+23+u*4}], v[{a}:{a+3}]"
    def mfmas(fb, fill, waits):
        issued = 0
        for j in range(5):
            for u in range(2):
                for _ in range(1 if (P.get("r1", 1) and fill and fill[0].startswith("ds_read_b128")) else (2 if fill and fill[0].startswith("ds_") else P.get("ro", 3))):
                    if fill:
                        x = fill.pop(0); k(x)
                        if x.startswith("ds_"): issued += 1
                if waits and u == 0 and j in (0, 2):
                    k(f"s_waitcnt lgkmcnt({3 + issued if j == 0 else issued})")
                k(mf(fb, j, u))
        while fill: k(fill.pop(0))
    k("s_mov_b32 s56, 0"); k("s_mov_b32 s57, 8192")
    for x in nextA() + nextB(): k(x)
    k("s_mov_b32 s65, 0")
    k("s_barrier")
    for x in reads(1, VARS, 0, 2048, VBR): k(x)
    k("s_waitcnt lgkmcnt(0)")
    k("s_branch L_wv_cent")
    k.label("L_wv_cloop")
    k("s_waitcnt lgkmcnt(0)")
    k("s_barrier")
    k.label("L_wv_cent")
    mfmas(1, reads(0, VAC, ARING, 1024, VBC) + nextB(), False)
    mfmas(0, reads(1, VAC, ARING + 10240, 1024, VBC) + nextA() + nextB() + ["s_add_u32 s65, s65, 1"], True)
    k("s_cmp_lt_u32 s65, 13")
    k("s_cbranch_scc1 L_wv_cloop")
    k("s_waitcnt lgkmcnt(0)")
    for u in (1, 0):
        for j in range(5): k(mf(1, j, u))
    stamp_mid(k, P, 0)
    k("s_nop 2")
    for j in range(5):
        a = ACC + (5 + j) * 4
        k(f"ds_write_b128 v{VRED}, v[{a}:{a+3}] offset:{j*1024}")
    k("s_waitcnt lgkmcnt(0)")
    k("s_barrier")
    for j in range(5): k(f"ds_read_b128 v[{FR+28+j*4}:{FR+28+j*4+3}], v{VRED+1} offset:{j*1024}")
    for j in range(5):
        k(f"s_waitcnt lgkmcnt({4-j})")
        for i in range(4): k(f"v_add_f32 v{ACC+j*4+i}, v{ACC+j*4+i}, v{FR+28+j*4+i}")
        t = FR + j * 2
        k(f"v_cvt_pk_bf16_f32 v{t}, v{ACC+j*4}, v{ACC+j*4+1}")
        k(f"v_cvt_pk_bf16_f32 v{t+1}, v{ACC+j*4+2}, v{ACC+j*4+3}")
        if j & 1 or j == 4:
            t = FR + (j >> 1) * 4
            k("s_nop 1")
            k(f"v_permlane16_swap_b32 v{t}, v{t+2}")
            k(f"v_permlane16_swap_b32 v{t+1}, v{t+3}")
            k(f"buffer_store_dwordx4 v[{t}:{t+3}], v{58 + (j >> 1)}, s[44:47], 0 offen sc1")
    k("s_branch L_c_cons")

def _x5(pos):
    out = []
    for c in range(5):
        oth = [(c + j) % 5 for j in range(1, 5)]; oth.insert(pos[c], 5 + c)
        out.append([c] + oth + [5 + i for i in range(5) if i != c])
    return out
X5 = {"a": _x5([0, 1, 2, 3, 4]), "b": _x5([1, 1, 2, 3, 3]), "c": _x5([2, 2, 2, 2, 2])}

def xr_role(k, P):
    k("s_and_b32 s62, s3, 3")
    k("s_cmp_lt_u32 s3, 4")
    k("s_cbranch_scc1 L_xr_cons")
    ords = xr_orders(P) if not P.get("x5") else X5[P["x5"]]
    tabs = [sum(x << (4 * i) for i, x in enumerate(o)) for o in ords]
    k(f"s_mov_b32 s66, {hex(tabs[0] & 0xffffffff)}")
    k(f"s_mov_b32 s67, {hex(tabs[0] >> 32)}")
    if P.get("x5"):
        k(f"s_mul_i32 s50, s60, {P.get('x5m', 0)}")
        k("s_add_u32 s50, s50, s5")
        k(f"s_mul_hi_u32 s51, s50, {magic(5)}")
        k("s_mul_i32 s51, s51, 5")
        k("s_sub_u32 s50, s50, s51")
    for c in range(1, len(tabs)):
        k(f"s_cmp_eq_u32 s50, {c}")
        k(f"s_cselect_b32 s66, {hex(tabs[c] & 0xffffffff)}, s66")
        k(f"s_cselect_b32 s67, {hex(tabs[c] >> 32)}, s67")
    VX = 4; VU = 12
    k("v_lshrrev_b32 v28, 3, v0")
    k("v_and_b32 v29, 7, v0")
    k("v_lshrrev_b32 v30, 4, v0")
    k("v_xor_b32 v29, v29, v30")
    k("v_mul_u32_u24 v28, 1280, v28")
    k("v_lshl_add_u32 v28, v29, 4, v28")
    k("s_lshl_b32 s51, s4, 2")
    k("s_add_u32 s51, s51, s62")
    k(f"s_mul_i32 s52, s51, {64*1280}")
    k(f"v_add_u32 v{VX}, s52, v28")
    k(f"v_xor_b32 v{VX+1}, 64, v{VX}")
    k(f"v_add_u32 v{VX+1}, {8*1280}, v{VX+1}")
    for i in range(2, 8): k(f"v_add_u32 v{VX+i}, {16*1280}, v{VX+i-2}")
    k("v_and_b32 v29, 15, v0")
    k("v_lshlrev_b32 v31, 1, v30")
    k("v_xor_b32 v29, v29, v31")
    k("v_mul_u32_u24 v28, 1280, v30")
    k("v_lshl_add_u32 v28, v29, 4, v28")
    k(f"s_mul_i32 s52, s62, {16*1280}")
    k("s_lshl_b32 s53, s5, 8")
    k("s_add_u32 s52, s52, s53")
    k(f"v_add_u32 v{VU}, s52, v28")
    k(f"v_add_u32 v{VU+1}, {4*1280}, v{VU}")
    k(f"v_xor_b32 v{VU+2}, 128, v{VU}")
    k(f"v_add_u32 v{VU+2}, {8*1280}, v{VU+2}")
    k(f"v_add_u32 v{VU+3}, {4*1280}, v{VU+2}")
    k("s_lshl_b32 s55, s62, 13")
    k("s_lshl_b32 s56, s62, 12")
    k("s_add_u32 s56, s56, 32768")
    k("s_mov_b32 s60, 0")
    k("s_mov_b32 s65, 0")
    k("s_waitcnt lgkmcnt(0)")
    srd(k, 28, 8, 2048 * 640 * 2)
    srd(k, 32, 16, 640 * 640 * 2)
    XL = P.get("XL", 7)
    stamp_mid(k, P, 2)
    k.label("L_xr_lloop")
    k("s_and_b32 s57, s66, 15")
    k("s_lshr_b64 s[66:67], s[66:67], 4")
    k("s_add_u32 m0, s56, s60")
    k("s_lshl_b32 s58, s57, 7")
    k(f"s_mul_i32 s59, s57, {64*1280}")
    for n in range(12):
        if n < 4: k(f"buffer_load_dwordx4 v{VU+n}, s[32:35], s59 offen lds")
        else: k(f"buffer_load_dwordx4 v{VX+n-4}, s[28:31], s58 offen lds")
        if n < 11:
            k("s_add_u32 m0, m0, 1024" if n != 3 else "s_add_u32 m0, s55, s60")
            if n + 1 == XL:
                k("s_cmp_lg_u32 s65, 1")
                k("s_cbranch_scc1 L_xr_ne")
                k(f"s_waitcnt vmcnt({XL})")
                stamp_mid(k, P, 3)
                k("s_barrier")
                k.label("L_xr_ne")
            else: k("s_nop 0")
    k(f"s_add_u32 s60, s60, {XSTG}")
    k(f"s_cmp_eq_u32 s60, {3*XSTG}")
    k("s_cselect_b32 s60, 0, s60")
    k("s_add_u32 s65, s65, 1")
    k("s_cmp_le_u32 s65, 2")
    k("s_cbranch_scc1 L_xr_lloop")
    k("s_waitcnt vmcnt(12)")
    k("s_barrier")
    k("s_cmp_lt_u32 s65, 10")
    k("s_cbranch_scc1 L_xr_lloop")
    k("s_waitcnt vmcnt(0)")
    k("s_barrier")
    srd(k, 44, 24, WS_BYTES)
    k("s_lshl_b32 s52, s4, 5")
    k("v_add_u32 v16, s52, v0")
    k(f"v_lshlrev_b32 v16, {FS}, v16")
    k(f"v_add_u32 v16, {SYNC2_OFF}, v16")
    k("v_mov_b32 v17, v16")
    k("s_lshl_b32 s75, s5, 2")
    k("s_add_u32 s75, s75, 96")
    k("s_mov_b32 s74, -1")
    k("s_mov_b32 s53, 4")
    k("s_cmp_lg_u32 s3, 5")
    k("s_cbranch_scc1 L_c_ld")
    k("s_mov_b32 exec_hi, 0")
    gather(k, P, "v19", "v16")
    k("s_mov_b64 exec, -1")
    k("s_branch L_c_ld")
    k.label("L_xr_cons")
    VXR = 4; VUR = 6; VXC = 10; VUC = 12; VO2 = 16
    XACC = 128
    k("s_and_b32 s61, s62, 1")
    k("s_lshr_b32 s63, s62, 1")
    k("v_and_b32 v28, 15, v0")
    k("v_lshrrev_b32 v31, 4, v0")
    k("v_bfe_u32 v29, v0, 1, 3")
    k("v_xor_b32 v29, v29, v31")
    k("v_lshlrev_b32 v29, 4, v29")
    k("v_lshl_add_u32 v28, v28, 7, v29")
    k("s_lshl_b32 s52, s61, 14")
    k(f"v_add_u32 v{VXR}, s52, v28")
    k(f"v_xor_b32 v{VXR+1}, 64, v{VXR}")
    k("v_bfe_u32 v29, v0, 2, 2")
    k("v_lshl_add_u32 v28, v31, 3, v29")
    k("v_lshlrev_b32 v28, 8, v28")
    k("v_bfe_u32 v29, v0, 2, 3")
    k("s_lshl_b32 s52, s63, 2")
    k("v_xor_b32 v29, s52, v29")
    k("v_lshl_add_u32 v28, v29, 5, v28")
    k("v_and_b32 v29, 3, v0")
    k("v_lshl_add_u32 v28, v29, 3, v28")
    k(f"v_add_u32 v{VUR}, 32768, v28")
    for eb in range(1, 4): k(f"v_xor_b32 v{VUR+eb}, {32*eb}, v{VUR}")
    k("s_lshl_b32 s54, s4, 1")
    k("s_add_u32 s54, s54, s61")
    k("s_mul_i32 s52, s54, 163840")
    k(f"s_add_u32 s52, s52, {XRF_OFF}")
    k("s_lshl_b32 s53, s5, 1")
    k("s_add_u32 s53, s53, s63")
    k("s_lshl_b32 s53, s53, 14")
    k("s_add_u32 s52, s52, s53")
    k("v_and_b32 v28, 15, v0")
    k("v_bfe_u32 v29, v0, 4, 1")
    k("v_lshl_add_u32 v28, v29, 5, v28")
    k("v_lshrrev_b32 v29, 5, v0")
    k("v_lshl_add_u32 v28, v29, 4, v28")
    k(f"v_lshl_add_u32 v{VO2}, v28, 4, s52")
    k("s_mov_b32 s68, 4096"); k("s_mov_b32 s69, 8192"); k("s_mov_b32 s70, 12288")
    for i in range(128): k(f"v_mov_b32 v{XACC+i}, 0")
    k("s_waitcnt lgkmcnt(0)")
    srd(k, 44, 24, WS_BYTES)
    FB = [32, 80]
    def acc(eb, mb): return XACC + (mb * 4 + eb) * 4
    def ureads(ks, dst, va):
        return [f"ds_read_b64_tr_b16 v[{dst+eb*4+sec*2}:{dst+eb*4+sec*2+1}], v{va+eb} offset:{(32*ks + 4*sec)*256}" for eb in range(4) for sec in range(2)]
    def xr_reads(ks, buf):
        f = FB[buf]
        return ureads(ks, f + 32, VUC) + [f"ds_read_b128 v[{f+mb*4}:{f+mb*4+3}], v{VXC+ks} offset:{mb*2048}" for mb in range(8)]
    def newstage():
        return [f"v_add_u32 v{VXC+ks}, s64, v{VXR+ks}" for ks in range(2)] + [f"v_add_u32 v{VUC+eb}, s64, v{VUR+eb}" for eb in range(4)] + \
               [f"s_add_u32 s64, s64, {XSTG}", f"s_cmp_eq_u32 s64, {3*XSTG}", "s_cselect_b32 s64, 0, s64"]
    def mf(a, u, x): return f"v_mfma_f32_16x16x32_bf16 v[{a}:{a+3}], v[{u}:{u+3}], v[{x}:{x+3}], v[{a}:{a+3}]"
    def mfmas(buf, fill):
        f = FB[buf]
        for mb in range(8):
            for eb in range(4):
                k(mf(acc(eb, mb), f + 32 + eb * 4, f + mb * 4))
                if fill: k(fill.pop(0))
        assert not fill
    k("s_mov_b32 s64, 0")
    k("s_mov_b32 s65, 0")
    for x in newstage(): k(x)
    k("s_barrier")
    for x in xr_reads(0, 0): k(x)
    k.label("L_xr_cloop")
    k("s_waitcnt lgkmcnt(0)")
    mfmas(0, xr_reads(1, 1) + newstage() + ["s_add_u32 s65, s65, 1", "s_cmp_eq_u32 s65, 8"])
    k("s_waitcnt lgkmcnt(0)")
    k("s_barrier")
    k("s_cbranch_scc1 L_xr_tail")
    mfmas(1, xr_reads(0, 0))
    k("s_branch L_xr_cloop")
    k.label("L_xr_tail")
    UF = [32, 48, 64, 80]; XB = [20, 24, 96, 100, 104, 108, 112, 116]; OT = 120
    q = []
    def lds(s_, tag): k(s_); q.append(tag)
    def ur(t): return ureads(t & 1, UF[t], VUC if t < 2 else VUR)
    def xread(n):
        mb, t = n // 4, n % 4
        r = XB[n % 8]
        return f"ds_read_b128 v[{r}:{r+3}], v{(VXC if t < 2 else VXR) + (t & 1)} offset:{mb*2048}"
    pre = [(x, ("u", 0)) for x in ur(0)] + [(xread(0), ("x", 0))] + [(x, ("u", 1)) for x in ur(1)] + [(xread(1), ("x", 1))]
    f = FB[1]; n = 0
    for mb in range(8):
        for eb in range(4):
            k(mf(acc(eb, mb), f + 32 + eb * 4, f + mb * 4))
            if pre: lds(*pre.pop(0))
            n += 1
            if n == 20:
                k("s_barrier")
                pre = [(x, ("u", 2)) for x in ur(2)]
    assert not pre
    outq = []; osel = [0]
    def out_instrs(mb):
        r = []
        for p in range(2):
            t = OT + osel[0] * 4; osel[0] ^= 1
            a0 = acc(2 * p, mb); a1 = acc(2 * p + 1, mb)
            so = ["0", "s68", "s69", "s70"][2 * p + (mb >> 2)]
            r.append([f"v_cvt_pk_bf16_f32 v{t}, v{a0}, v{a0+1}", f"v_cvt_pk_bf16_f32 v{t+1}, v{a0+2}, v{a0+3}",
                      f"v_cvt_pk_bf16_f32 v{t+2}, v{a1}, v{a1+1}", f"v_cvt_pk_bf16_f32 v{t+3}, v{a1+2}, v{a1+3}",
                      None, None, f"v_permlane16_swap_b32 v{t}, v{t+2}", f"v_permlane16_swap_b32 v{t+1}, v{t+3}",
                      f"buffer_store_dwordx4 v[{t}:{t+3}], v{VO2}, s[44:47], {so} offen offset:{(mb & 3)*1024} sc1"])
        return r
    nx = 2
    for n in range(32):
        mb, t = n // 4, n % 4
        if n == 0:
            lds(xread(2), ("x", 2)); nx = 3
            for x in ur(3): lds(x, ("u", 3))
        while nx < 32 and nx <= n + 5: lds(xread(nx), ("x", nx)); nx += 1
        need = max(i for i, tg in enumerate(q) if tg == ("x", n) or (mb == 0 and tg == ("u", t)))
        k(f"s_waitcnt lgkmcnt({min(15, len(q) - 1 - need)})")
        for eb in range(4):
            k(mf(acc(eb, mb), UF[t] + eb * 4, XB[n % 8]))
            if 4 * t + eb >= 6:
                for _ in range(2):
                    if outq:
                        x = outq.pop(0)
                        if x: k(x)
        if t == 3:
            assert not outq
            outq = sum(out_instrs(mb), [])
    stamp_mid(k, P, 0)
    k("s_nop 7")
    for x in outq: k(x if x else "s_nop 0")
    k("s_barrier")

def mtmask(t):
    m = 0
    for eb in range(4 * t, 4 * t + 4):
        g, r = eb >> 3, eb & 7
        if g == 4: mt = 2 * (r >> 1) + 1
        else: mt = 2 * g + (1 if 3 <= r < 6 else 0)
        m |= 1 << mt
    return m

def c_ids(k):
    k("s_and_b32 s52, s2, 7")
    k("s_lshr_b32 s54, s2, 3")
    k("s_lshr_b32 s4, s52, 1")
    k("s_lshl_b32 s4, s4, 2")
    k("s_and_b32 s55, s54, 3")
    k("s_add_u32 s4, s4, s55")
    k("s_and_b32 s5, s52, 1")
    k("s_lshl_b32 s5, s5, 3")
    k("s_lshr_b32 s54, s54, 2")
    k("s_add_u32 s5, s5, s54")

COS = {
 "A": [[0,1,2,6,3,4,5,7,8,9],[0,1,3,2,7,4,5,6,8,9],[0,1,4,2,3,8,5,6,7,9],[0,1,5,2,3,4,9,6,7,8]],
 "B": [[0,1,5,2,3,4,9,6,7,8],[0,2,1,6,3,4,5,7,8,9],[0,3,1,2,7,4,5,6,8,9],[0,4,1,2,3,8,5,6,7,9]],
 "C": [[0,1,2,6,3,4,5,7,8,9],[1,0,3,7,2,4,5,6,8,9],[0,1,4,8,2,3,5,6,7,9],[1,0,5,9,2,3,4,6,7,8]],
 "D": [[0,1,2,3,6,4,5,7,8,9],[1,0,3,4,7,2,5,6,8,9],[0,1,4,5,2,8,3,6,7,9],[1,0,5,2,3,9,4,6,7,8]],
 "E": [[0,1,2,3,4,6,5,7,8,9],[1,0,3,2,5,7,4,6,8,9],[0,1,4,2,3,5,8,6,7,9],[1,0,5,2,3,4,9,6,7,8]],
}
def phase_c(k, P):
    NX = P.get("NX", 4); NW = P.get("NW", 4)
    XR = 0; WR = NX * 16384; STG = WR + NW * 14336
    assert STG + 30720 <= LCNT and STG <= 124 * 1024 and 144 * 1024 <= STG + 30720
    order = P.get("corder", list(range(10)))
    k.label("L_c_cons")
    arrive(k)
    k.label("L_c_cons2")
    stamp_mid(k, P, 1)
    c_ids(k)
    VXR = 4; VWR = 5; VXC = 6; VWC = 7; VEW = 8; VER = 9; VST = 10
    ACC = 24; FR = 80; VRD = 152
    k("s_lshl_b32 s52, s3, 11")
    k(f"v_lshl_add_u32 v{VXR}, v0, 4, s52")
    k(f"v_lshlrev_b32 v{VWR}, 4, v0")
    k(f"v_add_u32 v{VWR}, {WR}, v{VWR}")
    for i in range(56): k(f"v_mov_b32 v{ACC+i}, 0")
    k("s_mul_i32 s52, s3, 7680")
    k(f"s_add_u32 s52, s52, {STG}")
    k("v_and_b32 v18, 15, v0")
    k("v_mul_u32_u24 v18, 240, v18")
    k("v_lshrrev_b32 v19, 4, v0")
    k("v_lshl_add_u32 v20, v19, 4, v18")
    k(f"v_add_u32 v{VEW}, s52, v20")
    k("v_lshl_add_u32 v20, v19, 3, v18")
    k(f"v_add_u32 v{VER}, s52, v20")
    k(f"s_mov_b32 s53, {magic(14)}")
    k("s_lshl_b32 s54, s4, 2")
    k("s_add_u32 s54, s54, s3")
    k(f"s_mul_i32 s54, s54, {32*3456}")
    k("s_mul_i32 s55, s5, 224")
    k("s_add_u32 s54, s54, s55")
    k("s_sub_u32 s55, 3456, s55")
    k("v_mov_b32 v23, 0x7fffffff")
    for i in range(7):
        k(f"v_add_u32 v18, {64*i}, v0")
        k("v_mul_hi_u32 v19, v18, s53")
        k("v_mul_u32_u24 v20, 14, v19")
        k("v_sub_u32 v18, v18, v20")
        k("v_lshlrev_b32 v18, 4, v18")
        k("v_cmp_gt_u32 vcc, s55, v18")
        k("v_mul_u32_u24 v20, 240, v19")
        k(f"v_add3_u32 v{VRD+i}, v20, v18, s52")
        k("v_mul_u32_u24 v20, 3456, v19")
        k(f"v_add3_u32 v{VST+i}, v20, v18, s54")
        k(f"v_cndmask_b32 v{VST+i}, v23, v{VST+i}, vcc")
    srd(k, 28, 20, 2048 * 1728 * 2)
    k("s_mov_b32 s56, 0"); k("s_mov_b32 s57, 0")
    def newstage():
        return [f"v_add_u32 v{VXC}, s56, v{VXR}", f"v_add_u32 v{VWC}, s57, v{VWR}"]
    def advance():
        return ["s_add_u32 s56, s56, 16384", f"s_cmp_eq_u32 s56, {NX*16384}",
                "s_cselect_b32 s56, 0, s56", "s_add_u32 s57, s57, 14336", f"s_cmp_eq_u32 s57, {NW*14336}", "s_cselect_b32 s57, 0, s57"]
    def reads(ks):
        f = FR + ks * 36
        out = [f"ds_read_b128 v[{f+28+u*4}:{f+31+u*4}], v{VXC} offset:{XR + u*1024 + ks*8192}" for u in range(0 if P.get("ab_noxr") else 2)]
        return out + [f"ds_read_b128 v[{f+b*4}:{f+b*4+3}], v{VWC} offset:{ks*7168 + b*1024}" for b in range(7)]
    RLX = P.get("rlx", 1)
    def mfmas(ks, fill, waits):
        f = FR + ks * 36; issued = 0
        rd = [x for x in fill if x.startswith("ds_")]; ot = [x for x in fill if not x.startswith("ds_")]
        slots = P.get("rs", [0, 1, 2, 4, 5, 7, 8, 10, 11]) if RLX else list(range(9))
        last = None
        for b in range(7):
            for u in range(2):
                i = 2 * b + u
                if waits and u == 0:
                    n = min(15, 6 - b + issued)
                    if not (RLX and b >= 1 and b != P.get("wb", 3) and rd is not None and len(fill)):
                        k(f"s_waitcnt lgkmcnt({n if not (RLX and len(fill)) else (7 - P.get('wb', 3) if b == 0 else issued)})")
                a = ACC + (u * 7 + b) * 4
                k(f"v_mfma_f32_16x16x32_bf16 v[{a}:{a+3}], v[{f+b*4}:{f+b*4+3}], v[{f+28+u*4}:{f+31+u*4}], v[{a}:{a+3}]")
                if rd and i in slots:
                    k(rd.pop(0)); issued += 1
                elif ot and (not ot[0].startswith("v_add") or not rd):
                    k(ot.pop(0))
                    if ot and not rd: k(ot.pop(0))
        assert not rd
        while ot: k(ot.pop(0))
    for x in newstage() + advance(): k(x)
    k("s_mov_b32 s65, 0")
    k("s_barrier")
    stamp_mid(k, P, 2)
    for x in reads(0): k(x)
    k.label("L_c_cloop")
    EO = P.get("eo", 1)
    OTT = 160
    def cvts(u):
        out = []
        for p in range(4):
            t = OTT + (p * 2 + u) * 4
            a0 = ACC + (u * 7 + 2 * p) * 4; a1 = a0 + 4
            out += [f"v_cvt_pk_bf16_f32 v{t}, v{a0}, v{a0+1}", f"v_cvt_pk_bf16_f32 v{t+1}, v{a0+2}, v{a0+3}"]
            if p < 3:
                out += [f"v_cvt_pk_bf16_f32 v{t+2}, v{a1}, v{a1+1}", f"v_cvt_pk_bf16_f32 v{t+3}, v{a1+2}, v{a1+3}",
                        f"ds_write_b128 v{VEW}, v[{t}:{t+3}] offset:{u*16*240 + p*64}"]
            else:
                out += [f"ds_write_b64 v{VER}, v[{t}:{t+1}] offset:{u*16*240 + 192}"]
        return out
    RB = 192
    def rb(i): return f"ds_read_b128 v[{RB+i*4}:{RB+i*4+3}], v{VRD+i}"
    def st(i): return f"buffer_store_dwordx4 v[{RB+i*4}:{RB+i*4+3}], v{VST+i}, s[28:31], 0 offen {P.get('k2_stflags', '')}"
    def mf1(ks, b, u):
        f = FR + ks * 36; a = ACC + (u * 7 + b) * 4
        return f"v_mfma_f32_16x16x32_bf16 v[{a}:{a+3}], v[{f+b*4}:{f+b*4+3}], v[{f+28+u*4}:{f+31+u*4}], v[{a}:{a+3}]"
    if not EO:
        mfmas(0, reads(1) + ["s_add_u32 s65, s65, 1", "s_cmp_eq_u32 s65, 10"] + newstage(), True)
        k("s_cbranch_scc1 L_c_cdone")
        if not RLX: k("s_waitcnt lgkmcnt(0)")
        k("s_barrier")
        mfmas(1, reads(0) + advance(), bool(RLX))
        k("s_branch L_c_cloop")
        k.label("L_c_cdone")
        mfmas(1, [], True)
        stamp_mid(k, P, 3)
        k("s_nop 4")
        for x in cvts(0) + cvts(1): k(x)
        for i in range(7): k(rb(i))
        for i in range(7):
            k(f"s_waitcnt lgkmcnt({6-i})"); k(st(i))
    else:
        mfmas(0, reads(1) + newstage(), True)
        if not RLX: k("s_waitcnt lgkmcnt(0)")
        k("s_barrier")
        mfmas(1, reads(0) + advance() + ["s_add_u32 s65, s65, 1", "s_cmp_lt_u32 s65, 9"], bool(RLX))
        k("s_cbranch_scc1 L_c_cloop")
        rd = reads(1)
        k("s_waitcnt lgkmcnt(4)")
        n = 0
        for b in range(7):
            if b == 3: k(f"s_waitcnt lgkmcnt({n})")
            k(mf1(0, b, 0)); k(rd.pop(0)); n += 1
        for b in range(4):
            k(mf1(0, b, 1))
            if rd: k(rd.pop(0))
        for b in range(7):
            k(f"s_waitcnt lgkmcnt({6-b})")
            k(mf1(1, b, 0))
        fill = cvts(0) + [rb(0), rb(1), rb(2)]
        rest = [mf1(0, b, 1) for b in range(4, 7)] + [mf1(1, b, 1) for b in range(7)]
        for i, m in enumerate(rest):
            k(m)
            if i >= 1:
                for _ in range(3):
                    if fill: k(fill.pop(0))
        assert not fill
        stamp_mid(k, P, 3)
        c1 = cvts(1)
        for i in range(3):
            k(f"s_waitcnt lgkmcnt({2-i})"); k(st(i))
        for x in c1: k(x)
        for i in range(3, 7): k(rb(i))
        for i in range(3, 7):
            k(f"s_waitcnt lgkmcnt({6-i})"); k(st(i))
    stamp_end(k, P, 0, 44, 112, 3)
    k("s_endpgm")
    k.label("L_c_ld")
    c_ids(k)
    k("s_and_b32 s62, s3, 1")
    k("s_lshl_b32 s52, s4, 4")
    k("s_add_u32 s52, s52, s5")
    k(f"s_lshl_b32 s52, s52, {FS}")
    k(f"s_add_u32 s52, s52, {SYNC2_OFF}")
    k("v_lshl_add_u32 v8, v0, 2, s52")
    k("s_mov_b32 s63, 0")
    CO = P.get("co")
    if isinstance(CO, str) and CO in COS: CO = COS[CO]
    if isinstance(CO, list):
        for o in CO:
            assert sorted(o) == list(range(10))
            for i in range(max(P["wall"], P["xall"])): assert o[i] // 2 == i // 2
    if CO:
        tabs = [sum(x << (4 * i) for i, x in enumerate(o)) for o in (CO if isinstance(CO, list) else xr_orders({"xorder": CO}))]
        k("s_add_u32 s52, s4, s5")
        k(f"s_and_b32 s52, s52, {len(tabs) - 1}")
        k(f"s_mov_b32 s68, {hex(tabs[0] & 0xffffffff)}")
        k(f"s_mov_b32 s69, {hex(tabs[0] >> 32)}")
        for c in range(1, len(tabs)):
            k(f"s_cmp_eq_u32 s52, {c}")
            k(f"s_cselect_b32 s68, {hex(tabs[c] & 0xffffffff)}, s68")
            k(f"s_cselect_b32 s69, {hex(tabs[c] >> 32)}, s69")
    def soff(i, mul):
        if not CO: k(f"s_mov_b32 s58, {order[i]*mul}")
        else:
            k(f"s_bfe_u32 s58, {'s68' if i < 8 else 's69'}, {hex(((i % 8) * 4) | (4 << 16))}")
            k(f"s_mul_i32 s58, s58, {mul}")
    k("s_cmp_ge_u32 s3, 6")
    k("s_cbranch_scc1 L_c_xl")
    k("s_mul_i32 s52, s5, 7")
    k("s_add_u32 s54, s52, 6")
    k("s_lshr_b32 s52, s52, 2")
    k("s_lshr_b32 s54, s54, 2")
    k("s_min_u32 s54, s54, 26")
    k("s_sub_u32 s52, s54, s52")
    k("s_mov_b32 s66, 1")
    k("s_cmp_ge_u32 s52, 1")
    k("s_cselect_b32 s66, 0x101, s66")
    k("s_cmp_ge_u32 s52, 2")
    k("s_cselect_b32 s66, 0x10101, s66")
    k("s_mul_i32 s52, s5, 143360")
    k(f"s_add_u32 s52, s52, {WVF_OFF}")
    k("s_mul_i32 s55, s62, 7168")
    k("s_add_u32 s52, s52, s55")
    k("v_lshl_add_u32 v4, v0, 4, s52")
    k("v_add_u32 v5, 4096, v4")
    k("v_mov_b32 v6, v4")
    k("s_cmp_lg_u32 s5, 15")
    k("s_cbranch_scc1 L_c_nt15")
    k("v_mov_b32 v5, 0x7fffffff")
    k("v_and_b32 v7, 8, v0")
    k("v_cmp_eq_u32 vcc, 0, v7")
    k("s_nop 1")
    k("v_cndmask_b32 v6, v5, v4, vcc")
    k.label("L_c_nt15")
    k(f"s_add_u32 s55, s55, {WR}")
    k("s_barrier")
    k("s_cmp_lg_u32 s3, 5")
    k("s_cbranch_scc1 L_c_nopush")
    k("s_cmp_eq_u32 s74, 0")
    k("s_cbranch_scc1 L_c_nopush")
    k("s_waitcnt vmcnt(0)")
    k(f"v_add_u32 v19, {TAGC}, v19")
    k("s_mov_b32 exec_lo, s74")
    k("s_mov_b32 exec_hi, 0")
    lds_wait(k, "L_c_own", "s53")
    push(k, P, "v19", "v17", "s75")
    k("s_mov_b64 exec, -1")
    stamp_mid(k, P, 0)
    k("s_branch L_c_pushed")
    k.label("L_c_nopush")
    lds_wait(k, "L_c_own4", "s53", sleep=1)
    k.label("L_c_pushed")
    if P.get("ps2", 8): k(f"s_sleep {P.get('ps2', 8)}")
    def run(name, N, per, prep, fire, init, fin=None, la=99, ramp=1):
        vm = VM(); ni = 0
        def both(i):
            prep(i); k("s_nop 0"); fire(i)
            for _ in range(per): vm.issue(i)
        for _ in range(init): both(ni); ni += 1
        stamp_mid(k, P, 1)
        for b in range(10):
            lim = min(9, max(N - 1, b - 1 - P.get("rlx", 1) + N))
            todo = list(range(ni, min(lim, b + la) + 1))[:ramp]
            if todo: prep(todo[0])
            k(f"s_waitcnt vmcnt({vm.wait_for(lambda t: t <= b)})")
            k("s_barrier")
            if todo:
                fire(todo[0])
                for _ in range(per): vm.issue(todo[0])
                ni += 1
                for t_ in todo[1:]: both(t_); ni += 1
        assert ni == 10
        if fin: fin()
        if P.get("stamp"):
            k("s_and_b32 s62, s3, 3")
            stamp_end(k, P, 2, 44, 32, 62)
        k("s_endpgm")
    def prepW(i):
        if i <= P.get("wall", 99):
            k(f"s_mul_i32 s76, s66, {0xff if i == P.get('wall') else mtmask(order[i])}")
            ensure(k)
        soff(i, 14336)
        k(f"s_add_u32 m0, s55, {(i % NW)*14336}")
    def fireW(i):
        if P.get("ab_nowd"): return
        for j in range(4): k(f"buffer_load_dwordx4 v{4 if j < 2 else 6}, s[44:47], s58 offen offset:{j*1024} sc1 lds")
        k("s_add_u32 m0, m0, 4096")
        k("s_nop 0")
        for j in range(3): k(f"buffer_load_dwordx4 v5, s[44:47], s58 offen offset:{j*1024} sc1 lds")
    def finW():
        k("s_cmp_lg_u32 s3, 4")
        k("s_cbranch_scc1 L_c_nobump")
        bump(k)
        k.label("L_c_nobump")
    run("L_c_w", NW, 7, prepW, fireW, P.get("W0", 4), finW, la=P.get("law", 99))
    k.label("L_c_xl")
    k("s_mul_i32 s52, s4, 163840")
    k(f"s_add_u32 s52, s52, {XRF_OFF}")
    k("s_lshl_b32 s55, s62, 13")
    k("s_add_u32 s52, s52, s55")
    k("v_lshl_add_u32 v4, v0, 4, s52")
    k("v_add_u32 v5, 4096, v4")
    k("s_barrier")
    if P.get("xhold", 1): lds_wait(k, "L_c_xh", "s53", sleep=1)
    def prepX(i):
        if (i == 0 or order[i] // 2 != order[i - 1] // 2 or i == P.get("xall")) and i <= P.get("xall", 99):
            k(f"s_mov_b32 s76, {0x1f000000 if i == P.get('xall') else 1 << (24 + order[i] // 2)}")
            ensure(k)
        soff(i, 16384)
        k(f"s_add_u32 m0, s55, {XR + (i % NX)*16384}")
    def fireX(i):
        if P.get("ab_noxd"): return
        for j in range(4): k(f"buffer_load_dwordx4 v4, s[44:47], s58 offen offset:{j*1024} sc1 lds")
        k("s_add_u32 m0, m0, 4096")
        k("s_nop 0")
        for j in range(4): k(f"buffer_load_dwordx4 v5, s[44:47], s58 offen offset:{j*1024} sc1 lds")
    run("L_c_x", NX, 8, prepX, fireX, P.get("X0", NX), ramp=P.get("xramp", 1))

def gen(P):
    uid[0] = 0
    P = dict(P)
    for kk_, v in (("tlb", 0), ("X0", 2), ("xfirst", 0), ("pm", "atom"), ("wm", "atom"), ("ps", 0), ("ps2", 0), ("cp", 0), ("W0", 3), ("xpf", 8), ("xpa", 1), ("xorder", "s8b"), ("pth", 8), ("xramp", 2), ("hd", 99), ("need", 26), ("wall", 2), ("xall", 2), ("co", "A"), ("B0", 9), ("n0", 1), ("th", 6)): P.setdefault(kk_, v)

    k = K(KNAME)
    k("s_cmp_ge_u32 s2, 256")
    k("s_cbranch_scc1 L_end")
    k("s_load_dwordx16 s[8:23], s[0:1], 0")
    k("s_load_dwordx2 s[24:25], s[0:1], 64")
    stamp_begin(k, P)
    k("s_getpc_b64 s[40:41]")
    k.label("L_pc0")
    k("v_subrev_u32 v4, 504, v0")
    k("v_cmp_gt_u32 vcc, 8, v4")
    k("s_and_saveexec_b64 s[44:45], vcc")
    k("s_cbranch_execz L_noipf")
    k("s_and_b32 s41, s41, 0xffff")
    k("s_mov_b32 s42, L_end - L_pc0")
    k("s_mov_b32 s43, 0x00020000")
    k("s_and_b32 s46, s2, 0xf8")
    k("v_add_lshl_u32 v4, s46, v4, 7")
    k("buffer_load_dword v200, v4, s[40:43], 0 offen")
    k.label("L_noipf")
    k("s_mov_b64 exec, -1")
    k("v_lshrrev_b32 v1, 6, v0")
    k(f"v_mov_b32 v2, {LCNT}")
    k("v_mov_b32 v3, 0")
    k("v_readfirstlane_b32 s3, v1")
    k("ds_write2_b32 v2, v3, v3 offset0:0 offset1:1")
    k("v_and_b32 v0, 63, v0")
    k("s_bfe_u32 s4, s2, 0x10002")
    k("s_and_b32 s5, s2, 3")
    k("s_lshr_b32 s6, s2, 3")
    nwv = NWV[P.get("xrx", 2)]
    base = [sum(nwv[:j]) for j in range(4)]
    xbase = [sum(32 - n for n in nwv[:j]) for j in range(4)]
    pk = lambda v: hex(sum(x << (8 * j) for j, x in enumerate(v)))
    k("s_lshl_b32 s7, s5, 3")
    k(f"s_lshr_b32 s52, {pk(nwv)}, s7")
    k("s_and_b32 s52, s52, 0xff")
    k(f"s_lshr_b32 s53, {pk(base)}, s7")
    k("s_and_b32 s53, s53, 0xff")
    kx = K("x")
    kx(f"s_lshr_b32 s53, {pk(xbase)}, s7")
    kx("s_and_b32 s53, s53, 0xff")
    kx("s_sub_u32 s6, s6, s52")
    kx("s_add_u32 s6, s6, s53")
    kx(f"s_mul_hi_u32 s60, s6, {magic(5)}")
    kx("s_mul_i32 s5, s60, 5")
    kx("s_sub_u32 s5, s6, s5")
    kx("s_lshl_b32 s4, s4, 2")
    kx("s_add_u32 s4, s4, s60")
    kx("s_add_u32 s50, s60, s5")
    kx("s_and_b32 s50, s50, 3")
    xr_role(kx, P)
    i0 = kx.lines.index("L_xr_cons:")
    k("s_cmp_ge_u32 s6, s52")
    if P.get("xfirst", 0):
        k("s_cbranch_scc0 L_wv")
        k.lines += kx.lines[:i0]
        k.label("L_wv")
    else:
        k("s_cbranch_scc1 L_xr")
    k("s_add_u32 s53, s53, s6")
    k("s_and_b32 s60, s53, 3")
    k("s_lshl_b32 s4, s4, 2")
    k("s_add_u32 s4, s4, s60")
    k("s_lshr_b32 s5, s53, 2")
    wv_role(k, P)
    poll_sub(k, P)
    if not P.get("xfirst", 0):
        k.label("L_xr")
        k.lines += kx.lines[:i0]
    k.lines += kx.lines[i0:]
    phase_c(k, P)
    return finish(k)

HEAD = """; QuIP weight-only int4 layer, one fused launch:   y = (x @ U) @ (dequant(qw) @ V)
"""

def finish(k):
    k.label("L_end")
    k("s_endpgm")
    src = HEAD
    src += "; @launch grid=(256,1,1) block=(512,1,1) lds=163840\n" + HEADER + k.text()
    src += '.section .rodata,"a"\n' + desc(KNAME, 256, 102, 256)
    return src

def is_wv(b, P):
    import numpy as np
    return (b >> 3) < np.array(NWV[P.get("xrx", 2)])[b & 3]
def is_xr(b, P):
    return ~is_wv(b, P)

if __name__ == "__main__":
    import json
    P = json.loads(sys.argv[2]) if len(sys.argv) > 2 else {}
    open(sys.argv[1], "w").write(gen(P))
```

```python
import sys, json, importlib, os
from asmlib import *
G = importlib.import_module(os.environ.get("GEN", "gen12"))
from gen import magic
def gen_probe(what, mult=4):
    name = "probe_kernel"; k = K(name)
    k("s_cmp_ge_u32 s2, 1"); k("s_cbranch_scc1 L_pr_end")
    k("s_load_dwordx2 s[6:7], s[0:1], 64"); k("s_waitcnt lgkmcnt(0)")
    srd(k, 16, 6, 0x1000000)
    op, kid, wv, ff = what.split(":") if ":" in what else (what, 0, 0, 0)
    kid = int(kid); wv = int(wv); ff = int(ff)
    k("v_lshlrev_b32 v1, 7, v0")
    k("v_mov_b32 v20, -1"); k("v_mov_b32 v21, 0"); k("v_mov_b32 v22, 0")
    for i in range(4):
        k(f"s_mov_b32 s30, {G.STAMP_OFF + kid*0x10000 + i*8192 + wv*32}")
        k("buffer_load_dwordx4 v[4:7], v1, s[16:19], s30 offen"); k("buffer_load_dwordx4 v[8:11], v1, s[16:19], s30 offen offset:16")
        k("s_waitcnt vmcnt(0)")
        k("v_min_u32 v20, v20, v5"); k("v_max_u32 v21, v21, v6")
        if op == "x0" and i == 0:
            k("v_readfirstlane_b32 s50, v7")
        if op == "same":
            if i == 0: k("v_readfirstlane_b32 s50, v7")
            k("s_nop 1"); k("v_add_u32 v12, s50, v0"); k("v_sub_u32 v12, v12, v7"); k("v_and_b32 v12, 7, v12"); k("v_cmp_eq_u32 vcc, 0, v12"); k("s_nop 1"); k("v_addc_co_u32 v22, vcc, 0, v22, vcc")
        if op == "max": k(f"v_max_u32 v22, v22, v{4+ff}")
        if op == "avg": k(f"v_add_u32 v22, v22, v{4+ff}")
        if op == "pol":
            k(f"v_lshrrev_b32 v12, 13, v{4+ff}"); k("v_lshrrev_b32 v13, 2, v0"); k("v_xor_b32 v12, v12, v13"); k("v_and_b32 v12, 1, v12"); k("v_add_u32 v22, v22, v12")
    k("s_mov_b32 s20, -1"); k("s_mov_b32 s21, 0"); k("s_mov_b32 s24, 0")
    for l in range(64):
        k(f"v_readlane_b32 s31, v20, {l}"); k(f"v_readlane_b32 s32, v21, {l}"); k(f"v_readlane_b32 s33, v22, {l}"); k("s_nop 1")
        k("s_min_u32 s20, s20, s31"); k("s_max_u32 s21, s21, s32")
        k("s_max_u32 s24, s24, s33" if op == "max" else "s_add_u32 s24, s24, s33")
    if op == "span": k("s_sub_u32 s25, s21, s20"); k(f"s_mul_i32 s25, s25, {mult}")
    elif op == "none": k("s_mov_b32 s25, 0")
    elif op == "x0":
        k(f"s_add_u32 s25, s50, {ff + 7}"); k("s_and_b32 s25, s25, 7"); k("s_mul_i32 s25, s25, 200")
    elif op == "same": k("s_mul_i32 s25, s24, 10")
    elif op == "max": k(f"s_mul_hi_u32 s25, s24, {magic(10)}")
    elif op == "avg": k(f"s_mul_hi_u32 s25, s24, {magic(2560)}")
    elif op == "pol": k("s_mul_i32 s25, s24, 10")
    k("s_min_u32 s25, s25, 100000")
    k("s_memrealtime s[42:43]"); k("s_waitcnt lgkmcnt(0)")
    k.label("L_pr_spin")
    k("s_memrealtime s[44:45]"); k("s_waitcnt lgkmcnt(0)"); k("s_sub_u32 s46, s44, s42"); k("s_cmp_lt_u32 s46, s25"); k("s_cbranch_scc1 L_pr_spin")
    k.label("L_pr_end"); k("s_endpgm")
    return k.text(), desc(name, 32, 64)
P = json.loads(sys.argv[1]); P["stamp"] = 1
for i, w in enumerate(sys.argv[2:]):
    src = G.gen(P)
    t, d = gen_probe(w)
    src = src.replace("; @launch grid=(256,1,1) block=(512,1,1) lds=163840\n", f"; @launch kernel={G.KNAME} grid=(256,1,1) block=(512,1,1) lds=163840\n; @launch kernel=probe_kernel grid=(1,1,1) block=(64,1,1) lds=0\n")
    src = src.replace('.section .rodata,"a"\n', t + '.section .rodata,"a"\n') + d
    open(f"p_{i}.s", "w").write(src)
```

```python
import os, json
os.environ["GEN"] = "gen15"
import sys
sys.argv = ["x", "{}"]
import probe2 as p2
from asmlib import *
G = p2.G
def skern(grid, lds, block):
    k = K("s0_kernel")
    k("s_memrealtime s[10:11]")
    k("s_cmp_ge_u32 s2, 1"); k("s_cbranch_scc1 L_s0e")
    k("s_load_dwordx2 s[6:7], s[0:1], 64"); k("s_waitcnt lgkmcnt(0)")
    srd(k, 16, 6, 0x1000000)
    k("v_mov_b32 v1, s10"); k(f"v_mov_b32 v2, {0xE00000}")
    k("buffer_store_dword v1, v2, s[16:19], 0 offen")
    k.label("L_s0e"); k("s_endpgm")
    return k.text(), desc("s0_kernel", 8, 32), f"; @launch kernel=s0_kernel grid=({grid},1,1) block=({block},1,1) lds={lds}\n"
def make(fn, front, what):
    src = G.gen({"stamp": 1})
    t, d = p2.gen_probe("none")
    if what == "front":
        t = t.replace("    s_mov_b32 s25, 0\n", f"    s_load_dword s50, s[6:7], 0x0\n    v_mov_b32 v2, {0xE00000}\n    buffer_load_dword v3, v2, s[16:19], 0 offen\n    s_waitcnt vmcnt(0) lgkmcnt(0)\n    v_readfirstlane_b32 s50, v3\n    s_nop 3\n    s_sub_u32 s25, s20, s50\n    s_mul_i32 s25, s25, 4\n")
    L = f"; @launch kernel={G.KNAME} grid=(256,1,1) block=(512,1,1) lds=163840\n; @launch kernel=probe_kernel grid=(1,1,1) block=(64,1,1) lds=0\n"
    if front:
        st, sd, sl = skern(*front); L = sl + L; t += st; d += sd
    src = src.replace("; @launch grid=(256,1,1) block=(512,1,1) lds=163840\n", L)
    src = src.replace('.section .rodata,"a"\n', t + '.section .rodata,"a"\n') + d
    open(fn, "w").write(src)
make("p_0.s", None, "none"); make("p_1.s", (1, 0, 64), "none"); make("p_2.s", (1, 0, 64), "front")
make("p_3.s", None, "none"); make("p_4.s", (256, 0, 64), "none"); make("p_5.s", (256, 0, 64), "front")
```

```python
import sys
from asmlib import *
from gen import magic, VM, stamp_begin, stamp_mid, stamp_end, STAMP_OFF
from gen4 import xr_orders
SYNC_OFF = 0; SYNC2_OFF = 0x10000
AQ_OFF = 0x20000
WVF_OFF = 0x260000
XRF_OFF = 0x4a0000
WS_BYTES = 0x1000000
TAGC = 0x5bd1e995
LCNT = 163840 - 64
NWV = {2: [32, 32, 32, 12], 4: [32, 32, 22, 22], 8: [27, 27, 27, 27]}
MAPN = [32, 32, 32, 12, 27, 27, 27, 0]
XSTG = 49152
SPIN_MAX = 1 << 19
FS = 8
KNAME = "standalone__weight_only_int_quip__prompt_kernel"

def poll_loop(k, name, load, cmp_lines, sleep=0, wait="vmcnt(0)"):
    k("s_mov_b32 s80, 0")
    k.label(name)
    if sleep: k(f"s_sleep {sleep}")
    k(load)
    k("s_add_u32 s80, s80, 1")
    k(f"s_cmp_ge_u32 s80, {SPIN_MAX}")
    k(f"s_cbranch_scc1 {name}_done")
    k(f"s_waitcnt {wait}")
    for l in cmp_lines: k(l)
    k(f"s_cbranch_scc0 {name}")
    k.label(f"{name}_done")

def lds_wait(k, name, n, sleep=0):
    poll_loop(k, name, "ds_read_b32 v30, v2", ["v_readfirstlane_b32 s52, v30", f"s_cmp_ge_u32 s52, {n}"], wait="lgkmcnt(0)", sleep=sleep)

def arrive(k):
    k("s_waitcnt vmcnt(0)")
    k("v_mov_b32 v7, 1")
    k("s_mov_b64 exec, 1")
    k("ds_add_u32 v2, v7")
    k("s_mov_b64 exec, -1")

DECODE = ["v_readlane_b32 s59, v30, 31", f"s_add_u32 s52, s59, {TAGC}", "v_cmp_eq_u32 vcc, s52, v30", "s_mov_b32 s63, vcc_lo"]

def poll_sub(k, P):
    k.label("L_poll")
    k("s_mov_b32 exec_lo, -1")
    k("s_mov_b32 exec_hi, 0")
    poll_loop(k, "L_poll_l", "v_mov_b32 v30, 0\nbuffer_atomic_or v30, v8, s[44:47], 0 offen sc0 sc1", DECODE + ["s_and_b32 s52, s63, s76", "s_cmp_eq_u32 s52, s76"])
    k("s_mov_b64 exec, -1")
    k.label("L_poll_ret")
    k("s_setpc_b64 s[78:79]")

uid = [0]
def ensure(k, sub="L_poll"):
    uid[0] += 1
    k("s_and_b32 s52, s63, s76")
    k("s_cmp_eq_u32 s52, s76")
    k(f"s_cbranch_scc1 L_ok{uid[0]}")
    k(f"s_call_b64 s[78:79], {sub}")
    k.label(f"L_ok{uid[0]}")

def gather(k, P, reg, addr):
    gm = P.get("gm", "sc1")
    if gm == "atom":
        k(f"v_mov_b32 {reg}, 0")
        k(f"buffer_atomic_or {reg}, {addr}, s[44:47], 0 offen offset:124 sc0 sc1")
    else:
        k(f"buffer_load_dword {reg}, {addr}, s[44:47], 0 offen offset:124 {gm}")

def push(k, P, data, addr, so):
    if P.get("wm") == "atom": k(f"buffer_atomic_swap {data}, {addr}, s[44:47], {so} offen sc1")
    else: k(f"buffer_store_dword {data}, {addr}, s[44:47], {so} offen sc1")

def bump(k):
    k("v_mov_b32 v30, 1")
    k("s_mov_b64 exec, 1")
    k("buffer_atomic_add v30, v8, s[44:47], 0 offen offset:124 sc1")
    k("s_mov_b64 exec, -1")

def wv_role(k, P):
    NAD = 3; NB = 9; TH = P.get("th", 4)
    BRING = 0; STG = NB * 8192; ARING = STG + 12288
    RED = 126976
    assert ARING + NAD * 24576 <= LCNT and RED >= ARING + 24576
    k("s_mul_i32 s70, s4, 6")
    k(f"s_mul_i32 s68, s5, {P.get('on', 1)}")
    k("s_add_u32 s68, s68, s60")
    k(f"s_mul_hi_u32 s52, s68, {magic(27)}")
    k("s_mul_i32 s52, s52, 27")
    k("s_sub_u32 s68, s68, s52")
    k("s_cmp_ge_u32 s3, 6")
    k("s_cbranch_scc1 L_wv_nodq")
    k("s_add_u32 s52, s70, s3")
    k("s_min_u32 s52, s52, 39")
    k("v_lshrrev_b32 v24, 4, v0")
    k("v_and_b32 v25, 15, v0")
    k("v_mul_u32_u24 v26, 6912, v24")
    k("v_lshl_add_u32 v4, v25, 4, v26")
    k(f"s_mul_i32 s55, s52, {16*6912}")
    k("s_lshl_b32 s54, s68, 8")
    k("s_add_u32 s55, s55, s54")
    for m in range(1, 4): k(f"s_add_u32 s{55+m}, s55, {m*4*6912}")
    k("s_lshr_b32 s52, s52, 3")
    k("s_mul_i32 s52, s52, 3456")
    k("s_lshl_b32 s54, s68, 7")
    k("s_add_u32 s52, s52, s54")
    k("v_lshlrev_b32 v8, 3, v25")
    k("s_waitcnt lgkmcnt(0)")
    R = 32
    srd(k, 36, 12, 5 * 1728 * 2)
    k("buffer_load_dwordx2 v[10:11], v8, s[36:39], s52 offen")
    srd(k, 40, 14, 5 * 1728 * 2)
    k("buffer_load_dwordx2 v[12:13], v8, s[40:43], s52 offen")
    srd(k, 28, 10, 640 * 1728 * 4)
    for m in range(4): k(f"buffer_load_dwordx4 v[{R+4*m}:{R+4*m+3}], v4, s[28:31], s{55+m} offen")
    k("s_barrier")
    srd(k, 44, 24, WS_BYTES)
    k("v_lshrrev_b32 v27, 1, v25")
    k("v_lshlrev_b32 v26, 8, v27")
    k("v_and_b32 v28, 1, v25")
    k("v_lshl_add_u32 v26, v28, 3, v26")
    k("s_lshl_b32 s52, s3, 11")
    k(f"s_add_u32 s52, s52, {STG}")
    k("v_add_u32 v26, s52, v26")
    k("v_xor_b32 v27, v27, v24")
    k("v_lshl_add_u32 v4, v27, 4, v26")
    k("v_xor_b32 v5, 64, v4")
    k("v_xor_b32 v28, v0, v24")
    k("v_lshl_add_u32 v28, v28, 4, s52")
    k("v_xor_b32 v29, 64, v28")
    k("s_mul_i32 s52, s4, 27")
    k("s_add_u32 s52, s52, s68")
    k("s_mul_i32 s52, s52, 12288")
    k("s_lshl_b32 s54, s3, 10")
    k("s_add_u32 s52, s52, s54")
    k(f"s_add_u32 s55, s52, {AQ_OFF}")
    k("s_add_u32 s54, s55, 6144")
    k("v_lshlrev_b32 v9, 4, v0")
    k(f"s_mul_i32 s52, s4, {27 << FS}")
    if SYNC_OFF: k(f"s_add_u32 s52, s52, {SYNC_OFF}")
    k("s_cmp_eq_u32 s3, 5")
    k("s_cselect_b32 s52, s52, 0x40000000")
    k(f"v_lshl_add_u32 v6, v0, {FS}, s52")
    k("s_cselect_b32 exec_lo, 0x7ffffff, 1")
    k("s_mov_b32 exec_hi, 0")
    gather(k, P, "v60", "v6")
    k("s_mov_b64 exec, -1")
    k("s_waitcnt vmcnt(5)")
    for i in range(2):
        k(f"v_lshlrev_b32 v{14+2*i}, 16, v{10+i}"); k(f"v_and_b32 v{15+2*i}, 0xffff0000, v{10+i}")
        k(f"v_lshlrev_b32 v{18+2*i}, 16, v{12+i}"); k(f"v_and_b32 v{19+2*i}, 0xffff0000, v{12+i}")
    for i in range(4): k(f"v_mul_f32 v{18+i}, -v{18+i}, v{14+i}")
    for m in range(4):
        r = R + 4 * m
        k(f"s_waitcnt vmcnt({4-m})")
        for i in range(4): k(f"v_cvt_f32_i32 v{r+i}, v{r+i}")
        for i in range(4): k(f"v_fma_f32 v{r+i}, v{r+i}, v{14+i}, v{18+i}")
        k(f"v_cvt_pk_bf16_f32 v{r}, v{r}, v{r+1}")
        k(f"v_cvt_pk_bf16_f32 v{r+1}, v{r+2}, v{r+3}")
        k(f"ds_write_b64 v{4+(m&1)}, v[{r}:{r+1}] offset:{(m>>1)*128}")
    k("ds_read_b128 v[48:51], v28")
    k("ds_read_b128 v[52:55], v29 offset:1024")
    k("s_waitcnt lgkmcnt(1)")
    k("buffer_store_dwordx4 v[48:51], v9, s[44:47], s55 offen sc1")
    k("s_waitcnt lgkmcnt(0)")
    k("buffer_store_dwordx4 v[52:55], v9, s[44:47], s54 offen sc1")
    arrive(k)
    k("s_cmp_lt_u32 s3, 4")
    k("s_cbranch_scc1 L_wv_cons")
    k("s_cmp_eq_u32 s3, 4")
    k("s_cbranch_scc1 L_wv_ld")
    k("s_lshl_b32 s53, s68, 2")
    k("s_mov_b64 exec, 0x7ffffff")
    k(f"v_add_u32 v60, {TAGC}, v60")
    lds_wait(k, "L_wv_own", 6)
    push(k, P, "v60", "v6", "s53")
    k("s_mov_b64 exec, -1")
    k("s_branch L_wv_ld")
    k.label("L_wv_nodq")
    k("s_waitcnt lgkmcnt(0)")
    k("s_barrier")
    srd(k, 44, 24, WS_BYTES)
    k.label("L_wv_ld")
    VB = 12
    k("s_and_b32 s62, s3, 1")
    k("s_bfe_u32 s61, s3, 0x10001")
    k("v_lshrrev_b32 v24, 3, v0")
    k("v_and_b32 v25, 7, v0")
    k("v_mul_u32_u24 v26, 3456, v24")
    k("v_bfe_u32 v27, v0, 4, 1")
    k("v_lshlrev_b32 v27, 1, v27")
    k("v_xor_b32 v27, v25, v27")
    k("v_lshl_add_u32 v26, v27, 4, v26")
    k(f"s_mul_i32 s52, s62, {32*3456}")
    k("s_lshl_b32 s54, s5, 7")
    k("s_add_u32 s52, s52, s54")
    k(f"v_add_u32 v{VB}, s52, v26")
    k(f"v_xor_b32 v{VB+1}, 64, v{VB}")
    k(f"v_add_u32 v{VB+1}, {8*3456}, v{VB+1}")
    k(f"v_add_u32 v{VB+2}, {16*3456}, v{VB}")
    k(f"v_add_u32 v{VB+3}, {16*3456}, v{VB+1}")
    k("s_lshl_b32 s66, s62, 12")
    k(f"s_add_u32 s66, s66, {BRING}")
    srd(k, 32, 18, 1728 * 1728 * 2)
    def fireB():
        for n in range(4):
            k(f"buffer_load_dwordx4 v{VB+n}, s[32:35], s58 offen lds")
            if n < 3:
                k("s_add_u32 m0, m0, 1024"); k("s_nop 0")
    k("s_cmp_eq_u32 s61, 0")
    k("s_cbranch_scc1 L_wv_nopre")
    k("s_mov_b32 s57, s68")
    k("s_mov_b32 s56, s66")
    k("s_mov_b32 s65, 0")
    k.label("L_wv_pre")
    k("s_mov_b32 m0, s56")
    k(f"s_mul_i32 s58, s57, {64*3456}")
    fireB()
    k("s_add_u32 s57, s57, 1")
    k("s_cmp_eq_u32 s57, 27")
    k("s_cselect_b32 s57, 0, s57")
    k("s_add_u32 s56, s56, 8192")
    k("s_add_u32 s65, s65, 1")
    k(f"s_cmp_ge_u32 s65, {P.get('n1', 6)}")
    k("s_cbranch_scc1 L_wv_pre2")
    k(f"s_waitcnt vmcnt({TH})")
    if P.get("n0"):
        k(f"s_cmp_gt_u32 s65, {P['n0']}")
        k("s_cbranch_scc1 L_wv_pre2")
        k("s_waitcnt vmcnt(0)")
    k.label("L_wv_pre2")
    k(f"s_cmp_lt_u32 s65, {NB}")
    k("s_cbranch_scc1 L_wv_pre")
    k.label("L_wv_nopre")
    k(f"s_mul_i32 s52, s4, {27 << FS}")
    k(f"s_add_u32 s52, s52, {SYNC_OFF}")
    k(f"s_lshl_b32 s53, s5, {FS}")
    k("s_add_u32 s52, s52, s53")
    k("v_lshl_add_u32 v8, v0, 2, s52")
    k("s_lshl_b32 s52, s5, 2")
    k(f"s_mul_hi_u32 s72, s52, {magic(7)}")
    k("s_add_u32 s52, s52, 3")
    k(f"s_mul_hi_u32 s73, s52, {magic(7)}")
    k("s_cmp_eq_u32 s72, s73")
    k("s_cselect_b32 s74, 0xffff, -1")
    k("v_bfe_u32 v18, v0, 4, 1")
    k("v_add_u32 v18, s72, v18")
    k("v_and_b32 v16, 15, v0")
    k("v_lshl_add_u32 v16, v16, 4, v18")
    k(f"v_lshlrev_b32 v16, {FS}, v16")
    k(f"v_add_u32 v16, {SYNC2_OFF}, v16")
    k("v_mul_u32_u24 v18, 7, v18")
    k("v_lshrrev_b32 v18, 2, v18")
    k("v_sub_u32 v18, s5, v18")
    k("v_lshl_add_u32 v17, v18, 5, v16")
    k("s_lshl_b32 s75, s4, 2")
    k("s_cmp_lg_u32 s3, 5")
    k("s_cbranch_scc1 L_wv_go")
    k("s_mov_b32 exec_lo, s74")
    k("s_mov_b32 exec_hi, 0")
    gather(k, P, "v19", "v16")
    k("s_mov_b64 exec, -1")
    k.label("L_wv_go")
    k(f"s_mul_i32 s52, s4, {27*12288}")
    k("s_mul_i32 s55, s62, 6144")
    k("s_add_u32 s52, s52, s55")
    k(f"s_add_u32 s52, s52, {AQ_OFF}")
    k("v_lshl_add_u32 v9, v0, 4, s52")
    k("v_add_u32 v10, 4096, v9")
    k("s_mul_i32 s52, s61, 12288")
    k("s_add_u32 s55, s55, s52")
    k("s_add_u32 s57, s68, s61")
    k("s_add_u32 s57, s57, 1")
    k("s_sub_u32 s52, s57, 27")
    k("s_cselect_b32 s57, s57, s52")
    k(f"s_add_u32 s67, s57, {NB-1}")
    k("s_sub_u32 s52, s67, 27")
    k("s_cselect_b32 s67, s67, s52")
    k("s_lshl_b32 s69, s61, 13")
    HD = P.get("hd", 99)
    def step(reg, Dn):
        if Dn < HD:
            k(f"s_add_u32 {reg}, {reg}, 2")
        elif Dn == HD:
            k(f"s_sub_u32 {reg}, s68, s61")
            k(f"s_add_u32 {reg}, {reg}, 26")
        else:
            k(f"s_add_u32 {reg}, {reg}, 25")
        k(f"s_sub_u32 s52, {reg}, 27")
        k(f"s_cselect_b32 {reg}, {reg}, s52")
    assert HD > (NB - 1) // 2
    RP = P.get("rp", 0)
    nb0 = (NB - 1) // 2
    BR = 64
    for n in range(RP):
        k(f"s_mul_i32 s58, s67, {64*3456}")
        step("s67", nb0 + n + 1)
        for i in range(4): k(f"buffer_load_dwordx4 v[{BR+n*16+i*4}:{BR+n*16+i*4+3}], v{VB+i}, s[32:35], s58 offen")
        if P.get("rth") is not None: k(f"s_waitcnt vmcnt({P['rth']})")
    k("v_lshlrev_b32 v20, 4, v0")
    k("s_cmp_lg_u32 s3, 4")
    k("s_cbranch_scc1 L_wv_np")
    k(f"s_mov_b32 s76, {(1 << P.get('need', 4)) - 1}")
    k("s_mov_b32 s77, 0")
    k("s_lshl_b64 s[76:77], s[76:77], s57")
    k("s_lshr_b64 s[78:79], s[76:77], 27")
    k("s_or_b32 s76, s76, s78")
    k("s_and_b32 s76, s76, 0x7ffffff")
    if P.get("ps", 16): k(f"s_sleep {P.get('ps', 16)}")
    k("s_call_b64 s[78:79], L_poll")
    k("v_mov_b32 v30, s63")
    k("ds_write_b32 v2, v30 offset:4")
    k("s_branch L_wv_np2")
    k.label("L_wv_np")
    poll_loop(k, "L_wv_lm", "ds_read_b32 v30, v2 offset:4", ["v_readfirstlane_b32 s63, v30", "s_cmp_lg_u32 s63, 0"], wait="lgkmcnt(0)", sleep=1)
    k.label("L_wv_np2")
    if P.get("prio"): k(f"s_setprio {P['prio']}")
    stamp_mid(k, P, 3)
    vm = VM()
    def prepA(D):
        if P.get("need", 4) < 26:
            k("s_lshl_b32 s76, 1, s57")
            ensure(k)
        k("s_mul_i32 s64, s57, 12288")
        step("s57", D + 1)
        k(f"s_add_u32 m0, s55, {ARING + (D % NAD)*24576}")
    def fireA(D):
        if P.get("ab_noA"): return
        for j in range(4): k(f"buffer_load_dwordx4 v9, s[44:47], s64 offen offset:{j*1024} sc1 lds")
        k("s_add_u32 m0, m0, 4096")
        k("s_nop 0")
        for j in range(2): k(f"buffer_load_dwordx4 v10, s[44:47], s64 offen offset:{j*1024} sc1 lds")
        for _ in range(6): vm.issue(("A", D))
    def prepB(Db):
        if Db >= nb0 + RP:
            k(f"s_mul_i32 s58, s67, {64*3456}")
            step("s67", Db + 1)
        k("s_add_u32 s56, s66, s69")
        k("s_add_u32 s69, s69, 16384")
        k(f"s_sub_u32 s52, s69, {NB*8192}")
        k("s_cselect_b32 s69, s69, s52")
    na = 0; nb = (NB - 1) // 2
    TL = P.get("tl")
    if TL is not None:
        k("s_and_b32 s84, s5, 7")
        k(f"s_mul_hi_u32 s52, s5, {magic(9)}")
        k("s_mul_i32 s52, s52, 9")
        k("s_sub_u32 s52, s5, s52")
        k("s_cmp_ge_u32 s4, 4")
        k("s_cselect_b32 s84, s52, s84")
        k(f"s_cselect_b32 s52, {13 + TL}, {12 + TL}")
        k("s_add_u32 s85, s68, s84")
        k("s_add_u32 s85, s85, s52")
        k("s_add_u32 s85, s85, s61")
        k("s_sub_u32 s52, s85, 27")
        k("s_cselect_b32 s85, s85, s52")
        k("s_mul_i32 s85, s85, 12288")
        k("v_mul_u32_u24 v22, 112, v0")
        k("v_add_u32 v22, v22, v9")
    for _ in range(2):
        prepA(na); k("s_nop 0"); fireA(na); na += 1
    for D in range(13):
        lim = D - 1 + NAD if D >= 1 else NAD - 1
        la = [x for x in range(na, min(12, lim) + 1)][:1]
        lb = [nb] if (D >= 1 and nb <= 12 and (D not in P.get("bskip", []) or nb - D <= 2)) else []
        if lb: prepB(nb)
        if la: prepA(la[0])
        k(f"s_waitcnt vmcnt({vm.wait_for(lambda t: t[1] <= D)}) lgkmcnt(0)")
        k("s_barrier")
        if TL is not None and D < P.get("tn", 7):
            k(f"s_cmp_lg_u32 s84, {D}")
            k(f"s_cbranch_scc1 L_wv_nt{D}")
            k("s_mov_b32 exec_hi, 0xffff")
            k("buffer_load_dword v254, v22, s[44:47], s85 offen sc1")
            k("s_mov_b64 exec, -1")
            k.label(f"L_wv_nt{D}")
        if la: fireA(la[0])
        if lb and nb < nb0 + RP:
            k("v_add_u32 v21, s56, v20")
            for i in range(4):
                r = BR + (nb - nb0) * 16 + i * 4
                k(f"ds_write_b128 v21, v[{r}:{r+3}] offset:{i*1024}")
            nb += 1
        elif lb:
            if not P.get("ab_noB"):
                k("s_mov_b32 m0, s56"); k("s_nop 0"); fireB()
                for _ in range(4): vm.issue(("B", nb))
            nb += 1
        na += len(la)
    assert na == 13 and nb >= 13
    k("s_cmp_lg_u32 s3, 4")
    k("s_cbranch_scc1 L_wv_nobump")
    bump(k)
    k.label("L_wv_nobump")
    k("s_mov_b32 s53, 10")
    k("s_branch L_c_ld")
    k.label("L_wv_cons")
    VAR = 48; VBR = 49; VAC = 51; VBC = 52; VO = 54; VRED = 55; VARS = 57
    FR = 64; ACC = 128
    k("s_and_b32 s60, s3, 1")
    k("s_lshr_b32 s61, s3, 1")
    k("s_mul_i32 s52, s61, 6144")
    k(f"s_add_u32 s52, s52, {ARING}")
    k(f"v_lshl_add_u32 v{VAR}, v0, 4, s52")
    k("s_lshl_b32 s54, s61, 2")
    k("v_or_b32 v28, s54, v24")
    k("v_xor_b32 v28, v28, v0")
    k("s_lshl_b32 s52, s61, 10")
    k(f"s_add_u32 s52, s52, {STG}")
    k(f"v_lshl_add_u32 v{VARS}, v28, 4, s52")
    k("s_lshl_b32 s63, s60, 1")
    k("s_add_u32 s63, s63, s61")
    k("v_bfe_u32 v28, v0, 2, 2")
    k("v_lshl_add_u32 v28, v24, 3, v28")
    k("v_lshlrev_b32 v28, 7, v28")
    k("v_bfe_u32 v29, v0, 3, 2")
    k("v_xor_b32 v29, s63, v29")
    k("v_lshl_add_u32 v28, v29, 5, v28")
    k("v_and_b32 v29, 3, v0")
    k("v_lshl_add_u32 v28, v29, 3, v28")
    k("s_lshl_b32 s52, s61, 12")
    k(f"s_add_u32 s52, s52, {BRING}")
    k(f"v_add_u32 v{VBR}, s52, v28")
    k(f"v_xor_b32 v{VBR+1}, 32, v{VBR}")
    k("s_lshl_b32 s52, s5, 2")
    k("s_add_u32 s52, s52, s63")
    k(f"s_mul_hi_u32 s54, s52, {magic(7)}")
    k("s_mul_i32 s64, s54, 7")
    k("s_sub_u32 s52, s52, s64")
    k("s_mov_b32 s64, s54")
    k("s_mul_i32 s54, s64, 143360")
    k(f"s_add_u32 s54, s54, {WVF_OFF}")
    k("v_bfe_u32 v28, v0, 2, 1")
    k("v_lshlrev_b32 v28, 10, v28")
    k("v_bfe_u32 v29, v0, 3, 1")
    k("v_lshl_add_u32 v28, v29, 6, v28")
    k("v_and_b32 v29, 3, v0")
    k("v_lshl_add_u32 v28, v29, 4, v28")
    k("v_lshlrev_b32 v29, 4, v25")
    k("s_cmp_eq_u32 s52, 6")
    k("s_cselect_b64 vcc, -1, 0")
    k("s_and_b32 s64, s52, 6")
    k("s_lshl_b32 s64, s64, 10")
    k("s_and_b32 s52, s52, 1")
    k("s_lshl_b32 s52, s52, 7")
    k("s_add_u32 s54, s54, s64")
    k("s_add_u32 s54, s54, s52")
    k("v_cndmask_b32 v28, v28, v29, vcc")
    k("v_lshrrev_b32 v29, 1, v24")
    k("v_lshl_add_u32 v28, v29, 8, v28")
    k("v_add_u32 v28, s54, v28")
    k("v_and_b32 v29, 1, v24")
    k("v_lshl_add_u32 v28, v29, 9, v28")
    k(f"s_mul_i32 s52, s4, {3*7168}")
    k("v_add_u32 v58, s52, v28")
    k("v_add_u32 v59, 7168, v58")
    k("s_cmp_eq_u32 s4, 6")
    k("s_cselect_b32 s52, 0x40000000, 0")
    k("s_add_u32 s52, s52, 14336")
    k("v_add_u32 v60, s52, v58")
    for i in range(48): k(f"v_mov_b32 v{ACC+i}, 0")
    k("s_mul_i32 s52, s3, 6144")
    k(f"s_add_u32 s52, s52, {RED}")
    k(f"v_lshl_add_u32 v{VRED}, v0, 4, s52")
    k("s_xor_b32 s52, s3, 2")
    k("s_mul_i32 s52, s52, 6144")
    k(f"s_add_u32 s52, s52, {RED}")
    k(f"v_lshl_add_u32 v{VRED+1}, v0, 4, s52")
    def reads(fb, va, aoff, astr, vb):
        if P.get("ab_nord"): return []
        f = FR + fb * 32
        out = [f"ds_read_b64_tr_b16 v[{f+24+u*4+sec*2}:{f+25+u*4+sec*2}], v{vb+u} offset:{sec*512}" for u in range(2) for sec in range(2)]
        return out + [f"ds_read_b128 v[{f+j*4}:{f+j*4+3}], v{va} offset:{aoff + j*astr}" for j in range(6)]
    def nextB():
        return [f"v_add_u32 v{VBC}, s57, v{VBR}", f"v_add_u32 v{VBC+1}, s57, v{VBR+1}", "s_add_u32 s57, s57, 8192",
                f"s_cmp_eq_u32 s57, {NB*8192}", "s_cselect_b32 s57, 0, s57"]
    def nextA():
        return [f"v_add_u32 v{VAC}, s56, v{VAR}", "s_add_u32 s56, s56, 24576", f"s_cmp_eq_u32 s56, {NAD*24576}", "s_cselect_b32 s56, 0, s56"]
    def mf(fb, j, u):
        f = FR + fb * 32; a = ACC + (u * 6 + j) * 4
        if P.get("ab_nomf"): return "s_nop 0"
        return f"v_mfma_f32_16x16x32_bf16 v[{a}:{a+3}], v[{f+j*4}:{f+j*4+3}], v[{f+24+u*4}:{f+27+u*4}], v[{a}:{a+3}]"
    def mfmas(fb, fill, waits):
        issued = 0
        for j in range(6):
            for u in range(2):
                for _ in range(1 if (P.get("r1", 1) and fill and fill[0].startswith("ds_read_b128")) else 2):
                    if fill:
                        x = fill.pop(0); k(x)
                        if x.startswith("ds_"): issued += 1
                if waits and u == 0 and (not P.get("w2", 1) or j in (0, 2)):
                    k(f"s_waitcnt lgkmcnt({min(15, 5 - j + issued) if not P.get('w2', 1) else (4 + issued if j == 0 else issued)})")
                k(mf(fb, j, u))
        while fill: k(fill.pop(0))
    k("s_mov_b32 s56, 0"); k("s_mov_b32 s57, 8192")
    for x in nextA() + nextB(): k(x)
    k("s_mov_b32 s65, 0")
    k("s_barrier")
    for x in reads(1, VARS, 0, 2048, VBR): k(x)
    k("s_waitcnt lgkmcnt(0)")
    k("s_branch L_wv_cent")
    k.label("L_wv_cloop")
    k("s_waitcnt lgkmcnt(0)")
    k("s_barrier")
    k.label("L_wv_cent")
    mfmas(1, reads(0, VAC, 0, 1024, VBC) + nextB(), False)
    mfmas(0, reads(1, VAC, 12288, 1024, VBC) + nextA() + nextB() + ["s_add_u32 s65, s65, 1"], True)
    k("s_cmp_lt_u32 s65, 13")
    k("s_cbranch_scc1 L_wv_cloop")
    k("s_waitcnt lgkmcnt(0)")
    for u in (1, 0):
        for j in range(6): k(mf(1, j, u))
    stamp_mid(k, P, 0)
    k("s_nop 2")
    for j in range(6):
        a = ACC + (6 + j) * 4
        k(f"ds_write_b128 v{VRED}, v[{a}:{a+3}] offset:{j*1024}")
    k("s_waitcnt lgkmcnt(0)")
    k("s_barrier")
    for j in range(6): k(f"ds_read_b128 v[{FR+32+j*4}:{FR+32+j*4+3}], v{VRED+1} offset:{j*1024}")
    for j in range(6):
        k(f"s_waitcnt lgkmcnt({5-j})")
        for i in range(4): k(f"v_add_f32 v{ACC+j*4+i}, v{ACC+j*4+i}, v{FR+32+j*4+i}")
        t = FR + j * 2
        k(f"v_cvt_pk_bf16_f32 v{t}, v{ACC+j*4}, v{ACC+j*4+1}")
        k(f"v_cvt_pk_bf16_f32 v{t+1}, v{ACC+j*4+2}, v{ACC+j*4+3}")
        if j & 1:
            t = FR + (j >> 1) * 4
            k("s_nop 1")
            k(f"v_permlane16_swap_b32 v{t}, v{t+2}")
            k(f"v_permlane16_swap_b32 v{t+1}, v{t+3}")
            k(f"buffer_store_dwordx4 v[{t}:{t+3}], v{58 + (j >> 1)}, s[44:47], 0 offen sc1")
    k("s_branch L_c_cons")

def xr_role(k, P):
    NS = 4; SB = 36864
    k("s_and_b32 s62, s3, 3")
    k("s_cmp_lt_u32 s3, 4")
    k("s_cbranch_scc1 L_xr_cons")
    tabs = [sum(x << (4 * i) for i, x in enumerate(o)) for o in xr_orders(P)]
    k(f"s_mov_b32 s66, {hex(tabs[0] & 0xffffffff)}")
    k(f"s_mov_b32 s67, {hex(tabs[0] >> 32)}")
    for c in range(1, 4):
        k(f"s_cmp_eq_u32 s50, {c}")
        k(f"s_cselect_b32 s66, {hex(tabs[c] & 0xffffffff)}, s66")
        k(f"s_cselect_b32 s67, {hex(tabs[c] >> 32)}, s67")
    VX = 4; VU = 8
    k("v_lshrrev_b32 v28, 3, v0")
    k("v_and_b32 v29, 7, v0")
    k("v_lshrrev_b32 v30, 4, v0")
    k("v_xor_b32 v29, v29, v30")
    k("v_mul_u32_u24 v28, 1280, v28")
    k("v_lshl_add_u32 v28, v29, 4, v28")
    k("s_lshl_b32 s51, s4, 2")
    k("s_add_u32 s51, s51, s62")
    k(f"s_mul_i32 s52, s51, {32*1280}")
    k(f"v_add_u32 v{VX}, s52, v28")
    k(f"v_xor_b32 v{VX+1}, 64, v{VX}")
    k(f"v_add_u32 v{VX+1}, {8*1280}, v{VX+1}")
    for i in range(2, 4): k(f"v_add_u32 v{VX+i}, {16*1280}, v{VX+i-2}")
    k(f"s_mov_b32 s53, {magic(20)}")
    k(f"s_mul_i32 s52, s62, {16*1280}")
    k("s_mul_i32 s54, s5, 320")
    k("s_add_u32 s52, s52, s54")
    for j in range(5):
        k(f"v_add_u32 v28, {64*j}, v0")
        k("v_mul_hi_u32 v29, v28, s53")
        k("v_mul_u32_u24 v30, 20, v29")
        k("v_sub_u32 v28, v28, v30")
        k("v_lshrrev_b32 v30, 2, v29")
        k("v_and_b32 v30, 2, v30")
        k("v_xor_b32 v28, v28, v30")
        k("v_mul_u32_u24 v29, 1280, v29")
        k("v_lshl_add_u32 v28, v28, 4, v29")
        k(f"v_add_u32 v{VU+j}, s52, v28")
    k("s_lshl_b32 s55, s62, 12")
    k("s_mul_i32 s56, s62, 5120")
    k("s_add_u32 s56, s56, 16384")
    k("s_mov_b32 s60, 0")
    k("s_mov_b32 s65, 0")
    k("s_waitcnt lgkmcnt(0)")
    srd(k, 28, 8, 2048 * 640 * 2)
    srd(k, 32, 16, 640 * 640 * 2)
    def prep():
        k("s_and_b32 s57, s66, 15")
        k("s_lshr_b64 s[66:67], s[66:67], 4")
        k("s_lshl_b32 s58, s57, 7")
        k(f"s_mul_i32 s59, s57, {64*1280}")
        k("s_add_u32 m0, s55, s60")
        k("s_add_u32 s61, s56, s60")
        k(f"s_add_u32 s60, s60, {SB}")
        k(f"s_cmp_eq_u32 s60, {NS*SB}")
        k("s_cselect_b32 s60, 0, s60")
        k("s_add_u32 s65, s65, 1")
    def fire():
        for n in range(9):
            if n < 4: k(f"buffer_load_dwordx4 v{VX+n}, s[28:31], s58 offen lds")
            else: k(f"buffer_load_dwordx4 v{VU+n-4}, s[32:35], s59 offen lds")
            if n < 8:
                k("s_add_u32 m0, m0, 1024" if n != 3 else "s_mov_b32 m0, s61"); k("s_nop 0")
    stamp_mid(k, P, 2)
    k.label("L_xr_l0")
    prep(); fire()
    k("s_cmp_lt_u32 s65, 2")
    k("s_cbranch_scc1 L_xr_l0")
    k.label("L_xr_lloop")
    prep()
    k("s_waitcnt vmcnt(9)")
    k("s_barrier")
    fire()
    k("s_cmp_lt_u32 s65, 10")
    k("s_cbranch_scc1 L_xr_lloop")
    for r in (9, 0):
        k(f"s_waitcnt vmcnt({r})")
        k("s_barrier")
    srd(k, 44, 24, WS_BYTES)
    k("s_lshl_b32 s52, s4, 4")
    k("v_add_u32 v16, s52, v0")
    k(f"v_lshlrev_b32 v16, {FS}, v16")
    k(f"v_add_u32 v16, {SYNC2_OFF}, v16")
    k("v_mov_b32 v17, v16")
    k("s_lshl_b32 s75, s5, 2")
    k("s_add_u32 s75, s75, 96")
    k("s_mov_b32 s74, 0xffff")
    k("s_mov_b32 s53, 4")
    k("s_cmp_lg_u32 s3, 5")
    k("s_cbranch_scc1 L_c_ld")
    k("s_mov_b64 exec, 0xffff")
    gather(k, P, "v19", "v16")
    k("s_mov_b64 exec, -1")
    k("s_branch L_c_ld")
    k.label("L_xr_cons")
    VXR = 4; VUR = 6; VXC = 11; VUC = 13; VO2 = 18
    FB = [32, 68]; XACC = 104; OT = 184
    k("s_and_b32 s61, s62, 1")
    k("s_lshr_b32 s63, s62, 1")
    k("v_and_b32 v28, 15, v0")
    k("v_lshrrev_b32 v31, 4, v0")
    k("v_bfe_u32 v29, v0, 1, 3")
    k("v_xor_b32 v29, v29, v31")
    k("v_lshlrev_b32 v29, 4, v29")
    k("v_lshl_add_u32 v29, v28, 7, v29")
    k("s_lshl_b32 s52, s61, 13")
    k(f"v_add_u32 v{VXR}, s52, v29")
    k(f"v_xor_b32 v{VXR+1}, 64, v{VXR}")
    k("v_bfe_u32 v29, v0, 2, 2")
    k("v_lshl_add_u32 v29, v31, 3, v29")
    k("v_mul_u32_u24 v29, 320, v29")
    k("v_and_b32 v30, 3, v0")
    k("v_lshl_add_u32 v29, v30, 3, v29")
    k("v_add_u32 v29, 16384, v29")
    k("v_and_b32 v30, 1, v31")
    k("s_mul_i32 s64, s63, 5")
    for eb in range(5):
        k(f"s_add_u32 s52, s64, {eb}")
        k("v_xor_b32 v27, s52, v30")
        k(f"v_lshl_add_u32 v{VUR+eb}, v27, 5, v29")
    k("s_mul_i32 s52, s4, 163840")
    k("s_lshl_b32 s53, s61, 12")
    k("s_add_u32 s52, s52, s53")
    k(f"s_add_u32 s52, s52, {XRF_OFF}")
    k("v_lshlrev_b32 v28, 4, v28")
    k("v_lshl_add_u32 v28, v30, 10, v28")
    k("v_lshrrev_b32 v29, 5, v0")
    k("v_lshl_add_u32 v28, v29, 8, v28")
    k(f"v_add_u32 v{VO2}, s52, v28")
    k("s_mul_i32 s53, s5, 10")
    k("s_add_u32 s53, s53, s64")
    for eb in range(5):
        k(f"s_add_u32 s52, s53, {eb}")
        k(f"s_lshr_b32 s{68+eb}, s52, 1")
        k(f"s_lshl_b32 s{68+eb}, s{68+eb}, 13")
        k("s_and_b32 s52, s52, 1")
        k("s_lshl_b32 s52, s52, 9")
        k(f"s_add_u32 s{68+eb}, s{68+eb}, s52")
    for i in range(80): k(f"v_mov_b32 v{XACC+i}, 0")
    k("s_waitcnt lgkmcnt(0)")
    srd(k, 44, 24, WS_BYTES)
    def acc(eb, mb): return XACC + (mb * 5 + eb) * 4
    def rd(ks, buf):
        f = FB[buf]
        return [f"ds_read_b64_tr_b16 v[{f+16+eb*4+sec*2}:{f+17+eb*4+sec*2}], v{VUC+eb} offset:{(32*ks + 4*sec)*320}" for eb in range(5) for sec in range(2)] + \
               [f"ds_read_b128 v[{f+mb*4}:{f+mb*4+3}], v{VXC+ks} offset:{mb*2048}" for mb in range(4)]
    def newstage():
        return [f"v_add_u32 v{VXC+ks}, s64, v{VXR+ks}" for ks in range(2)] + [f"v_add_u32 v{VUC+eb}, s64, v{VUR+eb}" for eb in range(5)] + \
               [f"s_add_u32 s64, s64, {SB}", f"s_cmp_eq_u32 s64, {NS*SB}", "s_cselect_b32 s64, 0, s64"]
    def mfmas(buf, fill):
        f = FB[buf]
        for mb in range(4):
            for eb in range(5):
                a = acc(eb, mb)
                k(f"v_mfma_f32_16x16x32_bf16 v[{a}:{a+3}], v[{f+16+eb*4}:{f+19+eb*4}], v[{f+mb*4}:{f+mb*4+3}], v[{a}:{a+3}]")
                for _ in range(2 if (fill and not fill[0].startswith("ds_read_b128")) else 1):
                    if fill: k(fill.pop(0))
        assert not fill
    k("s_mov_b32 s64, 0")
    k("s_mov_b32 s65, 0")
    for x in newstage(): k(x)
    k("s_barrier")
    for x in rd(0, 0): k(x)
    k.label("L_xr_cloop")
    k("s_waitcnt lgkmcnt(0)")
    mfmas(0, rd(1, 1) + newstage() + ["s_add_u32 s65, s65, 1", "s_cmp_eq_u32 s65, 10"])
    k("s_waitcnt lgkmcnt(0)")
    k("s_barrier")
    k("s_cbranch_scc1 L_xr_done")
    mfmas(1, rd(0, 0))
    k("s_branch L_xr_cloop")
    k.label("L_xr_done")
    mfmas(1, [])
    stamp_mid(k, P, 0)
    k("s_nop 4")
    n = 0
    for i in range(2):
        for eb in range(5):
            t = OT + n * 4; n += 1
            a0 = acc(eb, 2 * i); a1 = acc(eb, 2 * i + 1)
            k(f"v_cvt_pk_bf16_f32 v{t}, v{a0}, v{a0+1}"); k(f"v_cvt_pk_bf16_f32 v{t+1}, v{a0+2}, v{a0+3}")
            k(f"v_cvt_pk_bf16_f32 v{t+2}, v{a1}, v{a1+1}"); k(f"v_cvt_pk_bf16_f32 v{t+3}, v{a1+2}, v{a1+3}")
            k("s_nop 1")
            k(f"v_permlane16_swap_b32 v{t}, v{t+2}"); k(f"v_permlane16_swap_b32 v{t+1}, v{t+3}")
            k(f"buffer_store_dwordx4 v[{t}:{t+3}], v{VO2}, s[44:47], s{68+eb} offen offset:{i*2048} sc1")

def mtmask(t):
    m = 0
    for eb in range(4 * t, 4 * t + 4): m |= 1 << (eb // 6)
    return m
def xmask(t):
    return (1 << (24 + 4 * t // 10)) | (1 << (24 + (4 * t + 3) // 10))

def c_ids(k):
    k("s_and_b32 s52, s2, 7")
    k("s_lshr_b32 s54, s2, 3")
    k("s_lshr_b32 s4, s52, 1")
    k("s_lshl_b32 s4, s4, 2")
    k("s_and_b32 s55, s54, 3")
    k("s_add_u32 s4, s4, s55")
    k("s_and_b32 s5, s52, 1")
    k("s_lshl_b32 s5, s5, 3")
    k("s_lshr_b32 s54, s54, 2")
    k("s_add_u32 s5, s5, s54")

COS = {
 "A": [[0,1,2,6,3,4,5,7,8,9],[0,1,3,2,7,4,5,6,8,9],[0,1,4,2,3,8,5,6,7,9],[0,1,5,2,3,4,9,6,7,8]],
 "B": [[0,1,5,2,3,4,9,6,7,8],[0,2,1,6,3,4,5,7,8,9],[0,3,1,2,7,4,5,6,8,9],[0,4,1,2,3,8,5,6,7,9]],
 "C": [[0,1,2,6,3,4,5,7,8,9],[1,0,3,7,2,4,5,6,8,9],[0,1,4,8,2,3,5,6,7,9],[1,0,5,9,2,3,4,6,7,8]],
 "D": [[0,1,2,3,6,4,5,7,8,9],[1,0,3,4,7,2,5,6,8,9],[0,1,4,5,2,8,3,6,7,9],[1,0,5,2,3,9,4,6,7,8]],
 "E": [[0,1,2,3,4,6,5,7,8,9],[1,0,3,2,5,7,4,6,8,9],[0,1,4,2,3,5,8,6,7,9],[1,0,5,2,3,4,9,6,7,8]],
}
def phase_c(k, P):
    NX = P.get("NX", 4); NW = P.get("NW", 4)
    XR = 0; WR = NX * 16384; STG = WR + NW * 14336
    assert STG + 30720 <= LCNT and STG <= 126976 and 126976 + 24576 <= STG + 30720
    order = P.get("corder", list(range(10)))
    k.label("L_c_cons")
    arrive(k)
    k.label("L_c_cons2")
    stamp_mid(k, P, 1)
    c_ids(k)
    VXR = 4; VWR = 5; VXC = 6; VWC = 7; VEW = 8; VER = 9; VST = 10
    ACC = 24; FR = 80; VRD = 152
    k("s_lshl_b32 s52, s3, 11")
    k(f"v_lshl_add_u32 v{VXR}, v0, 4, s52")
    k(f"v_lshlrev_b32 v{VWR}, 4, v0")
    k(f"v_add_u32 v{VWR}, {WR}, v{VWR}")
    for i in range(56): k(f"v_mov_b32 v{ACC+i}, 0")
    k("s_mul_i32 s52, s3, 7680")
    k(f"s_add_u32 s52, s52, {STG}")
    k("v_and_b32 v18, 15, v0")
    k("v_mul_u32_u24 v18, 240, v18")
    k("v_lshrrev_b32 v19, 4, v0")
    k("v_lshl_add_u32 v20, v19, 4, v18")
    k(f"v_add_u32 v{VEW}, s52, v20")
    k("v_lshl_add_u32 v20, v19, 3, v18")
    k(f"v_add_u32 v{VER}, s52, v20")
    k(f"s_mov_b32 s53, {magic(14)}")
    k("s_lshl_b32 s54, s4, 2")
    k("s_add_u32 s54, s54, s3")
    k(f"s_mul_i32 s54, s54, {32*3456}")
    k("s_mul_i32 s55, s5, 224")
    k("s_add_u32 s54, s54, s55")
    k("s_sub_u32 s55, 3456, s55")
    k("v_mov_b32 v23, 0x7fffffff")
    for i in range(7):
        k(f"v_add_u32 v18, {64*i}, v0")
        k("v_mul_hi_u32 v19, v18, s53")
        k("v_mul_u32_u24 v20, 14, v19")
        k("v_sub_u32 v18, v18, v20")
        k("v_lshlrev_b32 v18, 4, v18")
        k("v_cmp_gt_u32 vcc, s55, v18")
        k("v_mul_u32_u24 v20, 240, v19")
        k(f"v_add3_u32 v{VRD+i}, v20, v18, s52")
        k("v_mul_u32_u24 v20, 3456, v19")
        k(f"v_add3_u32 v{VST+i}, v20, v18, s54")
        k(f"v_cndmask_b32 v{VST+i}, v23, v{VST+i}, vcc")
    srd(k, 28, 20, 2048 * 1728 * 2)
    k("s_mov_b32 s56, 0"); k("s_mov_b32 s57, 0")
    def newstage():
        return [f"v_add_u32 v{VXC}, s56, v{VXR}", f"v_add_u32 v{VWC}, s57, v{VWR}"]
    def advance():
        return ["s_add_u32 s56, s56, 16384", f"s_cmp_eq_u32 s56, {NX*16384}",
                "s_cselect_b32 s56, 0, s56", "s_add_u32 s57, s57, 14336", f"s_cmp_eq_u32 s57, {NW*14336}", "s_cselect_b32 s57, 0, s57"]
    def reads(ks):
        f = FR + ks * 36
        out = [f"ds_read_b128 v[{f+28+u*4}:{f+31+u*4}], v{VXC} offset:{XR + u*1024 + ks*8192}" for u in range(0 if P.get("ab_noxr") else 2)]
        return out + [f"ds_read_b128 v[{f+b*4}:{f+b*4+3}], v{VWC} offset:{ks*7168 + b*1024}" for b in range(7)]
    RLX = P.get("rlx", 1)
    def mfmas(ks, fill, waits):
        f = FR + ks * 36; issued = 0
        rd = [x for x in fill if x.startswith("ds_")]; ot = [x for x in fill if not x.startswith("ds_")]
        slots = P.get("rs", [0, 1, 2, 4, 5, 7, 8, 10, 11]) if RLX else list(range(9))
        last = None
        for b in range(7):
            for u in range(2):
                i = 2 * b + u
                if waits and u == 0:
                    n = min(15, 6 - b + issued)
                    if not (RLX and b >= 1 and b != P.get("wb", 3) and rd is not None and len(fill)):
                        k(f"s_waitcnt lgkmcnt({n if not (RLX and len(fill)) else (7 - P.get('wb', 3) if b == 0 else issued)})")
                a = ACC + (u * 7 + b) * 4
                k(f"v_mfma_f32_16x16x32_bf16 v[{a}:{a+3}], v[{f+b*4}:{f+b*4+3}], v[{f+28+u*4}:{f+31+u*4}], v[{a}:{a+3}]")
                if rd and i in slots:
                    k(rd.pop(0)); issued += 1
                elif ot and (not ot[0].startswith("v_add") or not rd):
                    k(ot.pop(0))
                    if ot and not rd: k(ot.pop(0))
        assert not rd
        while ot: k(ot.pop(0))
    for x in newstage() + advance(): k(x)
    k("s_mov_b32 s65, 0")
    k("s_barrier")
    stamp_mid(k, P, 2)
    for x in reads(0): k(x)
    k.label("L_c_cloop")
    EO = P.get("eo", 1)
    OTT = 160
    def cvts(u):
        out = []
        for p in range(4):
            t = OTT + (p * 2 + u) * 4
            a0 = ACC + (u * 7 + 2 * p) * 4; a1 = a0 + 4
            out += [f"v_cvt_pk_bf16_f32 v{t}, v{a0}, v{a0+1}", f"v_cvt_pk_bf16_f32 v{t+1}, v{a0+2}, v{a0+3}"]
            if p < 3:
                out += [f"v_cvt_pk_bf16_f32 v{t+2}, v{a1}, v{a1+1}", f"v_cvt_pk_bf16_f32 v{t+3}, v{a1+2}, v{a1+3}",
                        f"ds_write_b128 v{VEW}, v[{t}:{t+3}] offset:{u*16*240 + p*64}"]
            else:
                out += [f"ds_write_b64 v{VER}, v[{t}:{t+1}] offset:{u*16*240 + 192}"]
        return out
    RB = 192
    def rb(i): return f"ds_read_b128 v[{RB+i*4}:{RB+i*4+3}], v{VRD+i}"
    def st(i): return f"buffer_store_dwordx4 v[{RB+i*4}:{RB+i*4+3}], v{VST+i}, s[28:31], 0 offen {P.get('k2_stflags', '')}"
    def mf1(ks, b, u):
        f = FR + ks * 36; a = ACC + (u * 7 + b) * 4
        return f"v_mfma_f32_16x16x32_bf16 v[{a}:{a+3}], v[{f+b*4}:{f+b*4+3}], v[{f+28+u*4}:{f+31+u*4}], v[{a}:{a+3}]"
    if not EO:
        mfmas(0, reads(1) + ["s_add_u32 s65, s65, 1", "s_cmp_eq_u32 s65, 10"] + newstage(), True)
        k("s_cbranch_scc1 L_c_cdone")
        if not RLX: k("s_waitcnt lgkmcnt(0)")
        k("s_barrier")
        mfmas(1, reads(0) + advance(), bool(RLX))
        k("s_branch L_c_cloop")
        k.label("L_c_cdone")
        mfmas(1, [], True)
        stamp_mid(k, P, 3)
        k("s_nop 4")
        for x in cvts(0) + cvts(1): k(x)
        for i in range(7): k(rb(i))
        for i in range(7):
            k(f"s_waitcnt lgkmcnt({6-i})"); k(st(i))
    else:
        mfmas(0, reads(1) + newstage(), True)
        if not RLX: k("s_waitcnt lgkmcnt(0)")
        k("s_barrier")
        mfmas(1, reads(0) + advance() + ["s_add_u32 s65, s65, 1", "s_cmp_lt_u32 s65, 9"], bool(RLX))
        k("s_cbranch_scc1 L_c_cloop")
        rd = reads(1)
        k("s_waitcnt lgkmcnt(4)")
        n = 0
        for b in range(7):
            if b == 3: k(f"s_waitcnt lgkmcnt({n})")
            k(mf1(0, b, 0)); k(rd.pop(0)); n += 1
        for b in range(4):
            k(mf1(0, b, 1))
            if rd: k(rd.pop(0))
        for b in range(7):
            k(f"s_waitcnt lgkmcnt({6-b})")
            k(mf1(1, b, 0))
        fill = cvts(0) + [rb(0), rb(1), rb(2)]
        rest = [mf1(0, b, 1) for b in range(4, 7)] + [mf1(1, b, 1) for b in range(7)]
        for i, m in enumerate(rest):
            k(m)
            if i >= 1:
                for _ in range(3):
                    if fill: k(fill.pop(0))
        assert not fill
        stamp_mid(k, P, 3)
        c1 = cvts(1)
        for i in range(3):
            k(f"s_waitcnt lgkmcnt({2-i})"); k(st(i))
        for x in c1: k(x)
        for i in range(3, 7): k(rb(i))
        for i in range(3, 7):
            k(f"s_waitcnt lgkmcnt({6-i})"); k(st(i))
    stamp_end(k, P, 0, 44, 112, 3)
    k("s_endpgm")
    k.label("L_c_ld")
    c_ids(k)
    k("s_and_b32 s62, s3, 1")
    k("s_lshl_b32 s52, s4, 4")
    k("s_add_u32 s52, s52, s5")
    k(f"s_lshl_b32 s52, s52, {FS}")
    k(f"s_add_u32 s52, s52, {SYNC2_OFF}")
    k("v_lshl_add_u32 v8, v0, 2, s52")
    k("s_mov_b32 s63, 0")
    CO = P.get("co")
    if isinstance(CO, str) and CO in COS: CO = COS[CO]
    if isinstance(CO, list):
        for o in CO:
            assert sorted(o) == list(range(10))
            for i in range(P["wall"]): assert o[i] == i
    if CO:
        tabs = [sum(x << (4 * i) for i, x in enumerate(o)) for o in (CO if isinstance(CO, list) else xr_orders({"xorder": CO}))]
        k("s_add_u32 s52, s4, s5")
        k(f"s_and_b32 s52, s52, {len(tabs) - 1}")
        k(f"s_mov_b32 s68, {hex(tabs[0] & 0xffffffff)}")
        k(f"s_mov_b32 s69, {hex(tabs[0] >> 32)}")
        for c in range(1, len(tabs)):
            k(f"s_cmp_eq_u32 s52, {c}")
            k(f"s_cselect_b32 s68, {hex(tabs[c] & 0xffffffff)}, s68")
            k(f"s_cselect_b32 s69, {hex(tabs[c] >> 32)}, s69")
    def soff(i, mul):
        if not CO: k(f"s_mov_b32 s58, {order[i]*mul}")
        else:
            k(f"s_bfe_u32 s58, {'s68' if i < 8 else 's69'}, {hex(((i % 8) * 4) | (4 << 16))}")
            k(f"s_mul_i32 s58, s58, {mul}")
    k("s_cmp_ge_u32 s3, 6")
    k("s_cbranch_scc1 L_c_xl")
    k("s_mul_i32 s52, s5, 7")
    k("s_add_u32 s54, s52, 6")
    k("s_lshr_b32 s52, s52, 2")
    k("s_lshr_b32 s54, s54, 2")
    k("s_min_u32 s54, s54, 26")
    k("s_sub_u32 s52, s54, s52")
    k("s_mov_b32 s66, 1")
    k("s_cmp_ge_u32 s52, 1")
    k("s_cselect_b32 s66, 0x101, s66")
    k("s_cmp_ge_u32 s52, 2")
    k("s_cselect_b32 s66, 0x10101, s66")
    k("s_mul_i32 s52, s5, 143360")
    k(f"s_add_u32 s52, s52, {WVF_OFF}")
    k("s_mul_i32 s55, s62, 7168")
    k("s_add_u32 s52, s52, s55")
    k("v_lshl_add_u32 v4, v0, 4, s52")
    k("v_add_u32 v5, 4096, v4")
    k("v_mov_b32 v6, v4")
    k("s_cmp_lg_u32 s5, 15")
    k("s_cbranch_scc1 L_c_nt15")
    k("v_mov_b32 v5, 0x7fffffff")
    k("v_and_b32 v7, 8, v0")
    k("v_cmp_eq_u32 vcc, 0, v7")
    k("s_nop 1")
    k("v_cndmask_b32 v6, v5, v4, vcc")
    k.label("L_c_nt15")
    k(f"s_add_u32 s55, s55, {WR}")
    k("s_barrier")
    k("s_cmp_lg_u32 s3, 5")
    k("s_cbranch_scc1 L_c_nopush")
    k("s_cmp_eq_u32 s74, 0")
    k("s_cbranch_scc1 L_c_nopush")
    k("s_waitcnt vmcnt(0)")
    k(f"v_add_u32 v19, {TAGC}, v19")
    k("s_mov_b32 exec_lo, s74")
    k("s_mov_b32 exec_hi, 0")
    lds_wait(k, "L_c_own", "s53")
    push(k, P, "v19", "v17", "s75")
    k("s_mov_b64 exec, -1")
    stamp_mid(k, P, 0)
    k("s_branch L_c_pushed")
    k.label("L_c_nopush")
    lds_wait(k, "L_c_own4", "s53", sleep=1)
    k.label("L_c_pushed")
    if P.get("ps2", 8): k(f"s_sleep {P.get('ps2', 8)}")
    def run(name, N, per, prep, fire, init, fin=None, la=99, ramp=1, bg=0):
        vm = VM(); ni = 0
        def both(i):
            prep(i); k("s_nop 0"); fire(i)
            for _ in range(per): vm.issue(i)
        for _ in range(init): both(ni); ni += 1
        stamp_mid(k, P, 1)
        def bgpoll():
            k("v_mov_b32 v29, 0")
            k("s_mov_b32 exec_hi, 0")
            k("buffer_atomic_or v29, v8, s[44:47], 0 offen sc0 sc1")
            k("s_mov_b64 exec, -1")
            vm.issue(-1)
        pend = False
        if bg: bgpoll(); pend = True
        for b in range(10):
            lim = min(9, max(N - 1, b - 1 - P.get("rlx", 1) + N))
            todo = list(range(ni, min(lim, b + la) + 1))[:ramp]
            if pend:
                k(f"s_waitcnt vmcnt({vm.wait_for(lambda t: t <= b)})")
                k(f"s_add_u32 s52, s59, {TAGC}")
                k("v_cmp_eq_u32 vcc, s52, v29")
                k("s_or_b32 s63, s63, vcc_lo")
                pend = False
                if todo: prep(todo[0])
            else:
                if todo: prep(todo[0])
                k(f"s_waitcnt vmcnt({vm.wait_for(lambda t: t <= b)})")
            k("s_barrier")
            if b + 1 < bg: bgpoll(); pend = True
            if todo:
                fire(todo[0])
                for _ in range(per): vm.issue(todo[0])
                ni += 1
                for t_ in todo[1:]: both(t_); ni += 1
        assert ni == 10
        if fin: fin()
        if P.get("stamp"):
            k("s_and_b32 s62, s3, 3")
            stamp_end(k, P, 2, 44, 32, 62)
        k("s_endpgm")
    def prepW(i):
        if P.get("wall") is not None:
            if i <= P["wall"]:
                k(f"s_mul_i32 s76, s66, {0x7f if i == P['wall'] else mtmask(order[i])}")
                ensure(k)
        else:
            k(f"s_mul_i32 s76, s66, {mtmask(order[i])}")
            ensure(k)
        soff(i, 14336)
        k(f"s_add_u32 m0, s55, {(i % NW)*14336}")
    def fireW(i):
        if P.get("ab_nowd"): return
        for j in range(4): k(f"buffer_load_dwordx4 v{4 if j < 2 else 6}, s[44:47], s58 offen offset:{j*1024} sc1 lds")
        k("s_add_u32 m0, m0, 4096")
        k("s_nop 0")
        for j in range(3): k(f"buffer_load_dwordx4 v5, s[44:47], s58 offen offset:{j*1024} sc1 lds")
    def finW():
        k("s_cmp_lg_u32 s3, 4")
        k("s_cbranch_scc1 L_c_nobump")
        bump(k)
        k.label("L_c_nobump")
    run("L_c_w", NW, 7, prepW, fireW, P.get("W0", 4), finW, la=P.get("law", 99), ramp=P.get("wramp", 1), bg=P.get("bg", 0))
    k.label("L_c_xl")
    k("s_mul_i32 s52, s4, 163840")
    k(f"s_add_u32 s52, s52, {XRF_OFF}")
    k("s_lshl_b32 s55, s62, 13")
    k("s_add_u32 s52, s52, s55")
    k("v_lshl_add_u32 v4, v0, 4, s52")
    k("v_add_u32 v5, 4096, v4")
    k("s_barrier")
    if P.get("xhold", 1): lds_wait(k, "L_c_xh", "s53", sleep=1)
    def prepX(i):
        if i == 0:
            k("s_mov_b32 s76, 0x0f000000")
            ensure(k)
        soff(i, 16384)
        k(f"s_add_u32 m0, s55, {XR + (i % NX)*16384}")
    def fireX(i):
        if P.get("ab_noxd"): return
        for j in range(4): k(f"buffer_load_dwordx4 v4, s[44:47], s58 offen offset:{j*1024} sc1 lds")
        k("s_add_u32 m0, m0, 4096")
        k("s_nop 0")
        for j in range(4): k(f"buffer_load_dwordx4 v5, s[44:47], s58 offen offset:{j*1024} sc1 lds")
    run("L_c_x", NX, 8, prepX, fireX, P.get("X0", NX), ramp=P.get("xramp", 1), la=P.get("lax", 2))

def gen(P):
    global MAPN
    MAPN = P.get("map", [32, 32, 32, 12, 27, 27, 27, 0])
    assert sum(MAPN) == 189 and sum((32 - n) & 0x3c for n in MAPN) == 64
    uid[0] = 0
    P = dict(P)
    for kk_, v in (("tlb", 0), ("X0", 5), ("NX", 5), ("NW", 3), ("rlx", 0), ("wall", 1), ("need", 12), ("xfirst", 0), ("pm", "atom"), ("wm", "atom"), ("ps", 0), ("ps2", 0), ("cp", 0), ("W0", 2), ("dualW", 0)): P.setdefault(kk_, v)

    k = K(KNAME)
    k("s_cmp_ge_u32 s2, 256")
    k("s_cbranch_scc1 L_end")
    k("s_load_dwordx16 s[8:23], s[0:1], 0")
    k("s_load_dwordx2 s[24:25], s[0:1], 64")
    stamp_begin(k, P)
    k("s_getpc_b64 s[40:41]")
    k.label("L_pc0")
    k("v_subrev_u32 v4, 504, v0")
    k("v_cmp_gt_u32 vcc, 8, v4")
    k("s_and_saveexec_b64 s[44:45], vcc")
    k("s_cbranch_execz L_noipf")
    k("s_and_b32 s41, s41, 0xffff")
    k("s_mov_b32 s42, L_end - L_pc0")
    k("s_mov_b32 s43, 0x00020000")
    k("s_and_b32 s46, s2, 0xf8")
    k("v_add_lshl_u32 v4, s46, v4, 7")
    k("buffer_load_dword v255, v4, s[40:43], 0 offen")
    k.label("L_noipf")
    k("s_mov_b64 exec, -1")
    k("v_lshrrev_b32 v1, 6, v0")
    k(f"v_mov_b32 v2, {LCNT}")
    k("v_mov_b32 v3, 0")
    k("v_readfirstlane_b32 s3, v1")
    k("ds_write2_b32 v2, v3, v3 offset0:0 offset1:1")
    k("v_and_b32 v0, 63, v0")
    k("s_bfe_u32 s4, s2, 0x10002")
    k("s_and_b32 s5, s2, 3")
    k("s_lshr_b32 s6, s2, 3")
    pk = lambda v: sum(x << (8 * j) for j, x in enumerate(v))
    k("s_and_b32 s7, s2, 7")
    k("s_lshl_b32 s7, s7, 3")
    def tab(dst, v):
        k(f"s_mov_b32 s56, {hex(pk(v) & 0xffffffff)}"); k(f"s_mov_b32 s57, {hex(pk(v) >> 32)}")
        k("s_lshr_b64 s[56:57], s[56:57], s7"); k(f"s_and_b32 {dst}, s56, 0xff")
    tab("s52", MAPN)
    k("s_cmp_ge_u32 s6, s52")
    k("s_cbranch_scc1 L_xr")
    tab("s53", [sum(MAPN[:j]) for j in range(8)])
    k("s_add_u32 s53, s53, s6")
    k("s_and_b32 s4, s53, 3")
    k("s_lshr_b32 s5, s53, 2")
    k(f"s_mul_i32 s60, s4, {P.get('oa', 7)}")
    k("s_sub_u32 s52, s53, 108")
    k("s_cbranch_scc1 L_wv")
    k(f"s_mul_hi_u32 s5, s52, {magic(3)}")
    k("s_mul_i32 s4, s5, 3")
    k("s_sub_u32 s4, s52, s4")
    k(f"s_mul_i32 s60, s4, {P.get('ob', 9)}")
    k("s_add_u32 s4, s4, 4")
    k.label("L_wv")
    wv_role(k, P)
    poll_sub(k, P)
    k.label("L_idle")
    k("s_waitcnt lgkmcnt(0)")
    srd(k, 44, 24, WS_BYTES)
    k("s_mov_b32 s53, 0")
    k("s_mov_b32 s74, 0")
    k("v_mov_b32 v17, 0x7fffffff")
    k("s_cmp_ge_u32 s3, 4")
    k("s_cbranch_scc1 L_c_ld")
    k("s_barrier")
    k("s_branch L_c_cons2")
    k.label("L_xr")
    k("s_sub_u32 s6, s6, s52")
    k("s_sub_u32 s52, 32, s52")
    k("s_and_b32 s52, s52, 0x3c")
    k("s_cmp_ge_u32 s6, s52")
    k("s_cbranch_scc1 L_idle")
    tab("s53", [sum((32 - n) & 0x3c for n in MAPN[:j]) for j in range(8)])
    k("s_add_u32 s6, s6, s53")
    k("s_and_b32 s5, s6, 3")
    k("s_lshr_b32 s4, s6, 2")
    k("s_add_u32 s50, s4, s5")
    k("s_and_b32 s50, s50, 3")
    xr_role(k, P)
    phase_c(k, P)
    return finish(k)

def finish(k):
    k.label("L_end")
    k("s_endpgm")
    src = "; QuIP weight-only int4 layer: y = (x@U) @ (dequant(qw)@V), one fused launch (generated by dev/gen9.py)\n"
    src += "; @launch grid=(256,1,1) block=(512,1,1) lds=163840\n" + HEADER + k.text()
    src += '.section .rodata,"a"\n' + desc(KNAME, 256, 102, 256)
    return src

def is_wv(b, P):
    import numpy as np
    return (b >> 3) < np.array(MAPN)[b & 7]
def is_xr(b, P):
    import numpy as np
    n = np.array(MAPN)[b & 7]
    return ((b >> 3) >= n) & ((b >> 3) - n < ((32 - n) & 0x3c))

if __name__ == "__main__":
    import json
    P = json.loads(sys.argv[2]) if len(sys.argv) > 2 else {}
    open(sys.argv[1], "w").write(gen(P))
```
